```python
import torch

def _softmax(x, axis=-1):
    return torch.softmax(x, dim=axis)
def _gelu(x):
    return torch.nn.functional.gelu(x, approximate="tanh")
def _silu(x):
    return torch.nn.functional.silu(x)
def _sigmoid(x):
    return torch.sigmoid(x)
def _layernorm(x, axis=-1, eps=1e-5):
    m = x.mean(dim=axis, keepdim=True)
    v = x.var(dim=axis, keepdim=True, unbiased=False)
    return (x - m) / torch.sqrt(v + eps)
def _scatter_add(tgt, idx, src, axis=0):
    return tgt.clone().index_add_(axis, idx, src)
def _segment_sum(src, seg, n):
    out = torch.zeros((n,) + src.shape[1:], dtype=src.dtype)
    return out.index_add_(0, seg, src)
def _pad(x, pw):
    flat = tuple(v for pair in reversed(pw) for v in pair)
    return torch.nn.functional.pad(x, flat)

kernel_name = 'sequential_preLN__compressed_kv_cla__glu_gated_bilinear__prompt'

def setup_inputs():

    _w = (lambda a: (lambda t: t.to(torch.bfloat16) if t.is_floating_point() else t)(torch.as_tensor(a)))
    def _A_setup():
        B, H, Sq, Sk, D, M = 1, 16, 2048, 2048, 256, 448
        Dc = 4 * D
        return {
            "x": _w((lambda *s: torch.randn(*s, dtype=torch.bfloat16) * 0.05)(B, Sq, M)),
            "c_kv": _w((lambda *s: torch.randn(*s, dtype=torch.bfloat16) * 0.4)(B, Sk, Dc)),
            "w_q": _w((lambda *s: torch.randn(*s, dtype=torch.bfloat16) * 1.6)(M, H, D) * (M ** -0.5)),
            "w_uk": _w((lambda *s: torch.randn(*s, dtype=torch.bfloat16) * 1.6)(Dc, H, D) * (Dc ** -0.5)),
            "w_uv": _w((lambda *s: torch.randn(*s, dtype=torch.bfloat16) * 0.4)(Dc, H, D) * (Dc ** -0.5)),
            "w_o": _w((lambda *s: torch.randn(*s, dtype=torch.bfloat16) * 0.4)(H, D, M) * ((H * D) ** -0.5)),
        }
    _A_in = _A_setup()

    def _B_setup():
        B, S, D, F = 1, 2048, 448, 1792
        return {
            "x": _w((lambda *s: torch.randn(*s, dtype=torch.bfloat16) * 0.05)(B, S, D)),
            "w_gate": _w((lambda *s: torch.randn(*s, dtype=torch.bfloat16) * 0.4)(D, F) * (D ** -0.5)),
            "w_up": _w((lambda *s: torch.randn(*s, dtype=torch.bfloat16) * 0.4)(D, F) * (D ** -0.5)),
            "w_down": _w((lambda *s: torch.randn(*s, dtype=torch.bfloat16) * 0.4)(F, D) * (F ** -0.5)),
        }
    _B_in = _B_setup()

    return {
        "A_x": _A_in["x"],
        "A_c_kv": _A_in["c_kv"],
        "A_w_q": _A_in["w_q"],
        "A_w_uk": _A_in["w_uk"],
        "A_w_uv": _A_in["w_uv"],
        "A_w_o": _A_in["w_o"],
        "B_x": _B_in["x"],
        "B_w_gate": _B_in["w_gate"],
        "B_w_up": _B_in["w_up"],
        "B_w_down": _B_in["w_down"],
    }

def reference(A_x, A_c_kv, A_w_q, A_w_uk, A_w_uv, A_w_o, B_x, B_w_gate, B_w_up, B_w_down):
    def _A_ref(x, c_kv, w_q, w_uk, w_uv, w_o):
        B, Sq, M = x.shape[0], x.shape[1], x.shape[2]
        Sk = c_kv.shape[1]
        H, D = w_q.shape[1], w_q.shape[2]
        q = torch.einsum("bqm,mhd->bhqd", x, w_q)
        k = torch.einsum("bkc,chd->bhkd", c_kv, w_uk)
        v = torch.einsum("bkc,chd->bhkd", c_kv, w_uv)
        scores = torch.einsum("bhqd,bhkd->bhqk", q, k) * (D ** -0.5)
        off = Sk - Sq
        qi = torch.arange(Sq)[:, None]
        kj = torch.arange(Sk)[None, :]
        cmask = kj <= (qi + off)
        scores = torch.where(cmask[None, None], scores, -1e9)
        p = _softmax(scores, axis=-1)
        ctx = torch.einsum("bhqk,bhkd->bhqd", p, v)
        return torch.einsum("bhqd,hdm->bqm", ctx, w_o)

    def _B_ref(x, w_gate, w_up, w_down):
        g = torch.einsum("bsd,df->bsf", x, w_gate)
        u = torch.einsum("bsd,df->bsf", x, w_up)
        h = g * u
        return torch.einsum("bsf,fd->bsd", h, w_down)

    x = A_x
    h = x + _A_ref(_layernorm(x, axis=-1), A_c_kv, A_w_q, A_w_uk, A_w_uv, A_w_o)
    h2 = h + _B_ref(_layernorm(h, axis=-1), B_w_gate, B_w_up, B_w_down)
    return h2
```

```python
import re


class Ins:
    __slots__ = ("t", "ann")

    def __init__(self, t, ann=None):
        self.t = t
        self.ann = ann

    def __repr__(self):
        return self.t


def R(kind, base, n=1):
    return "%s%d" % (kind, base) if n == 1 else "%s[%d:%d]" % (kind, base, base + n - 1)


def v(b, n=1):
    return R("v", b, n)


def a(b, n=1):
    return R("a", b, n)


def s(b, n=1):
    return R("s", b, n)


class Alloc:
    def __init__(self, start, limit):
        self.p = start
        self.limit = limit
        self.names = {}

    def __call__(self, n=1, align=1, name=None):
        self.p = (self.p + align - 1) // align * align
        b = self.p
        self.p += n
        assert self.p <= self.limit, "out of registers"
        if name:
            self.names[name] = (b, n)
        return b


class Code(list):
    def I(self, t, ann=None):
        self.append(Ins(t, ann))
        return self

    def L(self, name):
        self.append(Ins(name + ":"))

    def C(self, text):
        self.append(Ins("; " + text))

    def text(self):
        out = []
        for i in self:
            if i.t.endswith(":") or i.t.startswith(";") or i.t.startswith("."):
                out.append(i.t)
            else:
                out.append("    " + i.t)
        return "\n".join(out)


def weave(code, mains, gaps, pre=None):
    for i, m in enumerate(mains):
        if pre and i in pre:
            for g in pre[i]:
                code.append(g if isinstance(g, Ins) else Ins(g))
        code.append(m if isinstance(m, Ins) else Ins(m))
        for g in gaps.get(i, []):
            code.append(g if isinstance(g, Ins) else Ins(g))


def mfma(d, A, B, c):
    return "v_mfma_f32_32x32x16_bf16 %s, %s, %s, %s" % (d, A, B, c)


_REG = re.compile(r"^(-|abs\(|\|)?([vas])(\d+)\)?\|?$|^(-)?([vas])\[(\d+):(\d+)\]$")
_TRANS = ("v_exp_f32", "v_log_f32", "v_rcp_f32", "v_rsq_f32", "v_sqrt_f32", "v_sin_f32", "v_cos_f32",
          "v_rcp_iflag_f32")


def regs_of(tok):
    tok = tok.strip()
    if tok in ("vcc",):
        return [("s", "vcc")]
    if tok in ("vcc_lo", "vcc_hi"):
        return [("s", "vcc")]
    if tok == "exec":
        return [("s", "exec")]
    if tok == "m0":
        return [("s", "m0")]
    m = _REG.match(tok)
    if not m:
        return []
    if m.group(2):
        return [(m.group(2), int(m.group(3)))]
    return [(m.group(5), i) for i in range(int(m.group(6)), int(m.group(7)) + 1)]


def split_ops(rest):
    ops, depth, cur = [], 0, ""
    for ch in rest:
        if ch in "[(":
            depth += 1
        if ch in "])":
            depth -= 1
        if ch == "," and depth == 0:
            ops.append(cur.strip())
            cur = ""
        else:
            cur += ch
    if cur.strip():
        ops.append(cur.strip())
    mods = []
    if ops:
        parts = ops[-1].split()
        ops[-1] = parts[0]
        mods = parts[1:]
    return ops, mods


class P:
    pass


def parse(t):
    p = P()
    t = t.split(";")[0].strip()
    sp = t.split(None, 1)
    p.op = sp[0]
    for suf in ("_e32", "_e64"):
        if p.op.endswith(suf):
            p.op = p.op[: -len(suf)]
    rest = sp[1] if len(sp) > 1 else ""
    p.ops, p.mods = split_ops(rest) if p.op not in ("s_waitcnt",) else ([], rest.split())
    op = p.op
    o = p.ops
    rg = lambda k: regs_of(o[k]) if k < len(o) else []
    p.d, p.s = [], []
    p.cls = "other"
    p.ab, p.c = [], []
    if op.startswith("v_mfma"):
        p.cls = "mfma"
        p.d = rg(0)
        p.ab = rg(1) + rg(2)
        p.c = rg(3)
        p.s = p.ab + p.c
        p.passes = 8 if "32x32" in op else 4
    elif op.startswith("ds_read") or op.startswith("ds_bpermute") or op.startswith("ds_swizzle"):
        p.cls = "ds"
        p.d = rg(0)
        p.s = sum((rg(k) for k in range(1, len(o))), [])
    elif op.startswith("ds_write"):
        p.cls = "ds"
        p.s = sum((rg(k) for k in range(len(o))), [])
    elif op.startswith("buffer_load") or op.startswith("global_load"):
        p.cls = "vmem"
        if "lds" in p.mods or "_lds_" in op:
            p.s = sum((rg(k) for k in range(len(o))), []) + [("s", "m0")]
            p.dma = True
        else:
            p.d = rg(0)
            p.s = sum((rg(k) for k in range(1, len(o))), [])
    elif op.startswith("buffer_store") or op.startswith("global_store"):
        p.cls = "vmem"
        p.s = sum((rg(k) for k in range(len(o))), [])
        p.store = rg(0) if op.startswith("buffer") else rg(1)
        p.wide = "x3" in op or "x4" in op
    elif op.startswith("buffer_atomic") or op.startswith("global_atomic"):
        p.cls = "vmem"
        p.s = sum((rg(k) for k in range(len(o))), [])
        if "sc0" in p.mods:
            p.d = rg(0)
    elif op in ("buffer_wbl2", "buffer_inv"):
        p.cls = "vmem"
    elif op.startswith("s_load") or op in ("s_memtime", "s_memrealtime"):
        p.cls = "smem"
        p.d = rg(0)
        p.s = rg(1) + rg(2)
    elif op.startswith("v_"):
        p.cls = "valu"
        p.d = rg(0)
        p.s = sum((rg(k) for k in range(1, len(o))), [])
        if op.startswith("v_cmpx"):
            p.d = p.d + [("s", "exec")]
        if op.startswith(("v_fmac", "v_dot2c", "v_mac", "v_pk_fmac")):
            p.s += p.d
        if op.startswith("v_permlane") and "swap" in op:
            p.d = rg(0) + rg(1)
            p.s = rg(0) + rg(1)
        if op.startswith(("v_add_co", "v_sub_co", "v_addc_co", "v_subb_co", "v_div_scale")):
            p.d = rg(0) + rg(1)
            p.s = sum((rg(k) for k in range(2, len(o))), [])
        if op.startswith("v_writelane") or "dpp" in op or "sdwa" in op:
            p.s += [r for r in p.d if r[0] == "v"]
    elif op.startswith("s_"):
        p.cls = "salu"
        if op.startswith(("s_cmp", "s_cbranch", "s_branch", "s_waitcnt", "s_barrier", "s_nop", "s_setprio",
                          "s_endpgm", "s_sleep", "s_bitcmp")):
            p.s = sum((rg(k) for k in range(len(o))), [])
            if op in ("s_cbranch_vccz", "s_cbranch_vccnz"):
                p.s = [("s", "vcc")]
        else:
            p.d = rg(0)
            p.s = sum((rg(k) for k in range(1, len(o))), [])
            if "saveexec" in op:
                p.d += [("s", "exec")]
                p.s += [("s", "exec")]
            if op.startswith(("s_addk", "s_mulk", "s_cmov")):
                p.s += p.d
    return p


def check(trace, name="", verbose=True):
    errs = []
    ws = 0
    last = {}
    vmq, lgq = [], []
    smem_pending = []
    pend = {}
    slot_owner = {}
    slab_landed_bar = {}
    slab_parts_out = {}
    slab_issued, slab_nparts = {}, {}
    slab_reads_out = {}
    slab_read_since_bar = set()

    def err(i, msg):
        errs.append("%s[%d] %s :: %s" % (name, i, trace[i].t, msg))

    def need(i, key, n, msg):
        if key in last and ws - last[key] - 1 < n:
            err(i, "%s: %d wait states, need %d" % (msg, ws - last[key] - 1, n))

    for i, ins in enumerate(trace):
        t = ins.t
        if t.endswith(":") or t.startswith(";") or t.startswith("."):
            continue
        p = parse(t)
        for r in p.s + p.d:
            if r in pend:
                err(i, "touches %s%s with load pending (%s)" % (r[0], r[1], pend[r]))
        isv = p.cls == "valu"
        if p.cls == "mfma":
            for r in p.s:
                need(i, ("valu_w", r), 2, "VALU write -> MFMA read %s%s" % r)
            for r in p.ab:
                if ("mfma_w", r) in last:
                    need(i, ("mfma_w", r), last[("mfma_p", r)] + 4, "MFMA D -> MFMA A/B %s%s" % r)
            if p.c:
                for r in p.c:
                    if ("mfma_w", r) in last and last.get(("mfma_dset", r)) != tuple(p.c):
                        need(i, ("mfma_w", r), last[("mfma_p", r)] + 2, "MFMA D -> overlapping C %s%s" % r)
            if tuple(p.d) != tuple(p.c):
                for r in p.d:
                    if ("mfma_w", r) in last and last.get(("mfma_dset", r)) != tuple(p.d):
                        need(i, ("mfma_w", r), last[("mfma_p", r)] + 2, "MFMA D -> MFMA D WAW %s%s" % r)
            need(i, ("valu_w", ("s", "exec")), 4, "VALU exec write -> MFMA")
        if isv or p.cls in ("vmem", "ds"):
            for r in p.s + p.d:
                if ("mfma_w", r) in last:
                    need(i, ("mfma_w", r), last[("mfma_p", r)] + 4, "MFMA D -> VALU/mem %s%s" % r)
        if isv:
            for r in p.d:
                if ("mfma_c", r) in last:
                    need(i, ("mfma_c", r), last[("mfma_cp", r)] - 1, "MFMA C read -> VALU write %s%s" % r)
                need(i, ("store_d", r), 2, "wide store data -> VALU overwrite %s%s" % r)
            if p.op not in _TRANS:
                for r in p.s:
                    need(i, ("trans_w", r), 1, "trans -> VALU %s%s" % r)
            for r in p.s:
                if r[0] == "s":
                    n = 4 if p.op.startswith(("v_readlane", "v_writelane")) else 2
                    if p.op == "v_div_fmas_f32":
                        n = 4
                    need(i, ("valu_w", r), n, "VALU sgpr write -> VALU read %s" % (r[1],))
            if p.op.startswith("v_cndmask") and len(p.ops) == 4:
                pass
            if p.op.startswith(("v_readlane", "v_readfirstlane")):
                for r in p.s:
                    if r[0] == "v":
                        need(i, ("valu_w", r), 1, "VALU write -> readlane")
                need(i, ("valu_w", ("s", "exec")), 4, "exec write -> readlane")
            if p.op.startswith("v_permlane") or "dpp" in p.op:
                for r in p.s:
                    need(i, ("valu_w", r), 2, "VALU write -> permlane/dpp %s%s" % r)
        if p.cls in ("ds", "vmem") and p.d:
            for r in p.d:
                if ("mfma_c", r) in last:
                    need(i, ("mfma_c", r), last[("mfma_cp", r)] - 1, "MFMA C read -> load write")
                need(i, ("store_d", r), 1, "wide store data -> overwrite")
        if p.cls == "vmem":
            for r in p.s:
                if r[0] == "s":
                    need(i, ("valu_w", r), 5, "VALU sgpr write -> VMEM read")
            if getattr(p, "dma", False):
                need(i, ("salu_w", ("s", "m0")), 1, "m0 write -> LDS DMA")
        if p.cls == "salu":
            for r in p.s:
                if r == ("s", "vcc") and p.op.startswith("s_cbranch"):
                    need(i, ("valu_w", r), 0, "")
        ann = ins.ann or {}
        if "w" in ann:
            slot, slab = ann["w"][:2]
            slab_issued[slab] = slab_issued.get(slab, 0) + 1
            slab_nparts[slab] = ann["w"][2]
            old = slot_owner.get(slot)
            if old is not None and old != slab:
                if slab_reads_out.get(old, 0) > 0 or old in slab_read_since_bar:
                    err(i, "overwrites slot %s (slab %s) whose reads are not fenced by a barrier" % (slot, old))
                if slab_parts_out.get(old, 0) > 0:
                    err(i, "slot %s still has DMA of %s in flight" % (slot, old))
            slot_owner[slot] = slab
            slab_parts_out[slab] = slab_parts_out.get(slab, 0) + 1
            slab_landed_bar[slab] = False
        for slot in ann.get("alias", ()):
            old = slot_owner.get(slot)
            if old is not None:
                if slab_reads_out.get(old, 0) > 0 or old in slab_read_since_bar or slab_parts_out.get(old, 0) > 0:
                    err(i, "overwrites aliased slot %s (slab %s) still in use" % (slot, old))
                slot_owner[slot] = ("dead", slot)
        if "r" in ann:
            slot, slab = ann["r"]
            if slab is not None:
                if slot_owner.get(slot) != slab:
                    err(i, "reads slot %s expecting %s but owner is %s" % (slot, slab, slot_owner.get(slot)))
                elif slab_issued.get(slab) != slab_nparts.get(slab):
                    err(i, "reads slab %s with %s/%s parts issued" % (slab, slab_issued.get(slab), slab_nparts.get(slab)))
                elif not slab_landed_bar.get(slab) and not ann.get("private"):
                    err(i, "reads slab %s not landed+barrier" % (slab,))
                elif ann.get("private") and slab_parts_out.get(slab, 0) > 0:
                    err(i, "reads private slab %s with DMA in flight" % (slab,))
                slab_reads_out[slab] = slab_reads_out.get(slab, 0) + 1
                if not ann.get("private"):
                    slab_read_since_bar.add(slab)
        if p.cls == "mfma":
            for r in p.d:
                last[("mfma_w", r)] = ws
                last[("mfma_p", r)] = p.passes
                last[("mfma_dset", r)] = tuple(p.d)
            for r in p.c:
                last[("mfma_c", r)] = ws
                last[("mfma_cp", r)] = p.passes
        elif isv:
            for r in p.d:
                last[("valu_w", r)] = ws
                last.pop(("mfma_w", r), None)
                if p.op in _TRANS:
                    last[("trans_w", r)] = ws
                else:
                    last.pop(("trans_w", r), None)
        elif p.cls == "salu":
            for r in p.d:
                last[("salu_w", r)] = ws
                last.pop(("valu_w", r), None)
        if p.cls == "vmem":
            vmq.append((p.d, ann))
            for r in p.d:
                pend[r] = "vm@%d" % i
                last.pop(("mfma_w", r), None)
            if getattr(p, "store", None) and p.wide:
                for r in p.store:
                    last[("store_d", r)] = ws
            if len(vmq) > 63:
                err(i, "more than 63 vmem ops outstanding")
        elif p.cls == "ds":
            lgq.append((p.d, ann))
            for r in p.d:
                pend[r] = "ds@%d" % i
                last.pop(("mfma_w", r), None)
        elif p.cls == "smem":
            smem_pending.append(p.d)
            for r in p.d:
                pend[r] = "sm@%d" % i
        if p.op == "s_waitcnt":
            txt = " ".join(p.mods)
            m = re.search(r"vmcnt\((\d+)\)", txt)
            if m:
                n = int(m.group(1))
                while len(vmq) > n:
                    d, an = vmq.pop(0)
                    for r in d:
                        pend.pop(r, None)
                    if "w" in an:
                        slab_parts_out[an["w"][1]] -= 1
            m = re.search(r"lgkmcnt\((\d+)\)", txt)
            if m:
                n = int(m.group(1))
                if n > 15:
                    err(i, "lgkmcnt > 15")
                if smem_pending and n > 0:
                    err(i, "counted lgkmcnt with SMEM outstanding")
                if n == 0:
                    for d in smem_pending:
                        for r in d:
                            pend.pop(r, None)
                    smem_pending = []
                while len(lgq) > n:
                    d, an = lgq.pop(0)
                    for r in d:
                        pend.pop(r, None)
                    if "r" in an and an["r"][1] is not None:
                        slab_reads_out[an["r"][1]] -= 1
                    if "w" in an:
                        slab_parts_out[an["w"][1]] -= 1
        if p.op == "s_barrier":
            for slab, n in slab_parts_out.items():
                if n == 0:
                    slab_landed_bar[slab] = True
            slab_read_since_bar = set(sl for sl in slab_read_since_bar if slab_reads_out.get(sl, 0) > 0)
        if p.op == "s_nop":
            ws += int(p.ops[0], 0) + 1
        else:
            ws += 1
    if verbose:
        for e in errs[:40]:
            print("CHECK:", e)
        print("check %s: %d instrs, %d errors" % (name, len(trace), len(errs)))
    return errs


STAMP_OFF = 200 << 20


class Stamps:
    def __init__(self, on, sb=80, st=76):
        self.on, self.sb, self.st = on, sb, st

    def init(self, c):
        if not self.on:
            return
        for k in range(16):
            c.I("s_mov_b32 %s, 0" % s(self.sb + k))

    def mark(self, c, k):
        if not self.on:
            return
        c.I("s_waitcnt lgkmcnt(0)")
        c.I("s_memtime %s" % s(self.st, 2))
        c.I("s_memrealtime %s" % s(self.st + 2, 2))
        c.I("s_waitcnt lgkmcnt(0)")
        c.I("s_mov_b32 %s, %s" % (s(self.sb + k), s(self.st)))
        c.I("s_mov_b32 %s, %s" % (s(self.sb + 8 + k), s(self.st + 2)))

    def dump(self, c, sW, vt, region=0, wg="s2"):
        if not self.on:
            return
        q = 96
        c.I("s_load_dwordx2 %s, s[0:1], 96" % s(self.st + 2, 2))
        c.I("s_waitcnt lgkmcnt(0)")
        c.I("s_add_u32 %s, %s, 0x%x" % (s(q), s(self.st + 2), STAMP_OFF + region * (1 << 17)))
        c.I("s_addc_u32 %s, %s, 0" % (s(q + 1), s(self.st + 3)))
        c.I("s_and_b32 %s, %s, 0xffff" % (s(q + 1), s(q + 1)))
        c.I("s_mov_b32 %s, 0x20000" % s(q + 2))
        c.I("s_mov_b32 %s, 0x20000" % s(q + 3))
        c.I("s_lshl_b32 %s, %s, 3" % (s(self.st), wg))
        c.I("s_add_u32 %s, %s, %s" % (s(self.st), s(self.st), s(sW)))
        c.I("s_lshl_b32 %s, %s, 6" % (s(self.st), s(self.st)))
        c.I("v_mov_b32 v239, 0")
        for k in range(16):
            c.I("v_mov_b32 %s, %s" % (v(240 + k), s(self.sb + k)))
        for k in range(4):
            c.I("buffer_store_dwordx4 %s, v239, %s, %s offen offset:%d" % (v(240 + 4 * k, 4), s(q, 4), s(self.st), 16 * k))


def cost_of(t):
    op = t.split()[0]
    if op in _TRANS:
        return 8
    if op.startswith("buffer_load") and " lds" in t:
        return COST_DMA
    return 4


COST_DMA = 8


def schedule(n, budget, streams, fixed=None, reserve=None):
    gaps = {i: [] for i in range(n)}
    load = [0] * n
    for g, cst in (reserve or {}).items():
        load[g] += cst
    if fixed:
        for g, lst in fixed.items():
            for x in lst:
                gaps[g].append(x)
                load[g] += cost_of(x.t if isinstance(x, Ins) else x)
    items = []
    for si, st in enumerate(streams):
        for k, (ins, ideal, lo, hi) in enumerate(st):
            items.append((ideal, si, k, ins, lo, hi))
    items.sort(key=lambda z: (z[0], z[1], z[2]))
    lastg = [0] * len(streams)
    over = 0
    for ideal, si, k, ins, lo, hi in items:
        cst = cost_of(ins.t if isinstance(ins, Ins) else ins)
        lo2 = max(lo, lastg[si])
        hi2 = max(min(hi, n - 1), lo2)
        cand = sorted(range(lo2, hi2 + 1), key=lambda g: (abs(g - ideal), g))
        best = None
        for g in cand:
            if load[g] + cst <= budget:
                best = g
                break
        if best is None:
            best = min(cand, key=lambda g: (load[g], abs(g - ideal)))
            over += load[best] + cst - max(budget, load[best])
        gaps[best].append(ins)
        load[best] += cst
        lastg[si] = best
    return gaps, load


def autowait(code, vm0=0, age=20):
    out = Code()
    vmq, lgq = [], []
    n = 0
    for ins in code:
        t = ins.t
        if t.endswith(":") or t.startswith(";") or t.startswith("."):
            out.append(ins)
            continue
        if t == "@need":
            idx = -1
            for k, e in enumerate(vmq):
                if e[1] in ins.ann["need"]:
                    idx = k
            extra = " lgkmcnt(0)" if ins.ann.get("lgkm0") else ""
            if idx >= 0:
                N = len(vmq) - 1 - idx
                assert N <= 63
                out.I("s_waitcnt vmcnt(%d)%s" % (N, extra))
                vmq = vmq[idx + 1:]
            elif extra:
                out.I("s_waitcnt lgkmcnt(0)")
            if extra:
                lgq = []
            continue
        p = parse(t)
        touch = set(p.s + p.d)
        parts = []
        for q, nm, cap in ((vmq, "vmcnt", 63), (lgq, "lgkmcnt", 15)):
            idx = -1
            for k, e in enumerate(q):
                if e[0] & touch:
                    idx = k
            if idx >= 0:
                if nm == "lgkmcnt":
                    while idx + 1 < len(q) and n - q[idx + 1][2] >= age:
                        idx += 1
                N = min(cap, len(q) - 1 - idx)
                parts.append("%s(%d)" % (nm, N))
                del q[:len(q) - N]
        if parts:
            out.I("s_waitcnt " + " ".join(parts))
        if p.op == "s_waitcnt":
            txt = " ".join(p.mods)
            m = re.search(r"vmcnt\((\d+)\)", txt)
            if m:
                k = int(m.group(1))
                del vmq[:max(0, len(vmq) - k)]
            m = re.search(r"lgkmcnt\((\d+)\)", txt)
            if m:
                k = int(m.group(1))
                del lgq[:max(0, len(lgq) - k)]
        if p.cls == "vmem":
            vmq.append((set(p.d), (ins.ann or {}).get("w", (None, None))[1], n))
        elif p.cls == "ds":
            lgq.append((set(p.d), None, n))
        out.append(ins)
        n += 1
    return out
```

```python
import sys, importlib
from asmlib import *

HEADER = open("sequential_preLN__compressed_kv_cla__glu_gated_bilinear__prompt.s.ref").read().split("; Override launch")[0]


def build(kernels, launches=None):
    out = [HEADER.rstrip()]
    for k in (launches or kernels):
        out.append("; @launch kernel=%s grid=(%d,1,1) block=(%d,1,1) lds=%d" % (k["name"], k["grid"], k["block"], k["lds"]))
    out.append('.amdgcn_target "amdgcn-amd-amdhsa--gfx950"')
    out.append(".text")
    for k in kernels:
        out.append(".globl %s" % k["name"])
        out.append(".p2align 8")
        out.append(".type %s,@function" % k["name"])
        out.append("%s:" % k["name"])
        out.append(k["code"].text())
    out.append('.section .rodata,"a"')
    for k in kernels:
        out.append(".p2align 6")
        out.append(".amdhsa_kernel %s" % k["name"])
        out.append("  .amdhsa_next_free_vgpr %d" % k["vgpr"])
        out.append("  .amdhsa_next_free_sgpr %d" % k["sgpr"])
        out.append("  .amdhsa_accum_offset %d" % k["accum"])
        out.append("  .amdhsa_group_segment_fixed_size 0")
        out.append("  .amdhsa_kernarg_size 104")
        out.append("  .amdhsa_user_sgpr_count 2")
        out.append("  .amdhsa_user_sgpr_kernarg_segment_ptr 1")
        out.append("  .amdhsa_system_sgpr_workgroup_id_x 1")
        out.append("  .amdhsa_float_denorm_mode_32 3")
        out.append(".end_amdhsa_kernel")
    return "\n".join(out) + "\n"


if __name__ == "__main__":
    mods = [m for m in sys.argv[2:] if "=" not in m]
    opt = {m.split("=")[0]: eval(m.split("=")[1]) for m in sys.argv[2:] if "=" in m}
    ks = [importlib.import_module(m).gen(**opt) for m in mods]
    open(sys.argv[1], "w").write(build(ks))
    print("wrote", sys.argv[1])
```

```python
import re


class Ins:
    __slots__ = ("t", "ann")

    def __init__(self, t, ann=None):
        self.t = t
        self.ann = ann

    def __repr__(self):
        return self.t


def R(kind, base, n=1):
    return "%s%d" % (kind, base) if n == 1 else "%s[%d:%d]" % (kind, base, base + n - 1)


def v(b, n=1):
    return R("v", b, n)


def a(b, n=1):
    return R("a", b, n)


def s(b, n=1):
    return R("s", b, n)


class Alloc:
    def __init__(self, start, limit):
        self.p = start
        self.limit = limit
        self.names = {}

    def __call__(self, n=1, align=1, name=None):
        self.p = (self.p + align - 1) // align * align
        b = self.p
        self.p += n
        assert self.p <= self.limit, "out of registers"
        if name:
            self.names[name] = (b, n)
        return b


class Code(list):
    def I(self, t, ann=None):
        self.append(Ins(t, ann))
        return self

    def L(self, name):
        self.append(Ins(name + ":"))

    def C(self, text):
        self.append(Ins("; " + text))

    def text(self):
        out = []
        for i in self:
            if i.t.endswith(":") or i.t.startswith(";") or i.t.startswith("."):
                out.append(i.t)
            else:
                out.append(" " + i.t)
        return "\n".join(out)


def weave(code, mains, gaps, pre=None):
    for i, m in enumerate(mains):
        if pre and i in pre:
            for g in pre[i]:
                code.append(g if isinstance(g, Ins) else Ins(g))
        code.append(m if isinstance(m, Ins) else Ins(m))
        for g in gaps.get(i, []):
            code.append(g if isinstance(g, Ins) else Ins(g))


def mfma(d, A, B, c):
    return "v_mfma_f32_32x32x16_bf16 %s, %s, %s, %s" % (d, A, B, c)


_REG = re.compile(r"^(-|abs\(|\|)?([vas])(\d+)\)?\|?$|^(-)?([vas])\[(\d+):(\d+)\]$")
_TRANS = ("v_exp_f32", "v_log_f32", "v_rcp_f32", "v_rsq_f32", "v_sqrt_f32", "v_sin_f32", "v_cos_f32",
          "v_rcp_iflag_f32")


def regs_of(tok):
    tok = tok.strip()
    if tok in ("vcc",):
        return [("s", "vcc")]
    if tok in ("vcc_lo", "vcc_hi"):
        return [("s", "vcc")]
    if tok == "exec":
        return [("s", "exec")]
    if tok == "m0":
        return [("s", "m0")]
    m = _REG.match(tok)
    if not m:
        return []
    if m.group(2):
        return [(m.group(2), int(m.group(3)))]
    return [(m.group(5), i) for i in range(int(m.group(6)), int(m.group(7)) + 1)]


def split_ops(rest):
    ops, depth, cur = [], 0, ""
    for ch in rest:
        if ch in "[(":
            depth += 1
        if ch in "])":
            depth -= 1
        if ch == "," and depth == 0:
            ops.append(cur.strip())
            cur = ""
        else:
            cur += ch
    if cur.strip():
        ops.append(cur.strip())
    mods = []
    if ops:
        parts = ops[-1].split()
        ops[-1] = parts[0]
        mods = parts[1:]
    return ops, mods


class P:
    pass


def parse(t):
    p = P()
    t = t.split(";")[0].strip()
    sp = t.split(None, 1)
    p.op = sp[0]
    for suf in ("_e32", "_e64"):
        if p.op.endswith(suf):
            p.op = p.op[: -len(suf)]
    rest = sp[1] if len(sp) > 1 else ""
    p.ops, p.mods = split_ops(rest) if p.op not in ("s_waitcnt",) else ([], rest.split())
    op = p.op
    o = p.ops
    rg = lambda k: regs_of(o[k]) if k < len(o) else []
    p.d, p.s = [], []
    p.cls = "other"
    p.ab, p.c = [], []
    if op.startswith("v_mfma"):
        p.cls = "mfma"
        p.d = rg(0)
        p.ab = rg(1) + rg(2)
        p.c = rg(3)
        p.s = p.ab + p.c
        p.passes = 8 if "32x32" in op else 4
    elif op.startswith("ds_read") or op.startswith("ds_bpermute") or op.startswith("ds_swizzle"):
        p.cls = "ds"
        p.d = rg(0)
        p.s = sum((rg(k) for k in range(1, len(o))), [])
    elif op.startswith("ds_write"):
        p.cls = "ds"
        p.s = sum((rg(k) for k in range(len(o))), [])
    elif op.startswith("buffer_load") or op.startswith("global_load"):
        p.cls = "vmem"
        if "lds" in p.mods or "_lds_" in op:
            p.s = sum((rg(k) for k in range(len(o))), []) + [("s", "m0")]
            p.dma = True
        else:
            p.d = rg(0)
            p.s = sum((rg(k) for k in range(1, len(o))), [])
    elif op.startswith("buffer_store") or op.startswith("global_store"):
        p.cls = "vmem"
        p.s = sum((rg(k) for k in range(len(o))), [])
        p.store = rg(0) if op.startswith("buffer") else rg(1)
        p.wide = "x3" in op or "x4" in op
    elif op.startswith("buffer_atomic") or op.startswith("global_atomic"):
        p.cls = "vmem"
        p.s = sum((rg(k) for k in range(len(o))), [])
        if "sc0" in p.mods:
            p.d = rg(0)
    elif op in ("buffer_wbl2", "buffer_inv"):
        p.cls = "vmem"
    elif op.startswith("s_load") or op in ("s_memtime", "s_memrealtime"):
        p.cls = "smem"
        p.d = rg(0)
        p.s = rg(1) + rg(2)
    elif op.startswith("v_"):
        p.cls = "valu"
        p.d = rg(0)
        p.s = sum((rg(k) for k in range(1, len(o))), [])
        if op.startswith("v_cmpx"):
            p.d = p.d + [("s", "exec")]
        if op.startswith(("v_fmac", "v_dot2c", "v_mac", "v_pk_fmac")):
            p.s += p.d
        if op.startswith("v_permlane") and "swap" in op:
            p.d = rg(0) + rg(1)
            p.s = rg(0) + rg(1)
        if op.startswith(("v_add_co", "v_sub_co", "v_addc_co", "v_subb_co", "v_div_scale")):
            p.d = rg(0) + rg(1)
            p.s = sum((rg(k) for k in range(2, len(o))), [])
        if op.startswith("v_writelane") or "dpp" in op or "sdwa" in op:
            p.s += [r for r in p.d if r[0] == "v"]
    elif op.startswith("s_"):
        p.cls = "salu"
        if op.startswith(("s_cmp", "s_cbranch", "s_branch", "s_waitcnt", "s_barrier", "s_nop", "s_setprio",
                          "s_endpgm", "s_sleep", "s_bitcmp")):
            p.s = sum((rg(k) for k in range(len(o))), [])
            if op in ("s_cbranch_vccz", "s_cbranch_vccnz"):
                p.s = [("s", "vcc")]
        else:
            p.d = rg(0)
            p.s = sum((rg(k) for k in range(1, len(o))), [])
            if "saveexec" in op:
                p.d += [("s", "exec")]
                p.s += [("s", "exec")]
            if op.startswith(("s_addk", "s_mulk", "s_cmov")):
                p.s += p.d
    return p


def check(trace, name="", verbose=True):
    errs = []
    ws = 0
    last = {}
    vmq, lgq = [], []
    smem_pending = []
    pend = {}
    slot_owner = {}
    slab_landed_bar = {}
    slab_parts_out = {}
    slab_issued, slab_nparts = {}, {}
    slab_reads_out = {}
    slab_read_since_bar = set()

    def err(i, msg):
        errs.append("%s[%d] %s :: %s" % (name, i, trace[i].t, msg))

    def need(i, key, n, msg):
        if key in last and ws - last[key] - 1 < n:
            err(i, "%s: %d wait states, need %d" % (msg, ws - last[key] - 1, n))

    for i, ins in enumerate(trace):
        t = ins.t
        if t.endswith(":") or t.startswith(";") or t.startswith("."):
            continue
        p = parse(t)
        if (ins.ann or {}).get("nodst"):
            p.d = []
        for r in p.s + p.d:
            if r in pend:
                err(i, "touches %s%s with load pending (%s)" % (r[0], r[1], pend[r]))
        isv = p.cls == "valu"
        if p.cls == "mfma":
            for r in p.s:
                need(i, ("valu_w", r), 2, "VALU write -> MFMA read %s%s" % r)
            for r in p.ab:
                if ("mfma_w", r) in last:
                    need(i, ("mfma_w", r), last[("mfma_p", r)] + 4, "MFMA D -> MFMA A/B %s%s" % r)
            if p.c:
                for r in p.c:
                    if ("mfma_w", r) in last and last.get(("mfma_dset", r)) != tuple(p.c):
                        need(i, ("mfma_w", r), last[("mfma_p", r)] + 2, "MFMA D -> overlapping C %s%s" % r)
            if tuple(p.d) != tuple(p.c):
                for r in p.d:
                    if ("mfma_w", r) in last and last.get(("mfma_dset", r)) != tuple(p.d):
                        need(i, ("mfma_w", r), last[("mfma_p", r)] + 2, "MFMA D -> MFMA D WAW %s%s" % r)
            need(i, ("valu_w", ("s", "exec")), 4, "VALU exec write -> MFMA")
        if isv or p.cls in ("vmem", "ds"):
            for r in p.s + p.d:
                if ("mfma_w", r) in last:
                    need(i, ("mfma_w", r), last[("mfma_p", r)] + 4, "MFMA D -> VALU/mem %s%s" % r)
        if isv:
            for r in p.d:
                if ("mfma_c", r) in last:
                    need(i, ("mfma_c", r), last[("mfma_cp", r)] - 1, "MFMA C read -> VALU write %s%s" % r)
                need(i, ("store_d", r), 2, "wide store data -> VALU overwrite %s%s" % r)
            if p.op not in _TRANS:
                for r in p.s:
                    need(i, ("trans_w", r), 1, "trans -> VALU %s%s" % r)
            for r in p.s:
                if r[0] == "s":
                    n = 4 if p.op.startswith(("v_readlane", "v_writelane")) else 2
                    if p.op == "v_div_fmas_f32":
                        n = 4
                    need(i, ("valu_w", r), n, "VALU sgpr write -> VALU read %s" % (r[1],))
            if p.op.startswith("v_cndmask") and len(p.ops) == 4:
                pass
            if p.op.startswith(("v_readlane", "v_readfirstlane")):
                for r in p.s:
                    if r[0] == "v":
                        need(i, ("valu_w", r), 1, "VALU write -> readlane")
                need(i, ("valu_w", ("s", "exec")), 4, "exec write -> readlane")
            if p.op.startswith("v_permlane") or "dpp" in p.op:
                for r in p.s:
                    need(i, ("valu_w", r), 2, "VALU write -> permlane/dpp %s%s" % r)
        if p.cls in ("ds", "vmem") and p.d:
            for r in p.d:
                if ("mfma_c", r) in last:
                    need(i, ("mfma_c", r), last[("mfma_cp", r)] - 1, "MFMA C read -> load write")
                need(i, ("store_d", r), 1, "wide store data -> overwrite")
        if p.cls == "vmem":
            for r in p.s:
                if r[0] == "s":
                    need(i, ("valu_w", r), 5, "VALU sgpr write -> VMEM read")
            if getattr(p, "dma", False):
                need(i, ("salu_w", ("s", "m0")), 1, "m0 write -> LDS DMA")
        if p.cls == "salu":
            for r in p.s:
                if r == ("s", "vcc") and p.op.startswith("s_cbranch"):
                    need(i, ("valu_w", r), 0, "")
        ann = ins.ann or {}
        if "w" in ann:
            slot, slab = ann["w"][:2]
            slab_issued[slab] = slab_issued.get(slab, 0) + 1
            slab_nparts[slab] = ann["w"][2]
            old = slot_owner.get(slot)
            if old is not None and old != slab:
                if slab_reads_out.get(old, 0) > 0 or old in slab_read_since_bar:
                    err(i, "overwrites slot %s (slab %s) whose reads are not fenced by a barrier" % (slot, old))
                if slab_parts_out.get(old, 0) > 0:
                    err(i, "slot %s still has DMA of %s in flight" % (slot, old))
            slot_owner[slot] = slab
            slab_parts_out[slab] = slab_parts_out.get(slab, 0) + 1
            slab_landed_bar[slab] = False
        for slot in ann.get("alias", ()):
            old = slot_owner.get(slot)
            if old is not None:
                if slab_reads_out.get(old, 0) > 0 or old in slab_read_since_bar or slab_parts_out.get(old, 0) > 0:
                    err(i, "overwrites aliased slot %s (slab %s) still in use" % (slot, old))
                slot_owner[slot] = ("dead", slot)
        if "r" in ann:
            slot, slab = ann["r"]
            if slab is not None:
                if slot_owner.get(slot) != slab:
                    err(i, "reads slot %s expecting %s but owner is %s" % (slot, slab, slot_owner.get(slot)))
                elif slab_issued.get(slab) != slab_nparts.get(slab):
                    err(i, "reads slab %s with %s/%s parts issued" % (slab, slab_issued.get(slab), slab_nparts.get(slab)))
                elif not slab_landed_bar.get(slab) and not ann.get("private"):
                    err(i, "reads slab %s not landed+barrier" % (slab,))
                elif ann.get("private") and slab_parts_out.get(slab, 0) > 0:
                    err(i, "reads private slab %s with DMA in flight" % (slab,))
                slab_reads_out[slab] = slab_reads_out.get(slab, 0) + 1
                if not ann.get("private"):
                    slab_read_since_bar.add(slab)
        if p.cls == "mfma":
            for r in p.d:
                last[("mfma_w", r)] = ws
                last[("mfma_p", r)] = p.passes
                last[("mfma_dset", r)] = tuple(p.d)
            for r in p.c:
                last[("mfma_c", r)] = ws
                last[("mfma_cp", r)] = p.passes
        elif isv:
            for r in p.d:
                last[("valu_w", r)] = ws
                last.pop(("mfma_w", r), None)
                if p.op in _TRANS:
                    last[("trans_w", r)] = ws
                else:
                    last.pop(("trans_w", r), None)
        elif p.cls == "salu":
            for r in p.d:
                last[("salu_w", r)] = ws
                last.pop(("valu_w", r), None)
        if p.cls == "vmem":
            vmq.append((p.d, ann))
            for r in p.d:
                pend[r] = "vm@%d" % i
                last.pop(("mfma_w", r), None)
            if getattr(p, "store", None) and p.wide:
                for r in p.store:
                    last[("store_d", r)] = ws
            if len(vmq) > 63:
                err(i, "more than 63 vmem ops outstanding")
        elif p.cls == "ds":
            lgq.append((p.d, ann))
            for r in p.d:
                pend[r] = "ds@%d" % i
                last.pop(("mfma_w", r), None)
        elif p.cls == "smem":
            smem_pending.append(p.d)
            for r in p.d:
                pend[r] = "sm@%d" % i
        if p.op == "s_waitcnt":
            txt = " ".join(p.mods)
            m = re.search(r"vmcnt\((\d+)\)", txt)
            if m:
                n = int(m.group(1))
                while len(vmq) > n:
                    d, an = vmq.pop(0)
                    for r in d:
                        pend.pop(r, None)
                    if "w" in an:
                        slab_parts_out[an["w"][1]] -= 1
            m = re.search(r"lgkmcnt\((\d+)\)", txt)
            if m:
                n = int(m.group(1))
                if n > 15:
                    err(i, "lgkmcnt > 15")
                if smem_pending and n > 0:
                    err(i, "counted lgkmcnt with SMEM outstanding")
                if n == 0:
                    for d in smem_pending:
                        for r in d:
                            pend.pop(r, None)
                    smem_pending = []
                while len(lgq) > n:
                    d, an = lgq.pop(0)
                    for r in d:
                        pend.pop(r, None)
                    if "r" in an and an["r"][1] is not None:
                        slab_reads_out[an["r"][1]] -= 1
                    if "w" in an:
                        slab_parts_out[an["w"][1]] -= 1
        if p.op == "s_barrier":
            for slab, n in slab_parts_out.items():
                if n == 0:
                    slab_landed_bar[slab] = True
            slab_read_since_bar = set(sl for sl in slab_read_since_bar if slab_reads_out.get(sl, 0) > 0)
        if p.op == "s_nop":
            ws += int(p.ops[0], 0) + 1
        else:
            ws += 1
    if verbose:
        for e in errs[:40]:
            print("CHECK:", e)
        print("check %s: %d instrs, %d errors" % (name, len(trace), len(errs)))
    return errs


STAMP_OFF = 200 << 20


class Stamps:
    def __init__(self, on, names=None):
        self.on, self.sb, self.st, self.n = on, 76, 72, 12
        self.names = names

    def init(self, c):
        if not self.on:
            return
        for k in range(2 * self.n):
            c.I("s_mov_b32 %s, 0" % s(self.sb + k))

    def mark(self, c, k):
        if not self.on:
            return
        if self.names is not None:
            if k not in self.names:
                return
            k = self.names.index(k)
        c.I("s_waitcnt lgkmcnt(0)")
        c.I("s_memtime s[100:101]")
        c.I("s_waitcnt lgkmcnt(0)")
        c.I("s_mov_b32 %s, s100" % s(self.sb + k))
        c.I("s_memrealtime s[100:101]")
        c.I("s_waitcnt lgkmcnt(0)")
        c.I("s_mov_b32 %s, s100" % s(self.sb + self.n + k))

    def dump(self, c, sW, vt, region=0, wg="s2"):
        if not self.on:
            return
        q = 72
        c.I("s_load_dwordx2 s[72:73], s[0:1], 96")
        c.I("s_waitcnt lgkmcnt(0)")
        c.I("s_add_u32 %s, s72, 0x%x" % (s(q), STAMP_OFF + region * (1 << 17)))
        c.I("s_addc_u32 %s, s73, 0" % s(q + 1))
        c.I("s_and_b32 %s, %s, 0xffff" % (s(q + 1), s(q + 1)))
        c.I("s_mov_b32 %s, 0x20000" % s(q + 2))
        c.I("s_mov_b32 %s, 0x20000" % s(q + 3))
        c.I("s_lshl_b32 s70, %s, 2" % wg)
        c.I("s_add_u32 s70, s70, %s" % s(sW))
        c.I("s_lshl_b32 s70, s70, 7")
        c.I("v_mov_b32 v7, 0")
        for k in range(2 * self.n):
            c.I("v_mov_b32 %s, %s" % (v(8 + k), s(self.sb + k)))
        for k in range(self.n // 2):
            c.I("buffer_store_dwordx4 %s, v7, %s, s70 offen offset:%d" % (v(8 + 4 * k, 4), s(q, 4), 16 * k))


def cost_of(t):
    op = t.split()[0]
    if op in _TRANS:
        return 8
    if op.startswith("buffer_load") and " lds" in t:
        return COST_DMA
    return 4


COST_DMA = 8


def schedule(n, budget, streams, fixed=None, reserve=None):
    gaps = {i: [] for i in range(n)}
    load = [0] * n
    for g, cst in (reserve or {}).items():
        load[g] += cst
    if fixed:
        for g, lst in fixed.items():
            for x in lst:
                gaps[g].append(x)
                load[g] += cost_of(x.t if isinstance(x, Ins) else x)
    items = []
    for si, st in enumerate(streams):
        run = -1
        for k, (ins, ideal, lo, hi) in enumerate(st):
            run = max(run, ideal)
            items.append((run, si, k, ins, lo, hi))
    items.sort(key=lambda z: (z[0], z[1], z[2]))
    lastg = [0] * len(streams)
    over = 0
    for ideal, si, k, ins, lo, hi in items:
        cst = cost_of(ins.t if isinstance(ins, Ins) else ins)
        lo2 = max(lo, lastg[si])
        hi2 = max(min(hi, n - 1), lo2)
        cand = sorted(range(lo2, hi2 + 1), key=lambda g: (abs(g - ideal), g))
        best = None
        for g in cand:
            if load[g] + cst <= budget:
                best = g
                break
        if best is None:
            best = min(cand, key=lambda g: (load[g], abs(g - ideal)))
            over += load[best] + cst - max(budget, load[best])
        gaps[best].append(ins)
        load[best] += cst
        lastg[si] = best
    return gaps, load


def autowait(code, vm0=0, age=20):
    out = Code()
    vmq, lgq = [], []
    n = 0
    for ins in code:
        t = ins.t
        if t.endswith(":") or t.startswith(";") or t.startswith("."):
            out.append(ins)
            continue
        if t == "@need":
            idx = -1
            for k, e in enumerate(vmq):
                if e[1] in ins.ann["need"]:
                    idx = k
            extra = " lgkmcnt(0)" if ins.ann.get("lgkm0") else ""
            if idx >= 0:
                N = len(vmq) - 1 - idx
                assert N <= 63
                out.I("s_waitcnt vmcnt(%d)%s" % (N, extra))
                vmq = vmq[idx + 1:]
            elif extra:
                out.I("s_waitcnt lgkmcnt(0)")
            if extra:
                lgq = []
            continue
        p = parse(t)
        touch = set(p.s + ([] if (ins.ann or {}).get("nodst") else p.d))
        parts = []
        for q, nm, cap in ((vmq, "vmcnt", 63), (lgq, "lgkmcnt", 15)):
            idx = -1
            for k, e in enumerate(q):
                if e[0] & touch:
                    idx = k
            if idx >= 0:
                if nm == "lgkmcnt":
                    while idx + 1 < len(q) and n - q[idx + 1][2] >= age:
                        idx += 1
                N = min(cap, len(q) - 1 - idx)
                parts.append("%s(%d)" % (nm, N))
                del q[:len(q) - N]
        if parts:
            out.I("s_waitcnt " + " ".join(parts))
        if p.op == "s_waitcnt":
            txt = " ".join(p.mods)
            m = re.search(r"vmcnt\((\d+)\)", txt)
            if m:
                k = int(m.group(1))
                del vmq[:max(0, len(vmq) - k)]
            m = re.search(r"lgkmcnt\((\d+)\)", txt)
            if m:
                k = int(m.group(1))
                del lgq[:max(0, len(lgq) - k)]
        if p.cls == "vmem" and len(vmq) >= 62:
            out.I("s_waitcnt vmcnt(61)")
            del vmq[:len(vmq) - 61]
        if p.cls == "vmem":
            an = ins.ann or {}
            vmq.append((set() if an.get("nodst") else set(p.d), an.get("tag") or an.get("w", (None, None))[1], n))
        elif p.cls == "ds":
            lgq.append((set(p.d), None, n))
        out.append(ins)
        n += 1
    return out
```

```python
from asmlib import *
from layout import *

sW, sWS, sW4k, sT, sT2, sT3 = 3, 4, 8, 9, 10, 11
SPIN = 0x20000
SLEEP = [0]


def srd_fin(c, d, size):
    c.I("s_and_b32 %s, %s, 0xffff" % (s(d + 1), s(d + 1)))
    c.I("s_mov_b32 %s, 0x%x" % (s(d + 2), size))
    c.I("s_mov_b32 %s, 0x20000" % s(d + 3))


def preamble(nwg, endlabel):
    c = Code()
    c.I("s_cmp_ge_u32 s2, %d" % nwg)
    c.I("s_cbranch_scc1 %s" % endlabel)
    c.I("s_load_dwordx2 %s, s[0:1], 96" % s(sWS, 2))
    c.I("v_lshrrev_b32 v1, 6, v0")
    c.I("s_nop 0")
    c.I("v_readfirstlane_b32 %s, v1" % s(sW))
    c.I("s_waitcnt lgkmcnt(0)")
    srd_fin(c, sWS, WS_END)
    c.I("s_lshl_b32 %s, %s, 12" % (s(sW4k), s(sW)))
    return c


def poll_loop(c, lab, vVal, vOff, sOff, sCnt):
    c.I("s_mov_b32 %s, 0x%x" % (s(sCnt), SPIN))
    c.L(lab + "_poll")
    c.I("buffer_load_dword %s, %s, %s, %s offen sc1" % (v(vVal), v(vOff), s(sWS, 4), s(sOff)))
    c.I("s_waitcnt vmcnt(0)")
    c.I("v_cmp_ne_u32 vcc, 1, %s" % v(vVal))
    c.I("s_cbranch_vccz %s_done" % lab)
    if SLEEP[0]:
        c.I("s_sleep %d" % SLEEP[0])
    c.I("s_sub_u32 %s, %s, 1" % (s(sCnt), s(sCnt)))
    c.I("s_cbranch_scc0 %s_poll" % lab)
    c.L(lab + "_done")


sFast = 71
OOL = Code()


def signal(lab, vOne, vZero, sOff):
    st = "buffer_store_dword %s, %s, %s, %s offen" % (v(vOne), v(vZero), s(sWS, 4), s(sOff))
    if not any(x.t == lab + "_slow:" for x in OOL):
        blk = Code()
        blk.L(lab + "_slow")
        blk.I(st + " sc1")
        blk.I("s_branch %s_back" % lab)
        OOL[0:0] = blk
    return ["s_cmp_eq_u32 %s, 0" % s(sFast), "s_cbranch_scc1 %s_slow" % lab, st, lab + "_back:"]


def acquire(lab):
    if not any(x.t == lab + "_acq:" for x in OOL):
        OOL.L(lab + "_acq")
        OOL.I("buffer_inv sc1")
        OOL.I("s_waitcnt vmcnt(0)")
        OOL.I("s_branch %s_acqb" % lab)
    return ["s_cmp_eq_u32 %s, 0" % s(sFast), "s_cbranch_scc1 %s_acq" % lab, lab + "_acqb:"]
```

```python
WS_KF = 0
import os
US = 16384 + int(os.environ.get('UPAD', 0))
WS_VF = 18 << 20
WS_QF = 36 << 20
WS_PO = 44 << 20
WS_PART = 74 << 20
WS_STAT = 82 << 20
WS_FLAG = 83 << 20
WS_MID = 84 << 20
WS_XN = 92 << 20
WS_HN = 94 << 20
WS_H = 96 << 20
WS_END = 98 << 20
MID_TS = 57344
FG_KV, FG_QX, FG_PT, FG_PO, FG_HN, FG_MID, FG_N = 0, 16, 144, 272, 288, 304, 320
```

```python
from asmlib import *
from layout import *
from common import *
import proj
from proj import put, M16


class R1:
    V = Alloc(1, 256)
    vL = V(1)
    vST = V(1)
    vPoll = V(1)
    vX = V(64, 4)
    vY = V(64, 4)
    vOA = V(8, 4)
    vOB = V(4)
    vRA = V(2)
    vRB = V(2)
    vT = V(8, 4)
    vDum = V(4, 4)
    vE = V(8, 4)
    vXr = V(56, 4)
    vWr = V(32, 4)
    vQ2 = 192


def gen(ST, opt, att):
    r = R1
    vL, vST, vX, vY, vOA, vOB, vRA, vRB, vT, vDum, vQ2, vPoll = r.vL, r.vST, r.vX, r.vY, r.vOA, r.vOB, r.vRA, r.vRB, r.vT, r.vDum, r.vQ2, r.vPoll
    vE, vXr, vWr, vP = r.vE, r.vXr, r.vWr, r.vOA
    sA, sB, sWq, sX, sDbg = 12, 16, 20, 24, 28
    sOffB, sCnt, sFlag, sSt, sInc0, sInc1, sQo, sXo = range(32, 40)
    sOffA, sAw, sBw, sRd, sHead, sTyp, sMt = range(41, 48)
    sEvt, sWid, sDelta = 68, 69, 70
    sA2, sOffA2, sAdv = 72, 24, 25
    sPf = 48

    EV = opt.get('ev', (11,))
    pro = Code()
    c = pro
    c.I("s_load_dwordx2 %s, s[0:1], 8" % s(sA, 2))
    c.I("s_load_dwordx2 s[72:73], s[0:1], 24")
    c.I("s_load_dwordx2 s[74:75], s[0:1], 32")
    c.I("s_load_dwordx2 %s, s[0:1], 0" % s(sX, 2))
    c.I("s_load_dwordx2 %s, s[0:1], 88" % s(sDbg, 2))
    touch = ((16, 448 * 8192, 4), (40, 4096 * 896, 4), (56, 448 * 3584, 2), (64, 448 * 3584, 2), (72, 1792 * 896, 2))
    for k, (arg, nb, per) in enumerate(touch):
        c.I("s_load_dwordx2 %s, s[0:1], %d" % (s(sPf + 4 * k, 2), arg))
    c.I("v_and_b32 %s, 63, v0" % v(vL))
    c.I("s_and_b32 %s, s2, 7" % s(sT))
    c.I("s_lshr_b32 %s, s2, 3" % s(sT2))
    c.I("s_lshl_b32 %s, %s, 1" % (s(sHead), s(sT)))
    c.I("s_and_b32 %s, %s, 1" % (s(sT), s(sT2)))
    c.I("s_add_u32 %s, %s, %s" % (s(sHead), s(sHead), s(sT)))
    c.I("s_bfe_u32 %s, %s, 0x10001" % (s(sTyp), s(sT2)))
    c.I("s_lshr_b32 %s, %s, 2" % (s(sMt), s(sT2)))
    t0, t1, t2, t3 = vT, vT + 1, vT + 2, vT + 3
    L = v(vL)
    c.I("v_lshrrev_b32 %s, 3, %s" % (v(t0), L))
    c.I("v_and_b32 %s, 7, %s" % (v(t1), L))
    c.I("v_mul_u32_u24 %s, 896, %s" % (v(vT + 4), v(t0)))
    c.I("v_lshl_add_u32 %s, %s, 4, %s" % (v(vT + 4), v(t1), v(vT + 4)))
    c.I("v_lshlrev_b32 %s, 4, %s" % (v(vT + 5), v(t0)))
    c.I("v_and_b32 %s, 3, %s" % (v(t3), L))
    c.I("v_lshl_add_u32 %s, %s, 8, %s" % (v(vT + 5), v(t3), v(vT + 5)))
    c.I("v_bfe_u32 %s, %s, 2, 1" % (v(t3), L))
    c.I("v_lshl_add_u32 %s, %s, 10, %s" % (v(vT + 5), v(t3), v(vT + 5)))
    c.I("s_lshl_b32 %s, %s, 6" % (s(sT), s(sW)))
    c.I("v_add_u32 %s, %s, %s" % (v(t0), s(sT), v(t0)))
    c.I("v_lshlrev_b32 %s, 11, %s" % (v(t0), v(t0)))
    c.I("v_lshrrev_b32 %s, 4, %s" % (v(t2), L))
    c.I("v_xor_b32 %s, %s, %s" % (v(t1), v(t1), v(t2)))
    c.I("v_lshl_add_u32 %s, %s, 4, %s" % (v(t0), v(t1), v(t0)))
    c.I("v_xor_b32 %s, 64, %s" % (v(t1), v(t0)))
    for i in range(8):
        c.I("v_add_u32 %s, 0x%x, %s" % (v(vOA + i), i * 16384 - (i & 3) * 1024, v(t1 if i & 1 else t0)))
    c.I("v_bfe_u32 %s, %s, 2, 2" % (v(t0), L))
    c.I("s_lshl_b32 %s, %s, 3" % (s(sT), s(sW)))
    c.I("v_add_u32 %s, %s, %s" % (v(t0), s(sT), v(t0)))
    c.I("v_lshlrev_b32 %s, 13, %s" % (v(t0), v(t0)))
    c.I("v_lshl_add_u32 %s, %s, 6, %s" % (v(t0), v(t2), v(t0)))
    c.I("v_and_b32 %s, 3, %s" % (v(t1), L))
    c.I("s_and_b32 %s, %s, 1" % (s(sT), s(sW)))
    c.I("s_lshl_b32 %s, %s, 1" % (s(sT), s(sT)))
    c.I("v_xor_b32 %s, %s, %s" % (v(t1), s(sT), v(t1)))
    c.I("v_lshl_add_u32 %s, %s, 4, %s" % (v(t0), v(t1), v(t0)))
    for j in range(4):
        g, q = j >> 1, j & 1
        c.I("v_add_u32 %s, 0x%x, %s" % (v(vOB + j), 4 * g * 8192 + 4 * q * 64 + 4096 - j * 1024, v(t0)))
    c.I("v_and_b32 %s, 15, %s" % (v(t0), L))
    c.I("v_lshlrev_b32 %s, 7, %s" % (v(t0), v(t0)))
    c.I("v_bfe_u32 %s, %s, 1, 3" % (v(t3), L))
    c.I("v_xor_b32 %s, %s, %s" % (v(t3), v(t3), v(t2)))
    c.I("v_lshl_add_u32 %s, %s, 4, %s" % (v(t0), v(t3), v(t0)))
    c.I("s_lshr_b32 %s, %s, 1" % (s(sT), s(sW)))
    c.I("s_lshl_b32 %s, %s, 14" % (s(sT), s(sT)))
    c.I("s_add_u32 %s, %s, 0x10000" % (s(sT), s(sT)))
    c.I("v_add_u32 %s, %s, %s" % (v(vRA), s(sT), v(t0)))
    c.I("v_xor_b32 %s, 64, %s" % (v(vRA + 1), v(vRA)))
    c.I("v_lshlrev_b32 %s, 12, %s" % (v(t0), v(t2)))
    c.I("v_bfe_u32 %s, %s, 2, 2" % (v(t3), L))
    c.I("v_lshl_add_u32 %s, %s, 6, %s" % (v(t0), v(t3), v(t0)))
    c.I("v_bfe_u32 %s, %s, 4, 1" % (v(t3), L))
    c.I("v_lshl_add_u32 %s, %s, 5, %s" % (v(t0), v(t3), v(t0)))
    c.I("v_and_b32 %s, 3, %s" % (v(t3), L))
    c.I("v_lshl_add_u32 %s, %s, 3, %s" % (v(t0), v(t3), v(t0)))
    c.I("s_and_b32 %s, %s, 1" % (s(sT), s(sW)))
    c.I("s_lshl_b32 %s, %s, 10" % (s(sT), s(sT)))
    c.I("v_add_u32 %s, %s, %s" % (v(vRB), s(sT), v(t0)))
    c.I("v_xor_b32 %s, 32, %s" % (v(vRB + 1), v(vRB)))
    c.I("v_lshlrev_b32 %s, 4, %s" % (v(vST), L))
    c.I("s_waitcnt lgkmcnt(0)")
    ST.init(c)
    ST.mark(c, 'start')
    srd_fin(c, sA, 2048 * 1024 * 2)
    c.I("s_cmp_eq_u32 %s, 0" % s(sTyp))
    c.I("s_cselect_b32 %s, s72, s74" % s(sB))
    c.I("s_cselect_b32 %s, s73, s75" % s(sB + 1))
    c.I("s_cselect_b32 %s, 0x2000, 0x1000" % s(sInc0) if False else "s_cselect_b32 %s, 2, 1" % s(sInc0))
    c.I("s_cselect_b32 %s, 2, 3" % s(sInc1))
    c.I("s_lshl_b32 %s, %s, 12" % (s(sInc0), s(sInc0)))
    c.I("s_lshl_b32 %s, %s, 12" % (s(sInc1), s(sInc1)))
    c.I("s_add_u32 %s, %s, %d" % (s(sInc1), s(sInc1), US - 16384))
    c.I("s_sub_u32 %s, %s, 4096" % (s(sB), s(sB)))
    c.I("s_subb_u32 %s, %s, 0" % (s(sB + 1), s(sB + 1)))
    srd_fin(c, sB, 1024 * 4096 * 2 + 4096)
    srd_fin(c, sX, 2048 * 896)
    c.I("s_sub_u32 %s, %s, 4096" % (s(sWq), s(sPf)))
    c.I("s_subb_u32 %s, %s, 0" % (s(sWq + 1), s(sPf + 1)))
    srd_fin(c, sWq, 448 * 8192 + 4096)
    srd_fin(c, sDbg, 256)
    c.I("s_lshl_b32 %s, %s, 19" % (s(sOffA), s(sMt)))
    c.I("s_lshl_b32 %s, %s, 9" % (s(sOffB), s(sHead)))
    c.I("s_mov_b32 %s, %s" % (s(sQo), s(sOffB)))
    c.I("s_lshl_b32 %s, %s, 13" % (s(sAw), s(sW)))
    c.I("s_add_u32 %s, %s, 0x10000" % (s(sAw), s(sAw)))
    c.I("s_mov_b32 %s, %s" % (s(sBw), s(sW4k)))

    def dmaA(n, half):
        if n >= 16:
            wn = 4 + 2 * (n - 16) + half
            ann = {"w": (("S", wn), ("W", wn), 4), "alias": [("A", n % 3)]}
        else:
            ann = {"w": (("A", n % 3), ("A", n), 8)}
        return [Ins("buffer_load_dwordx4 %s, %s, %s offen offset:%d lds" % (v(vOA + 4 * half + i), s(sA2 if half else sA, 4),
                                                                            s(sOffA2 if half else sOffA), 1024 * i), ann) for i in range(4)]

    def dmaB(n):
        if n >= 32:
            ann = {"w": (("S", n % 4), ("W", n - 32), 4), "alias": [("B", n % 4)]}
        else:
            ann = {"w": (("B", n % 4), ("B", n), 4)}
        return [Ins("buffer_load_dwordx4 %s, %s, %s offen offset:%d lds" % (v(vOB + j), s(sB, 4), s(sOffB), 1024 * j), ann) for j in range(4)]

    def advB():
        return ["s_add_u32 %s, %s, 0x4000" % (s(sBw), s(sBw)),
                "s_and_b32 %s, %s, 0xffff" % (s(sBw), s(sBw)),
                "s_add_u32 %s, %s, 0x40000" % (s(sOffB), s(sOffB))]

    def advA():
        return ["s_add_u32 %s, %s, 0x8000" % (s(sAw), s(sAw)),
                "s_cmp_ge_u32 %s, 0x28000" % s(sAw),
                "s_cselect_b32 %s, 0x18000, 0" % s(sT),
                "s_sub_u32 %s, %s, %s" % (s(sAw), s(sAw), s(sT)),
                "s_add_u32 %s, %s, %s" % (s(sOffA), s(sOffA), s(sAdv)),
                "s_add_u32 %s, %s, %s" % (s(sOffA2), s(sOffA2), s(sAdv))]

    m0A = lambda half: ("s_add_u32 m0, %s, 0x1000" % s(sAw)) if half else ("s_mov_b32 m0, %s" % s(sAw))
    m0B = "s_mov_b32 m0, %s" % s(sBw)

    vLN = vY
    c.I("s_mul_i32 %s, s2, %d" % (s(sXo), 8 * 896))
    c.I("s_cmp_eq_u32 %s, 0" % s(sW))
    c.I("s_cselect_b32 %s, 14, %d" % (s(sEvt), EV[0]))
    c.I("s_cbranch_scc0 L1_noln1")
    ln1 = Code()
    for i in range(7):
        ln1.I("buffer_load_dwordx4 %s, %s, %s, %s offen offset:%d" % (v(vLN + 4 * i, 4), v(vT + 4), s(sX, 4), s(sXo), 128 * i))
    pro2 = Code()
    c = pro2
    c.L("L1_noln1")
    for k in range(4):
        c.I("s_mov_b32 %s, %s" % (s(sA2 + k), s(sA + k)))
    c.I("s_mov_b32 %s, %s" % (s(sOffA2), s(sOffA)))
    c.I("s_mov_b32 %s, 128" % s(sAdv))
    put(c, [m0A(0), "s_nop 0"] + dmaA(0, 0))
    put(c, [m0B, "s_nop 0"] + dmaB(0) + advB())
    put(c, [m0A(1), "s_nop 0"] + dmaA(0, 1) + advA())
    put(c, [m0A(0), "s_nop 0"] + dmaA(1, 0))
    put(c, [m0B, "s_nop 0"] + dmaB(1) + advB())
    put(c, [m0A(1), "s_nop 0"] + dmaA(1, 1) + advA())
    put(c, [m0B, "s_nop 0"] + dmaB(2) + advB())
    put(c, [m0A(0), "s_nop 0"] + dmaA(2, 0))
    put(c, [m0B, "s_nop 0"] + dmaB(3) + advB())
    c.I("s_lshl_b32 %s, s2, 2" % s(sT))
    c.I("s_add_u32 %s, %s, %s" % (s(sT), s(sT), s(sW)))
    c.I("s_mov_b32 %s, %s" % (s(sWid), s(sT)))

    def touch_code(c, ks):
        n = 0
        for k in ks:
            arg, nb, per = touch[k]
            c.I("s_mul_i32 %s, %s, %d" % (s(sT3), s(sWid), per * 1024))
            for i in range(per):
                c.I("buffer_load_dwordx4 %s, %s, %s, %s offen offset:%d" % (v(vDum, 4), v(vST), s(sPf + 4 * k, 4), s(sT3), i * 1024), {"nodst": True})
                n += 1
        return n
    for k, (arg, nb, per) in enumerate(touch):
        srd_fin(c, sPf + 4 * k, nb)
    ntouch = touch_code(c, [0] if opt.get('t0', True) else [])
    for i in range(256):
        c.I("v_accvgpr_write_b32 %s, 0" % a(i))
    c.I("s_mov_b32 %s, 16" % s(sCnt))
    c.I("s_mov_b32 %s, 0" % s(sRd))
    c.I("s_cmp_eq_u32 %s, 0" % s(sW))
    c.I("s_cbranch_scc0 L1_noln2")
    ln2 = Code()
    c = ln2
    sm, sq, one, t4 = vLN + 32, vLN + 34, vLN + 36, vLN + 40
    c.I("v_mov_b32 %s, 0x3f803f80" % v(one))
    for k in range(4):
        c.I("v_mov_b32 %s, 0" % v(sm + k))
    c.I("s_waitcnt vmcnt(%d)" % (36 + ntouch))
    for k in range(28):
        c.I("v_dot2c_f32_bf16 %s, %s, %s" % (v(sm + (k & 1)), v(vLN + k), v(one)))
        c.I("v_dot2c_f32_bf16 %s, %s, %s" % (v(sq + (k & 1)), v(vLN + k), v(vLN + k)))
    c.I("s_nop 2")
    c.I("v_add_f32 %s, %s, %s" % (v(sm), v(sm), v(sm + 1)))
    c.I("v_add_f32 %s, %s, %s" % (v(sq), v(sq), v(sq + 1)))
    for dpp in ("quad_perm:[1,0,3,2]", "quad_perm:[2,3,0,1]", "row_half_mirror"):
        c.I("s_nop 0")
        c.I("v_add_f32_dpp %s, %s, %s %s row_mask:0xf bank_mask:0xf" % (v(sm), v(sm), v(sm), dpp))
        c.I("v_add_f32_dpp %s, %s, %s %s row_mask:0xf bank_mask:0xf" % (v(sq), v(sq), v(sq), dpp))
    proj.ln_scalars(c, sm, sq, sT)
    proj.ln_apply(c, [vLN + k for k in range(28)], sm, sq, t4)
    c.I("s_lshr_b32 %s, s2, 1" % s(sT))
    c.I("s_mul_i32 %s, %s, %d" % (s(sXo), s(sT), 14 * 1024))
    c.I("s_and_b32 %s, s2, 1" % s(sT))
    c.I("s_lshl_b32 %s, %s, 7" % (s(sT), s(sT)))
    c.I("s_add_u32 %s, %s, %s" % (s(sXo), s(sXo), s(sT)))
    c.I("s_add_u32 %s, %s, 0x%x" % (s(sXo), s(sXo), WS_XN))
    for i in range(7):
        c.I("buffer_store_dwordx4 %s, %s, %s, %s offen offset:%d sc1" % (v(vLN + 4 * i, 4), v(vT + 5), s(sWS, 4), s(sXo), (i & 1) * 2048))
        if i & 1:
            c.I("s_add_u32 %s, %s, 0x1000" % (s(sXo), s(sXo)))
    c.I("v_lshlrev_b32 %s, 2, %s" % (v(t0), L))
    c.I("v_mov_b32 %s, 0" % v(t1))
    c.I("s_min_u32 %s, s2, %d" % (s(sT), FG_N // 2 - 1))
    c.I("s_lshl_b32 %s, %s, 8" % (s(sT), s(sT)))
    c.I("s_add_u32 %s, %s, 0x%x" % (s(sT), s(sT), WS_FLAG))
    c.I("buffer_store_dword %s, %s, %s, %s offen sc1" % (v(t1), v(t0), s(sWS, 4), s(sT)))
    c.I("s_getreg_b32 %s, hwreg(HW_REG_XCC_ID, 0, 4)" % s(sT))
    c.I("s_lshl_b32 %s, 1, %s" % (s(sT), s(sT)))
    c.I("s_and_b32 %s, s2, 7" % s(sT2))
    c.I("s_lshl_b32 %s, %s, 2" % (s(sT2), s(sT2)))
    c.I("s_add_u32 %s, %s, 4" % (s(sT2), s(sT2)))
    c.I("s_mov_b64 exec, 1")
    c.I("v_mov_b32 %s, %s" % (v(t0), s(sT)))
    c.I("buffer_atomic_or %s, %s, %s, %s offen sc1" % (v(t0), v(t1), s(sDbg, 4), s(sT2)))
    c.I("s_mov_b64 exec, -1")
    c.I("s_waitcnt vmcnt(%d)" % (24 + ntouch + 9))
    c.I("s_branch L1_go")
    pro3 = Code()
    c = pro3
    c.L("L1_noln2")
    c.I("s_waitcnt vmcnt(%d)" % (24 + ntouch))
    pro4 = Code()
    c = pro4
    c.L("L1_go")

    def reads(dst, n):
        An, ks = n >> 1, n & 1
        boff = 16384 * (n & 1)
        live = n < 32
        ra = [Ins("ds_read_b128 %s, %s offset:%d" % (v(dst + 4 * mt, 4), v(vRA + ks), mt * 2048),
                  {"r": (("A", An % 3), ("A", An) if live else None)}) for mt in range(8)]
        rb = []
        for nt in range(8):
            for rr in range(2):
                rb.append(Ins("ds_read_b64_tr_b16 %s, %s offset:%d" % (v(dst + 32 + 4 * nt + 2 * rr, 2), v(vRB + (nt & 1)),
                                                                       boff + rr * 2048 + (nt >> 1) * 256),
                              {"r": (("B", n % 4), ("B", n) if live else None)}))
        return [ra[0]] + rb + ra[1:]

    c.I("s_barrier")
    ST.mark(c, 'kv0')
    put(c, reads(vX, 0))
    c.I("s_cmp_eq_u32 %s, 0" % s(sTyp))
    c.I("s_cbranch_scc1 L1_K_top")
    c.I("s_branch L1_V_top")

    def mf(src, typ):
        out = []
        order = [(mt, nt) for mt in range(8) for nt in range(8)]
        if typ == "K" and opt.get("kswap", True):
            order = [(mt, nt) for nt in range(8) for mt in range(8)]
        for mt, nt in order:
            cf, wf = v(src + 4 * mt, 4), v(src + 32 + 4 * nt, 4)
            if typ == "K":
                acc = a((mt * 8 + nt) * 4, 4)
                out.append(M16 % (acc, wf, cf, acc))
            else:
                acc = a(((mt >> 1) * 8 + nt) * 8 + (mt & 1) * 4, 4)
                out.append(M16 % (acc, cf, wf, acc))
        return out

    def seq(lst, at):
        return [(x, at + k, at, 63) for k, x in enumerate(lst)]

    def body(it, typ):
        code = Code()
        rot = ["s_add_u32 %s, %s, 0x8000" % (s(sT2), s(sRd)),
               "s_cmp_eq_u32 %s, 0x18000" % s(sT2),
               "s_cselect_b32 %s, 0, %s" % (s(sT2), s(sT2)),
               "s_sub_u32 %s, %s, %s" % (s(sDelta), s(sT2), s(sRd)),
               "s_mov_b32 %s, %s" % (s(sRd), s(sT2)),
               "v_add_u32 %s, %s, %s" % (v(vRA), s(sDelta), v(vRA)),
               "v_add_u32 %s, %s, %s" % (v(vRA + 1), s(sDelta), v(vRA + 1)),
               "v_xor_b32 %s, 0x8000, %s" % (v(vRB), v(vRB)),
               "v_xor_b32 %s, 0x8000, %s" % (v(vRB + 1), v(vRB + 1))]
        sal = seq(advA(), 28) + seq(rot, 49) + seq(advB(), 60)
        streams = [[(x, 2 * i, 0, 48) for i, x in enumerate(reads(vY, 2 * it + 1))],
                   [(d, 3 + 8 * i, 2, 27) for i, d in enumerate(dmaA(it + 2, 1))],
                   [(d, 35 + 8 * i, 34, 59) for i, d in enumerate(dmaB(2 * it + 4))], sal]
        gaps, load = schedule(64, 8, streams, fixed={1: [m0A(1)], 33: [m0B]}, reserve={63: 8})
        code.I("s_waitcnt vmcnt(16) lgkmcnt(0)")
        code.I("s_barrier")
        weave(code, mf(vX, typ), gaps)
        sw = advB() + ["s_sub_u32 %s, %s, 1" % (s(sCnt), s(sCnt)),
                       "s_cmp_eq_u32 %s, 2" % s(sCnt),
                       "s_cmov_b32 %s, %s" % (s(sB), s(sWq)),
                       "s_cmov_b32 %s, %s" % (s(sB + 1), s(sWq + 1)),
                       "s_cmov_b32 %s, %s" % (s(sB + 2), s(sWq + 2)),
                       "s_cmov_b32 %s, %s" % (s(sOffB), s(sQo)),
                       "s_cmp_eq_u32 %s, %s" % (s(sCnt), s(sEvt))]
        st2 = [(d, 33 + 4 * i, 33, 50) for i, d in enumerate(dmaB(2 * it + 5))] + seq(sw, 50)
        streams = [[(x, 2 * i, 0, 56) for i, x in enumerate(reads(vX, 2 * it + 2))],
                   [(d, 3 + 7 * i, 2, 30) for i, d in enumerate(dmaA(it + 3, 0))], st2]
        gaps, load = schedule(64, 8, streams, fixed={1: [m0A(0)], 31: [m0B]}, reserve={63: 8})
        code.I("s_waitcnt vmcnt(16) lgkmcnt(0)")
        code.I("s_barrier")
        weave(code, mf(vY, typ), gaps)
        code.I("s_cbranch_scc1 L1_%s_evt" % typ)
        code.L("L1_%s_evr" % typ)
        code.I("s_cmp_lg_u32 %s, 0" % s(sCnt))
        code.I("s_cbranch_scc1 L1_%s_top" % typ)
        if typ == "K":
            code.I("s_branch L1_tail")
        return code

    XR = opt.get("xr", 7)

    def xload(t):
        out = ["buffer_load_dwordx4 %s, %s, %s, %s offen offset:%d sc1%s" % (v(vXr + 8 * (t % XR) + 4 * qt, 4), v(vST), s(sWS, 4), s(sXo + qt), (t & 3) * 1024, opt.get("xnt", ""))
               for qt in range(2)]
        if t & 3 == 3:
            out += ["s_add_u32 %s, %s, 0x1000" % (s(sXo + qt), s(sXo + qt)) for qt in range(2)]
        return out

    def ev_arrive(code, typ, full):
        code.I("v_mov_b32 %s, 0" % v(vT + 1))
        code.I("s_mov_b64 exec, 1")
        code.I("v_mov_b32 %s, 1" % v(vT))
        code.I("buffer_atomic_add %s, %s, %s, 0 offen sc1" % (v(vT), v(vT + 1), s(sDbg, 4)))
        code.I("s_mov_b64 exec, -1")

    def ev_wq(code, typ, full):
        code.I("s_lshr_b32 %s, s2, 3" % s(sT3))
        code.I("s_mul_i32 %s, %s, 14" % (s(sT3), s(sT3)))
        code.I("s_lshl_b32 %s, %s, 2" % (s(sT), s(sW)))
        code.I("s_add_u32 %s, %s, %s" % (s(sT3), s(sT3), s(sT)))
        code.I("s_lshl_b32 %s, %s, 13" % (s(sT3), s(sT3)))
        code.I("s_and_b32 %s, s2, 7" % s(sT))
        code.I("s_lshl_b32 %s, %s, 10" % (s(sT), s(sT)))
        code.I("s_add_u32 %s, %s, %s" % (s(sT3), s(sT3), s(sT)))
        for i in range(4):
            code.I("buffer_load_dwordx4 %s, %s, %s, %s offen" % (v(vDum, 4), v(vST), s(sPf, 4), s(sT3)), {"nodst": True})
            code.I("s_add_u32 %s, %s, 0x2000" % (s(sT3), s(sT3)))

    def ev_cnt(code, typ, full):
        code.I("s_and_b32 %s, s2, 7" % s(sT3))
        code.I("s_lshl_b32 %s, %s, 2" % (s(sT3), s(sT3)))
        code.I("s_add_u32 %s, %s, 4" % (s(sT3), s(sT3)))
        code.I("v_min_u32 %s, 1, %s" % (v(vT + 3), v(vL)))
        code.I("v_mul_lo_u32 %s, %s, %s" % (v(vT + 3), v(vT + 3), s(sT3)))
        code.I("v_mov_b32 %s, 0" % v(vT + 1))
        code.I("buffer_load_dword %s, %s, %s, 0 offen sc1" % (v(vPoll), v(vT + 3), s(sDbg, 4)))

    def ev_chk(code, typ, full):
        code.I("s_waitcnt vmcnt(16)")
        code.I("v_readfirstlane_b32 %s, %s" % (s(sT), v(vPoll)))
        code.I("s_cmp_eq_u32 %s, 256" % s(sT))
        code.I("s_cbranch_scc1 L1_%s_got" % typ)
        if full:
            code.I("s_mov_b32 %s, 0x%x" % (s(sT3), SPIN))
            code.L("L1_%s_poll" % typ)
            code.I("buffer_load_dword %s, %s, %s, 0 offen sc1" % (v(vPoll), v(vT + 3), s(sDbg, 4)))
            code.I("s_waitcnt vmcnt(0)")
            code.I("v_readfirstlane_b32 %s, %s" % (s(sT), v(vPoll)))
            code.I("s_sub_u32 %s, %s, 1" % (s(sT3), s(sT3)))
            code.I("s_cbranch_scc1 L1_%s_got" % typ)
            code.I("s_cmp_lg_u32 %s, 256" % s(sT))
            code.I("s_cbranch_scc1 L1_%s_poll" % typ)
        code.L("L1_%s_got" % typ)
        code.I("v_readlane_b32 %s, %s, 1" % (s(sT), v(vPoll)))
        code.I("s_bcnt1_i32_b32 %s, %s" % (s(sT), s(sT)))
        code.I("s_cmp_eq_u32 %s, %d" % (s(sT), 99 if opt.get("slow") else 1))
        code.I("s_cselect_b32 %s, 1, 0" % s(sFast))
        code.I("s_bfe_u32 %s, s2, 0x30004" % s(sT))
        code.I("s_sub_u32 %s, 15, %s" % (s(sT3), s(sT)))
        code.I("s_bitcmp1_b32 s2, 7")
        code.I("s_cselect_b32 %s, %s, %s" % (s(sT), s(sT3), s(sT)))
        code.I("s_lshl_b32 %s, %s, 2" % (s(sT), s(sT)))
        code.I("s_add_u32 %s, %s, %s" % (s(sT), s(sT), s(sW)))
        code.I("s_mul_i32 %s, %s, %d" % (s(sXo), s(sT), 28 * 1024))
        code.I("s_add_u32 %s, %s, 0x%x" % (s(sXo), s(sXo), WS_XN))
        code.I("s_add_u32 %s, %s, %d" % (s(sXo + 1), s(sXo), 14 * 1024))

    def ev_xn(k0, k1):
        def f(code, typ, full):
            code.I("s_bitcmp1_b32 s2, 3")
            code.I("s_cselect_b32 %s, %s, %s" % (s(sT3), s(sXo + 1), s(sXo)))
            code.I("s_add_u32 %s, %s, %d" % (s(sT3), s(sT3), k0 * 1024))
            for i in range(k1 - k0):
                code.I("buffer_load_dwordx4 %s, %s, %s, %s offen offset:%d sc1" % (v(vDum, 4), v(vST), s(sWS, 4), s(sT3), i * 1024), {"nodst": True})
        return f

    def ev_x0(code, typ, full):
        for t_ in range(XR - 1):
            put(code, xload(t_))

    def ev_a1(code, typ, full):
        for k in range(3):
            code.I("s_mov_b32 %s, %s" % (s(sA + k), s(sWq + k)))
        code.I("s_mov_b32 %s, 0x80000" % s(sAdv))
        code.I("s_add_u32 %s, %s, 0x80000" % (s(sOffA), s(sQo)))
        for j in range(4):
            code.I("v_mov_b32 %s, %s" % (v(vOA + j), v(vOB + j)))

    def ev_a2(code, typ, full):
        for k in range(3):
            code.I("s_mov_b32 %s, %s" % (s(sA2 + k), s(sWq + k)))
        code.I("s_add_u32 %s, %s, 0x140000" % (s(sOffA2), s(sQo)))
        for j in range(4):
            code.I("v_mov_b32 %s, %s" % (v(vOA + 4 + j), v(vOB + j)))

    tch = lambda ks: (lambda code, typ, full: touch_code(code, ks))
    TA, TB = opt.get('ta', [1]), opt.get('tb', [2, 3, 4])
    EVS = {14: [ev_arrive], EV[0]: [tch(TA)], EV[0] - 1: [tch(TB), ev_cnt], EV[0] - 2: [ev_chk], 1: [ev_x0]}
    EVS.update({3: [ev_a1], 2: [ev_a2]})
    if opt.get('wql2', True):
        EVS[5] = [ev_wq]
    if opt.get("xl2", False):
        EVS[4] = [ev_xn(XR - 1, XR + 3)]
        EVS[3].append(ev_xn(XR + 3, 14))
    evk = sorted(EVS, reverse=True)

    def evt(typ, which=None):
        code = Code()
        code.L("L1_%s_evt" % typ)
        for n_, k in enumerate(evk):
            if n_ + 1 < len(evk):
                code.I("s_cmp_eq_u32 %s, %d" % (s(sEvt), k))
                code.I("s_cbranch_scc0 L1_%s_ev%d" % (typ, evk[n_ + 1]))
            if which in (None, k):
                for f in EVS[k]:
                    f(code, typ, which is None)
                if n_ + 1 < len(evk):
                    code.I("s_mov_b32 %s, %d" % (s(sEvt), evk[n_ + 1]))
                code.I("s_branch L1_%s_evr" % typ)
            if n_ + 1 < len(evk):
                code.L("L1_%s_ev%d" % (typ, evk[n_ + 1]))
        return code

    slot_of = [0, 1, 2, 3, 4, 5, 6, 7, 8, 9, 0, 1, 2, 3]
    AOFF = {4: 0x18000, 5: 0x19000, 6: 0x20000, 7: 0x21000, 8: 0x10000, 9: 0x11000}

    def dmaW(t):
        al = []
        return ["s_add_u32 m0, %s, 0x%x" % (s(sW4k), slot_of[t] * 16384)] + \
            [Ins("buffer_load_dwordx4 %s, %s, %s offen offset:%d lds" % (v(vOB + j), s(sB, 4), s(sOffB), 1024 * j),
                 {"w": (("S", slot_of[t]), ("W", t), 4), "alias": al}) for j in range(4)] + \
            ["s_add_u32 %s, %s, 0x40000" % (s(sOffB), s(sOffB))]

    def drain(n):
        e = vE
        pk = vP + 4 * (n & 1)
        out = ["v_accvgpr_read_b32 %s, %s" % (v(e + k), a(8 * n + k)) for k in range(8)]
        out += ["v_cvt_pk_bf16_f32 %s, %s, %s" % (v(pk + k), v(e + 2 * k), v(e + 2 * k + 1)) for k in range(4)]
        out.append(Ins("buffer_store_dwordx4 %s, %s, %s, %s offen offset:%d%s" % (v(pk, 4), v(vST), s(sWS, 4), s(sSt), (n & 3) * 1024, opt.get("kvst", " sc1")), {"tag": "KV"}))
        if opt.get("nost"):
            out.pop()
        if n & 3 == 3 and not opt.get("samest"):
            out.append("s_add_u32 %s, %s, %s" % (s(sSt), s(sSt), s(sInc1 if n & 4 else sInc0)))
        return out

    def tail():
        c = Code()
        c.L("L1_tail")
        c.I("s_lshl_b32 %s, %s, 6" % (s(sT), s(sHead)))
        c.I("s_lshl_b32 %s, %s, 3" % (s(sT2), s(sMt)))
        c.I("s_add_u32 %s, %s, %s" % (s(sT), s(sT), s(sT2)))
        c.I("s_lshr_b32 %s, %s, 1" % (s(sT2), s(sW)))
        c.I("s_lshl_b32 %s, %s, 2" % (s(sT2), s(sT2)))
        c.I("s_add_u32 %s, %s, %s" % (s(sT), s(sT), s(sT2)))
        c.I("s_mul_i32 %s, %s, %d" % (s(sSt), s(sT), US))
        c.I("s_and_b32 %s, %s, 1" % (s(sT2), s(sW)))
        c.I("s_lshl_b32 %s, %s, 10" % (s(sT3), s(sT2)))
        c.I("s_add_u32 %s, %s, 12" % (s(sT), s(sTyp)))
        c.I("s_lshl_b32 %s, %s, %s" % (s(sT2), s(sT2), s(sT)))
        c.I("s_add_u32 %s, %s, %s" % (s(sSt), s(sSt), s(sT2)))
        c.I("s_mul_i32 %s, %s, 0x%x" % (s(sT2), s(sTyp), WS_VF))
        c.I("s_add_u32 %s, %s, %s" % (s(sSt), s(sSt), s(sT2)))
        c.I("s_lshl_b32 %s, %s, 7" % (s(sQo), s(sHead)))
        c.I("s_lshl_b32 %s, %s, 3" % (s(sT), s(sTyp)))
        c.I("s_add_u32 %s, %s, %s" % (s(sT), s(sT), s(sMt)))
        c.I("s_lshl_b32 %s, %s, 2" % (s(sT), s(sT)))
        c.I("s_add_u32 %s, %s, 0x%x" % (s(sQo), s(sQo), WS_FLAG + FG_KV * 128))
        c.I("s_add_u32 %s, %s, %s" % (s(sFlag), s(sQo), s(sT)))
        for k in range(2):
            c.I("v_subrev_u32 %s, %s, %s" % (v(vRB + k), s(sT3), v(vRB + k)))
        c.I("v_lshrrev_b32 %s, 4, %s" % (v(vT + 4), L))
        c.I("v_lshl_add_u32 %s, %s, 12, %s" % (v(vT + 4), v(vT + 4), v(vRB)))
        c.I("v_xor_b32 %s, 32, %s" % (v(vT + 5), v(vT + 4)))
        c.I("s_add_u32 %s, %s, 0x180000" % (s(sOffB), s(sOffB)))
        c.I("v_mov_b32 %s, 1" % v(vT))
        c.I("v_min_u32 %s, 15, %s" % (v(vT + 2), L))
        c.I("v_lshlrev_b32 %s, 2, %s" % (v(vT + 2), v(vT + 2)))
        c.I("s_waitcnt vmcnt(4) lgkmcnt(0)")
        c.I("s_barrier")
        ST.mark(c, 'kv1')
        put(c, [m0A(1), "s_nop 0"] + dmaA(18, 1))
        fill = [x for n in range(32) for x in drain(n)]
        sx = {t_: xload(t_ + XR - 1) for t_ in range(15 - XR)}
        sb = opt.get("sb", 6)
        if opt.get("nox"):
            sx = {k: [y for y in x if not (isinstance(y, str) and y.startswith("buffer_load"))] for k, x in sx.items()}
        sx[2 * sb + 1] = sx.get(2 * sb + 1, []) + ["buffer_load_dword %s, %s, %s, %s offen sc1" % (v(vPoll), v(vT + 2), s(sWS, 4), s(sQo))]
        OOL.L("L1_kvw")
        poll_loop(OOL, "L1_kv", vPoll, vT + 2, sQo, sCnt)
        OOL.I("s_branch L1_kvok")
        chk = ["v_cmp_ne_u32 vcc, 1, %s" % v(vPoll), "s_cbranch_vccnz L1_kvw", "L1_kvok:"] + acquire("L1_kva")
        ab = {sb: signal("L1_kvs", vT, vT + 1, sFlag), 3: att["decode"]}
        if sb < 6:
            sx[12] = sx.get(12, []) + att["dma0"]
            sx[13] = sx.get(13, []) + att["dma1"]
            ab[6] = chk
        proj.proj_main(c, lambda qt, t: v(vXr + 8 * (t % XR) + 4 * qt, 4), vRB, vRA, lambda nt, qt: v(vX + 8 * nt + 4 * qt, 4),
                       lambda k, n: v(vWr + k, n), 8, slot_of,
                       {1: [dmaW(10), dmaW(11)], 2: [dmaW(12), dmaW(13)]}, fill=fill, fill_steps=opt.get("fs", 10),
                       need_extra={sb: ["KV"]},
                       after_bar=ab,
                       step_extra=sx, first_need=False, addr_of=lambda t: (AOFF[t], vT + 4) if t in AOFF else (slot_of[t] * 16384, vRB),
                       marks=lambda c, b: ST.mark(c, 'p%d' % b))
        if sb == 6:
            put(c, chk)
            for x in att["dma0"] + att["dma1"]:
                put(c, [x, "s_nop 0"] if isinstance(x, str) and " m0," in x else [x])
        ST.mark(c, 'q1')
        pre = Code()
        put(pre, dmaB(35))
        w = autowait(Code(pre + c))
        return Code(w[len(pre):])

    head = Code()
    head += pro + ln1 + pro2 + ln2 + pro3 + pro4
    head += evt("K") + evt("V")
    for typ in "KV":
        head.I(".p2align 6")
        head.L("L1_%s_top" % typ)
        head += body(0, typ)
    tc = tail()
    code = Code(head + tc)

    traces = []
    for typ in "KV":
        for ln in (False, True):
            tr = list(pro) + (list(ln1) if ln else []) + list(pro2) + (list(ln2) if ln else list(pro3)) + list(pro4)
            for it in range(16):
                pa = body(it, typ)
                assert [x.t for x in pa] == [x.t for x in body(0, typ)]
                tr += pa
                if (15 - it) in EVS and (ln or it != 1):
                    tr += evt(typ, 15 - it)
            tr += tc
            traces.append(tr)
    return code, traces
```

```python
from asmlib import *
from layout import *
from common import *
from proj import put, M16
import ph1

BIG = 0x4e800000
HUGE = 0x40000000


def gen(ST, opt, fused_next):
    SP = opt.get("SP", 36)
    V = Alloc(4, ph1.R1.vT)
    vLn, vPoll = ph1.R1.vST, ph1.R1.vPoll
    vL = ph1.R1.vL
    vX = ph1.R1.vXr
    vS = [V(16, 4), V(16, 4)]
    vNM = V(8, 4)
    vP0 = [V(4, 4), V(4, 4)]
    vP1 = V(4, 4)
    vE = V(8, 4)
    vLL = [[V(4, 4), V(4, 4)], [V(4, 4), V(4, 4)]]
    vOnes = V(4, 4)
    vRV, vDm = V(), ph1.R1.vT + 6
    vRK = vLn
    vThr = V(4)
    vThrP, vNinf = V(), V()
    vC = V(12, 4)
    vOW = V(4)
    vWB, vWA = V(2), V(2)
    vPk = V(16, 4)
    vT = V(12, 4)
    vB = ph1.R1.vQ2
    vAcc = [vS[0], vS[0] + 32]
    assert vS[0] + 64 <= vLL[0][0] + 8
    aO, aQ, aF = 0, 128, 192
    sK, sV, sWo = 48, 52, 56
    (sOffK, sOffV, sQb, sU0, sU1, sMode, sDiag, sHead, sI, sNext, sPair,
     sNU, sBig, sD0, sD1, sEvt, sNxt, sHave, sFl, sCnt) = list(range(60, 71)) + list(range(41, 48)) + [30, 31]
    sRet = 28
    sM = 12

    def S(p, qt, kt, r=0):
        return vS[p] + 8 * qt + 4 * kt + r

    def P(p, qt):
        return vP0[p] if qt == 0 else vP1

    def dmaK(x):
        return [Ins("buffer_load_dwordx4 %s, %s, %s offen offset:%d lds" % (v(vDm), s(sK, 4), s(sOffK), 1024 * i),
                    {"w": (("K", x & 3), ("K", x), 4), "alias": [("S", x & 3)]}) for i in range(4)]

    def dmaV(x):
        return [Ins("buffer_load_dwordx4 %s, %s, %s offen offset:%d lds" % (v(vDm), s(sV, 4), s(sOffV), 1024 * i),
                    {"w": (("V", x & 3), ("V", x), 4), "alias": [("S", 8), ("S", 9)] if (x & 3) < 2 else [("S", 4), ("S", 5)]}) for i in range(4)]

    m0K = lambda x: "s_add_u32 m0, %s, 0x%x" % (s(sW4k), (x & 3) * 16384)
    m0V = lambda x: "s_add_u32 m0, %s, 0x%x" % (s(sW4k), 65536 + (x & 3) * 16384)
    advK = "s_add_u32 %s, %s, %d" % (s(sOffK), s(sOffK), 0 if opt.get("noadv") else US)
    advV = "s_add_u32 %s, %s, %d" % (s(sOffV), s(sOffV), 0 if opt.get("noadv") else US)

    CH = [4, 0, 1, 2, 3, 4, 0]
    CH_ALIAS = {0: [("K", 0), ("K", 1)], 1: [("K", 2), ("K", 3)], 2: [("V", 0), ("V", 1)], 3: [("V", 2), ("V", 3)], 4: [("S", 6), ("S", 7)]}

    def dmaO(ch):
        out = []
        for hf in range(2):
            out.append("s_lshl_b32 %s, %s, 1" % (s(sT3), s(sW4k)) if hf == 0 else "s_add_u32 %s, %s, %d" % (s(sD1), s(sD1), 32 * 896))
            out.append("s_add_u32 m0, %s, 0x%x" % (s(sT3), CH[ch] * 32768 + hf * 4096))
            out.append("s_nop 0")
            out += [Ins("buffer_load_dwordx4 %s, %s, %s offen offset:%d lds" % (v(vOW + j), s(sWo, 4), s(sD1), 1024 * j),
                        {"w": (("C", CH[ch]), ("O", ch), 8), "alias": CH_ALIAS[CH[ch]]}) for j in range(4)]
        out.append("s_sub_u32 %s, %s, %d" % (s(sD1), s(sD1), 32 * 896 - 128))
        return out

    def decode():
        c = Code()
        c.I("s_and_b32 %s, s2, 7" % s(sT))
        c.I("s_lshl_b32 %s, %s, 1" % (s(sHead), s(sT)))
        c.I("s_bfe_u32 %s, s2, 0x10003" % s(sT))
        c.I("s_add_u32 %s, %s, %s" % (s(sHead), s(sHead), s(sT)))
        c.I("s_bfe_u32 %s, s2, 0x30004" % s(sI))
        c.I("s_lshl_b32 %s, %s, 3" % (s(sPair), s(sHead)))
        c.I("s_add_u32 %s, %s, %s" % (s(sPair), s(sPair), s(sI)))
        c.I("s_lshl_b32 %s, %s, 2" % (s(sPair), s(sPair)))
        c.I("s_add_u32 %s, %s, %s" % (s(sPair), s(sPair), s(sW)))
        c.I("s_mul_i32 %s, %s, %d" % (s(sT), s(sHead), 64 * US))
        c.I("s_add_u32 %s, %s, %s" % (s(sK), s(sWS), s(sT)))
        c.I("s_addc_u32 %s, %s, 0" % (s(sK + 1), s(sWS + 1)))
        c.I("s_add_u32 %s, %s, 0x%x" % (s(sV), s(sK), WS_VF - WS_KF))
        c.I("s_addc_u32 %s, %s, 0" % (s(sV + 1), s(sK + 1)))
        c.I("s_mov_b32 %s, 0x20000" % s(sK + 3))
        c.I("s_mov_b32 %s, 0x20000" % s(sV + 3))
        c.I("v_add_u32 %s, %s, %s" % (v(vDm), s(sW4k), v(vLn)))
        c.I("s_lshl_b32 %s, %s, 2" % (s(sT), s(sI)))
        c.I("s_sub_u32 %s, 64, %s" % (s(sT2), s(sT)))
        c.I("s_add_u32 %s, %s, 4" % (s(sT3), s(sT)))
        c.I("s_sub_u32 %s, 15, %s" % (s(sQb), s(sI)))
        c.I("s_cmp_gt_u32 %s, %d" % (s(sT2), SP))
        c.I("s_cselect_b32 %s, 1, 0" % s(sNext))
        c.I("s_cselect_b32 %s, %d, 0" % (s(sU0), SP))
        c.I("s_cselect_b32 %s, %s, %s" % (s(sT3), s(sT2), s(sT3)))
        c.I("s_cselect_b32 %s, %d, %s" % (s(sT2), SP, s(sT2)))
        c.I("s_cselect_b32 %s, %s, %s" % (s(sT), s(sQb), s(sI)))
        c.I("s_xor_b32 %s, %s, 1" % (s(sDiag), s(sNext)))
        c.I("s_lshl_b32 %s, %s, 1" % (s(sMode), s(sNext)))
        c.I("s_bitcmp1_b32 s2, 7")
        c.I("s_cselect_b32 %s, %s, %s" % (s(sU1), s(sT2), s(sT3)))
        c.I("s_cselect_b32 %s, 0, %s" % (s(sU0), s(sU0)))
        c.I("s_cselect_b32 %s, %s, %s" % (s(sQb), s(sQb), s(sT)))
        c.I("s_cselect_b32 %s, %s, 1" % (s(sDiag), s(sDiag)))
        c.I("s_cselect_b32 %s, %s, %s" % (s(sMode), s(sMode), s(sNext)))
        c.I("s_cselect_b32 %s, 0, %s" % (s(sNext), s(sNext)))
        c.I("s_mul_i32 %s, %s, %d" % (s(sK + 2), s(sU1), US))
        c.I("s_mov_b32 %s, %s" % (s(sV + 2), s(sK + 2)))
        c.I("s_mul_i32 %s, %s, %d" % (s(sOffK), s(sU0), US))
        c.I("s_mov_b32 %s, %s" % (s(sOffV), s(sOffK)))
        return c

    early = dict(decode=list(decode()), dma0=[m0K(0)] + dmaK(0) + [advK, m0K(1)] + dmaK(1) + [advK], dma1=[m0V(0)] + dmaV(0) + [advV])

    def mix(c, base, extra, every):
        extra = list(extra)
        for k, x in enumerate(base):
            put(c, [x])
            if k % every == every - 1 and extra:
                put(c, [extra.pop(0)])
        for x in extra:
            put(c, [x, "s_nop 0"] if isinstance(x, str) and " m0," in x else [x])

    def entry():
        vA = ph1.R1.vX
        vSc = ph1.R1.vDum
        c = Code()
        c.I("s_load_dwordx2 %s, s[0:1], 40" % s(sWo, 2))
        c.I("s_mov_b32 %s, 0x3db8aa3b" % s(sT))
        c.I("v_mov_b32 %s, %s" % (v(vSc), s(sT)))
        c.I("v_mov_b32 %s, %s" % (v(vSc + 1), s(sT)))
        c.I("s_mov_b32 %s, 0" % s(sHave))
        c.I("s_lshl_b32 %s, %s, 14" % (s(sD0), s(sPair)))
        c.I("s_add_u32 %s, %s, 0x%x" % (s(sD0), s(sD0), WS_QF))
        c.I("s_lshr_b32 %s, %s, 2" % (s(sFl), s(sPair)))
        c.I("s_lshl_b32 %s, %s, 7" % (s(sFl), s(sFl)))
        c.I("s_lshl_b32 %s, %s, 2" % (s(sT), s(sW)))
        c.I("s_add_u32 %s, %s, %s" % (s(sFl), s(sFl), s(sT)))
        c.I("s_add_u32 %s, %s, 0x%x" % (s(sFl), s(sFl), WS_FLAG + FG_QX * 128))
        c.I("s_cmp_eq_u32 %s, 2" % s(sMode))
        c.I("s_cselect_b32 %s, %s, 0x%x" % (s(sT2), s(sD0), HUGE))
        for n in range(16):
            qt, ks = n >> 3, n & 7
            for k in range(4):
                src = vA + 8 * (2 * ks + (k >> 1)) + 4 * qt + 2 * (k & 1)
                c.I("v_pk_mul_f32 %s, %s, %s" % (v(src, 2), v(src, 2), v(vSc, 2)))
            for k in range(4):
                src = vA + 8 * (2 * ks + (k >> 1)) + 4 * qt + 2 * (k & 1)
                c.I("v_cvt_pk_bf16_f32 %s, %s, %s" % (v(vB + 4 * n + k), v(src), v(src + 1)))
            c.I("buffer_store_dwordx4 %s, %s, %s, %s offen offset:%d sc1" % (v(vB + 4 * n, 4), v(vLn), s(sWS, 4), s(sT2), (n & 3) * 1024))
            if n & 3 == 3:
                c.I("s_add_u32 %s, %s, 0x1000" % (s(sT2), s(sT2)))
        ST.mark(c, 'qc')
        c.I("v_mov_b32 %s, 1" % v(vT))
        c.I("v_mov_b32 %s, 0" % v(vT + 1))
        c.I("s_cmp_eq_u32 %s, 1" % s(sMode))
        c.I("s_cbranch_scc1 L2_qld")
        f = Code()
        for k in range(64):
            f.I("v_accvgpr_write_b32 %s, %s" % (a(aQ + k), v(vB + k)))
        ST.mark(f, 'qx0')
        f.I("s_waitcnt vmcnt(0)")
        ST.mark(f, 'qx1')
        f.I("s_cmp_eq_u32 %s, 2" % s(sMode))
        f.I("s_cbranch_scc0 L2_qok")
        put(f, signal("L2_qs", vT, vT + 1, sFl))
        f.I("s_branch L2_qok")
        g = Code()
        g.L("L2_qld")
        if ST.on:
            g.I("s_waitcnt vmcnt(0)")
        ST.mark(g, 'qx0')
        poll_loop(g, "L2_qx", vPoll, vT + 1, sFl, sCnt)
        put(g, acquire("L2_qa"))
        ST.mark(g, 'qx1')
        for n in range(16):
            g.I("buffer_load_dwordx4 %s, %s, %s, %s offen offset:%d" % (a(aQ + 4 * n, 4), v(vLn), s(sWS, 4), s(sD0), (n & 3) * 1024))
            if n & 3 == 3:
                g.I("s_add_u32 %s, %s, 0x1000" % (s(sD0), s(sD0)))
        h = Code()
        h.L("L2_qok")
        ST.mark(h, 'qok')
        h.I("s_add_u32 %s, %s, %d" % (s(sFl), s(sFl), (FG_PT - FG_QX) * 128))
        h.I("s_waitcnt lgkmcnt(0)")
        h.I("s_barrier")
        ST.mark(h, 'qb')
        for f_ in range(16):
            h.append(rdK(0, f_))
        e = Code()
        L = v(vL)
        e.I("v_add_u32 %s, 0x10000, %s" % (v(vRV), v(vLn)))
        e.I("v_and_b32 %s, 15, %s" % (v(vT + 2), L))
        e.I("v_lshrrev_b32 %s, 4, %s" % (v(vT + 3), L))
        e.I("v_lshlrev_b32 %s, 2, %s" % (v(vT + 4), v(vT + 3)))
        e.I("v_sub_u32 %s, %s, %s" % (v(vT + 2), v(vT + 2), v(vT + 4)))
        e.I("s_lshl_b32 %s, %s, 5" % (s(sT), s(sW)))
        e.I("v_add_u32 %s, %s, %s" % (v(vThr), s(sT), v(vT + 2)))
        for j in range(1, 4):
            e.I("v_subrev_u32 %s, %d, %s" % (v(vThr + j), 32 * j, v(vThr)))
        e.I("v_mov_b32 %s, 0xff800000" % v(vNinf))
        for r in range(4):
            e.I("v_mov_b32 %s, 0x3f803f80" % v(vOnes + r))
        e.I("s_mov_b32 %s, 0x%x" % (s(sBig), opt.get('BIG', BIG)))
        t0, t1, t2, t3 = vT + 6, vT + 7, vT + 2, vT + 4
        e.I("v_lshrrev_b32 %s, 5, %s" % (v(t0), L))
        e.I("v_bfe_u32 %s, %s, 2, 2" % (v(t1), L))
        e.I("v_lshl_add_u32 %s, %s, 2, %s" % (v(t2), v(t0), v(t1)))
        e.I("v_mul_u32_u24 %s, 896, %s" % (v(t2), v(t2)))
        e.I("v_bfe_u32 %s, %s, 4, 1" % (v(vT + 5), L))
        e.I("v_lshl_add_u32 %s, %s, 6, %s" % (v(t2), v(vT + 5), v(t2)))
        e.I("v_lshlrev_b32 %s, 1, %s" % (v(t0), v(t0)))
        e.I("v_and_b32 %s, 3, %s" % (v(t3), L))
        e.I("v_xor_b32 %s, %s, %s" % (v(t0), v(t0), v(t3)))
        e.I("v_lshl_add_u32 %s, %s, 4, %s" % (v(vOW), v(t0), v(t2)))
        for j in range(1, 4):
            e.I("v_add_u32 %s, %d, %s" % (v(vOW + j), j * (8 * 896 - 1024), v(vOW)))
        e.I("v_lshlrev_b32 %s, 9, %s" % (v(t0), v(vT + 3)))
        e.I("v_lshl_add_u32 %s, %s, 6, %s" % (v(t0), v(t1), v(t0)))
        e.I("v_lshl_add_u32 %s, %s, 5, %s" % (v(t0), v(vT + 5), v(t0)))
        e.I("v_lshl_add_u32 %s, %s, 3, %s" % (v(vWB), v(t3), v(t0)))
        e.I("v_xor_b32 %s, 32, %s" % (v(vWB + 1), v(vWB)))
        srd_fin(e, sWo, 4096 * 896)
        e.I("s_lshl_b32 %s, %s, 2" % (s(sT), s(sHead)))
        e.I("s_add_u32 %s, %s, %s" % (s(sT), s(sT), s(sW)))
        e.I("s_mul_i32 %s, %s, %d" % (s(sD1), s(sT), 64 * 896))
        for i in range(128):
            e.I("v_accvgpr_write_b32 %s, 0" % a(aO + i))
        more = []
        for k in range(2):
            more += [m0K(2 + k)] + dmaK(2 + k) + [advK, m0V(1 + k)] + dmaV(1 + k) + [advV]
        mix(h, e, more, 7)
        ST.mark(h, 'z')
        h.I("s_waitcnt vmcnt(16) lgkmcnt(0)")
        ST.mark(h, 'zw')
        mix(h, qk(0, czero=True), [x for x in dmaO(0) if x != "s_nop 0"], 2)
        h.I("s_barrier")
        for f_ in range(16):
            h.append(rdK(1, f_))
        ST.mark(h, 'a1')
        full = Code(c + f + g + h)
        return full, list(c + f + h), list(c + g + h)

    def rdK(x, f):
        return Ins("ds_read_b128 %s, %s offset:%d" % (a(aF + 4 * f, 4), v(vRK), (x & 3) * 16384 + 1024 * f), {"r": (("K", x & 3), ("K", x))})

    def rdV(x, f):
        return Ins("ds_read_b128 %s, %s offset:%d" % (a(aF + 4 * f, 4), v(vRV), (x & 3) * 16384 + 1024 * f), {"r": (("V", x & 3), ("V", x))})

    def qk(p, czero=False, q2=False):
        out = []
        for f in range(16):
            kt, ks = f >> 3, f & 7
            for qt in range(2):
                d = v(S(p, qt, kt), 4)
                c0 = "0" if czero else v(vNM + 4 * qt, 4)
                qr = v(vB + 32 * qt + 4 * ks, 4) if q2 else a(aQ + 32 * qt + 4 * ks, 4)
                out.append(M16 % (d, a(aF + 4 * f, 4), qr, c0 if ks == 0 else d))
        return out

    def pv(p):
        out = []
        for f in range(16):
            for qt in range(2):
                d = a(aO + 8 * f + 4 * qt, 4)
                out.append(M16 % (d, a(aF + 4 * f, 4), v(P(p, qt), 4), d))
        return out

    def ones(p, qt):
        return M16 % (v(vLL[p][qt], 4), v(vOnes, 4), v(P(p, qt), 4), v(vLL[1 - p][qt], 4))

    def maskops(p, qt, thr):
        cm, se = [], []
        for e in range(8):
            kt, r = e >> 2, e & 3
            cm.append("v_cmp_gt_i32 %s, %d, %s" % (s(sM + 2 * e, 2), 16 * kt + r - 16 * qt, v(thr)))
            se.append("v_cndmask_b32 %s, %s, %s, %s" % (v(S(p, qt, kt, r)), v(S(p, qt, kt, r)), v(vNinf), s(sM + 2 * e, 2)))
        return cm, se

    def softmax(p, qt, thr=None):
        out = []
        cm, se = maskops(p, qt, thr) if thr is not None else ([], [])
        out += cm + se
        for e in range(8):
            out.append("v_exp_f32 %s, %s" % (v(vE + e), v(S(p, qt, e >> 2, e & 3))))
            if e & 1 and e >= 3:
                k = (e - 3) // 2
                out.append("v_cvt_pk_bf16_f32 %s, %s, %s" % (v(P(p, qt) + k), v(vE + 2 * k), v(vE + 2 * k + 1)))
        out.append("v_cvt_pk_bf16_f32 %s, %s, %s" % (v(P(p, qt) + 3), v(vE + 6), v(vE + 7)))
        return out

    def nreads(gaps, upto):
        return sum(1 for g in range(upto) for y in gaps[g] if isinstance(y, Ins) and y.t.startswith("ds_read"))

    def H2(x, masked, nosm=False):
        p = x & 1
        code = Code()
        mains = pv(1 - p)
        rd = [(rdK(x + 1, f), 2 * f + 1, 2 * f + 1, 2 * f + 3) for f in range(16)]
        sm = [] if nosm else softmax(p, 0, (vThr + (x & 3)) if masked else None)
        if masked:
            smi = [(t, 1 + 29.0 * k / len(sm), 8 if k >= 12 else 0, 31) for k, t in enumerate(sm)]
        else:
            smi = [(t, 2 + 27.0 * k / len(sm), 6 if k >= 5 else 0, 31) for k, t in enumerate(sm)]
        dm = [(d, 2 + 8 * i, 1, 30) for i, d in enumerate(dmaV(x + 2))] + [(advV, 29, 0, 31)]
        if opt.get("nodma") and not masked:
            dm = dm[4:]
        fx = [m0V(x + 2)]
        if masked and (x & 3) == 2:
            fx.append("s_mov_b32 %s, %s" % (s(sOffV), s(sNxt)))
        gaps, load = schedule(32, 8, [rd, smi, dm], fixed={0: fx}, reserve={15: 4, 31: 4})
        pre = {0: ["s_waitcnt lgkmcnt(8)"], 16: ["s_waitcnt lgkmcnt(%d)" % nreads(gaps, 16)]}
        weave(code, mains, gaps, pre)
        return code

    def H1(x, masked, tag):
        p = x & 1
        code = Code()
        last = masked and (x & 3) == 3
        q = qk(1 - p, czero=last, q2=last)
        o0, o1 = 4, 24 if not masked else 27
        mains = q[:o0] + [ones(p, 0)] + q[o0:o1 - 1] + [ones(p, 1)] + q[o1 - 1:]
        pos = [i for i in range(34) if i not in (o0, o1)]
        rd = [(rdV(x, f), pos[2 * f + 1], pos[2 * f + 1], min(33, pos[2 * f + 1] + 2)) for f in range(16)]
        sm = softmax(p, 1, (vThr + (x & 3)) if masked else None)
        smi = [(t, 0 + (o1 - 3.0) * k / len(sm), 0, o1 - 2) for k, t in enumerate(sm)]
        dm = [(d, 3 + opt.get("ksp", 8) * i, 2, 32) for i, d in enumerate(dmaK(x + 4))] + [(advK, 30, 0, 33)]
        if opt.get("nodma") and not masked:
            dm = dm[4:]
        ck = [("v_add_f32 %s, %s, %s" % (v(vT), v(vLL[p][0]), v(vLL[p][1])), o1 + 5, o1 + 5, 32),
              ("v_cmp_nge_f32 vcc, %s, %s" % (s(sBig), v(vT)), o1 + 6, o1 + 5, 33)]
        fx = [m0K(x + 4)]
        if masked and (x & 3) == 0:
            fx.append("s_mov_b32 %s, %s" % (s(sOffK), s(sNxt)))
        gaps, load = schedule(34, 8, [rd, smi, dm, ck], fixed={1: fx}, reserve={pos[16] - 1: 4, 33: 4})
        pre = {0: ["s_waitcnt lgkmcnt(8)"], pos[16]: ["s_waitcnt lgkmcnt(%d)" % nreads(gaps, pos[16])]}
        br = ["s_cbranch_vccnz L2_rc_%s%d" % (tag, x & 3), "L2_rr_%s%d:" % (tag, x & 3)]
        bar = ["s_waitcnt vmcnt(12)"] + ([] if (opt.get("nobar") and not masked) else ["s_barrier"])
        if opt.get("ebr", 1):
            g = max(k for k in gaps if any((y.t if isinstance(y, Ins) else y).startswith("v_cmp_nge") for y in gaps[k]))
            gaps[min(33, g + 1)] += br
            br = []
        if opt.get("ebar") is not None:
            gaps[opt["ebar"]] += bar
            bar = []
        weave(code, mains, gaps, pre)
        put(code, br + bar)
        return code

    def rowmax(code, p, qt, t, tmp):
        b = S(p, qt, 0)
        code.I("v_max3_f32 %s, %s, %s, %s" % (v(t), v(b), v(b + 1), v(b + 2)))
        code.I("v_max3_f32 %s, %s, %s, %s" % (v(t), v(t), v(b + 3), v(b + 4)))
        code.I("v_max3_f32 %s, %s, %s, %s" % (v(t), v(t), v(b + 5), v(b + 6)))
        code.I("v_max_f32 %s, %s, %s" % (v(t), v(t), v(b + 7)))
        for sw in ("v_permlane16_swap_b32", "v_permlane32_swap_b32"):
            code.I("v_mov_b32 %s, %s" % (v(tmp), v(t)))
            code.I("s_nop 1")
            code.I("%s %s, %s" % (sw, v(t), v(tmp)))
            code.I("v_max_f32 %s, %s, %s" % (v(t), v(t), v(tmp)))

    def first():
        c = Code()
        c.L("L2_first")
        for qt in range(2):
            for r in range(4):
                c.I("v_mov_b32 %s, 0" % v(vLL[1][qt] + r))
        c.I("s_sub_u32 %s, %s, %s" % (s(sNU), s(sU1), s(sU0)))
        c.I("s_lshr_b32 %s, %s, 2" % (s(sNU), s(sNU)))
        c.I("s_sub_u32 %s, %s, %s" % (s(sNU), s(sNU), s(sDiag)))
        c.I("s_cmp_eq_u32 %s, 0" % s(sNext))
        c.I("s_cselect_b32 %s, 0x%x, 0" % (s(sNxt), HUGE))
        c.I("s_cmp_eq_u32 %s, 2" % s(sMode))
        c.I("s_cselect_b32 %s, 2, 0" % s(sEvt))
        c.I("s_mul_i32 %s, %s, %s" % (s(sEvt), s(sEvt), "0" if opt.get("noev") else s(sFast)))
        c.I("s_cmp_eq_u32 %s, 2" % s(sHave))
        c.I("s_cselect_b32 %s, 99, %s" % (s(sEvt), s(sEvt)))
        c.I("s_cmp_eq_u32 %s, 0" % s(sNU))
        c.I("s_cselect_b32 %s, 0, 0x1000" % s(sT))
        c.I("v_add_u32 %s, %s, %s" % (v(vThrP), s(sT), v(vThr)))
        for qt in range(2):
            cm, se = maskops(0, qt, vThrP)
            put(c, cm + se)
        for qt in range(2):
            rowmax(c, 0, qt, vT + 2 + qt, vT + 4)
        for qt in range(2):
            for r in range(4):
                c.I("v_sub_f32 %s, 0, %s" % (v(vNM + 4 * qt + r), v(vT + 2 + qt)))
            for e in range(8):
                c.I("v_sub_f32 %s, %s, %s" % (v(S(0, qt, 0, e)), v(S(0, qt, 0, e)), v(vT + 2 + qt)))
        put(c, softmax(0, 0))
        ST.mark(c, 'a2')
        c.I("s_cmp_eq_u32 %s, 0" % s(sNU))
        c.I("s_cbranch_scc1 L2_M_entry")
        c.I("s_branch L2_U_entry")
        return c

    def rare(p):
        c = Code()
        c.L("L2_rare%d" % p)
        c.I("s_nop 7")
        c.I("s_nop 7")
        for qt in range(2):
            d, f, tmp = vT + 2 + 2 * qt, vT + 3 + 2 * qt, vT + 6
            rowmax(c, p, qt, d, tmp)
            c.I("v_log_f32 %s, %s" % (v(tmp), v(vLL[1 - p][qt])))
            c.I("s_nop 0")
            c.I("v_max_f32 %s, %s, %s" % (v(d), v(d), v(tmp)))
            c.I("v_exp_f32 %s, -%s" % (v(f), v(d)))
            for r in range(4):
                c.I("v_sub_f32 %s, %s, %s" % (v(vNM + 4 * qt + r), v(vNM + 4 * qt + r), v(d)))
            for r in range(4):
                c.I("v_mul_f32 %s, %s, %s" % (v(vLL[1 - p][qt] + r), v(vLL[1 - p][qt] + r), v(f)))
            for e in range(8):
                c.I("v_sub_f32 %s, %s, %s" % (v(S(p, qt, 0, e)), v(S(p, qt, 0, e)), v(d)))
            c.I("v_mul_f32 %s, %s, %s" % (v(tmp), s(sT), v(d)))
            for e in range(8):
                c.I("v_sub_f32 %s, %s, %s" % (v(S(1 - p, qt, 0, e)), v(S(1 - p, qt, 0, e)), v(tmp)))
            put(c, softmax(p, qt))
        for dt in range(16):
            for qt in range(2):
                for r in range(4):
                    c.I("v_accvgpr_read_b32 %s, %s" % (v(vX + 4 * qt + r), a(aO + 8 * dt + 4 * qt + r)))
            for qt in range(2):
                for r in range(4):
                    c.I("v_mul_f32 %s, %s, %s" % (v(vX + 4 * qt + r), v(vX + 4 * qt + r), v(vT + 3 + 2 * qt)))
            for qt in range(2):
                for r in range(4):
                    c.I("v_accvgpr_write_b32 %s, %s" % (a(aO + 8 * dt + 4 * qt + r), v(vX + 4 * qt + r)))
        c.I("s_nop 1")
        c.I(ones(p, 0))
        c.I(ones(p, 1))
        c.I("s_nop 7")
        c.I("s_setpc_b64 %s" % s(sRet, 2))
        return c

    def rarecall(tag, k):
        c = Code()
        c.L("L2_rc_%s%d" % (tag, k))
        c.I("s_mov_b32 %s, %s" % (s(sT), "0" if (tag == "M" and k == 3) else "1.0"))
        c.I("s_call_b64 %s, L2_rare%d" % (s(sRet, 2), k & 1))
        c.I("s_branch L2_rr_%s%d" % (tag, k))
        return c

    def partner_loads(c):
        c.I("s_lshl_b32 %s, %s, 10" % (s(sT2), s(sPair)))
        c.I("s_add_u32 %s, %s, 0x%x" % (s(sT2), s(sT2), WS_STAT))
        c.I("buffer_load_dwordx4 %s, %s, %s, %s offen" % (v(vC + 8, 4), v(vLn), s(sWS, 4), s(sT2)))
        c.I("s_lshl_b32 %s, %s, 14" % (s(sT2), s(sPair)))
        c.I("s_add_u32 %s, %s, 0x%x" % (s(sT2), s(sT2), WS_PART))
        for i in range(16):
            c.I("buffer_load_dwordx4 %s, %s, %s, %s offen offset:%d" % (v(vB + 4 * i, 4), v(vLn), s(sWS, 4), s(sT2), (i & 3) * 1024))
            if i & 3 == 3 and i < 15:
                c.I("s_add_u32 %s, %s, 0x1000" % (s(sT2), s(sT2)))

    def publish(lab):
        return ["v_mov_b32 %s, 1" % v(vT + 10), "v_mov_b32 %s, 0" % v(vT + 11), "s_mov_b32 %s, 0" % s(sHave)] + signal(lab, vT + 10, vT + 11, sFl)

    def loopend(which=None):
        c = Code()
        c.I("s_sub_u32 %s, %s, 1" % (s(sNU), s(sNU)))
        c.I("s_cmp_gt_u32 %s, %s" % (s(sNU), s(sEvt)))
        c.I("s_cbranch_scc1 L2_U_top")
        c.I("s_cmp_eq_u32 %s, 2" % s(sHave))
        c.I("s_cbranch_scc0 L2_nopub")
        if which in (None, 3):
            put(c, publish("L2_ps"))
            c.I("s_mov_b32 %s, 0" % s(sEvt))
            c.I("s_cmp_lg_u32 %s, 0" % s(sNU))
            c.I("s_cbranch_scc1 L2_U_top")
        c.L("L2_nopub")
        c.I("s_cmp_eq_u32 %s, 0" % s(sNU))
        c.I("s_cbranch_scc1 L2_U_exit")
        c.I("s_cmp_eq_u32 %s, 2" % s(sNU))
        c.I("s_cbranch_scc0 L2_ev1")
        if which in (None, 2):
            c.I("v_mov_b32 %s, 0" % v(vT + 1))
            c.I("s_nop 0")
            c.I("buffer_load_dword %s, %s, %s, %s offen sc1" % (v(vPoll), v(vT + 1), s(sWS, 4), s(sFl)))
            c.I("s_branch L2_U_top")
        c.L("L2_ev1")
        if which in (None, 1):
            c.I("v_cmp_ne_u32 vcc, 1, %s" % v(vPoll))
            c.I("s_cbranch_vccnz L2_U_top")
            partner_loads(c)
            c.I("s_mov_b32 %s, 1" % s(sHave))
            c.I("s_branch L2_U_top")
        c.L("L2_U_exit")
        c.I("s_cmp_eq_u32 %s, 0" % s(sDiag))
        c.I("s_cbranch_scc1 L2_fin")
        return c

    def norm_groups(dst, merge, store):
        out = []
        for n in range(16):
            qt, ks = n >> 3, n & 7
            e = vX + 8 * (n & 1)
            g = ["v_accvgpr_read_b32 %s, %s" % (v(e + k), a(aO + 8 * (2 * ks + (k >> 2)) + 4 * qt + (k & 3))) for k in range(8)]
            g += ["v_pk_mul_f32 %s, %s, %s" % (v(e + 2 * k, 2), v(e + 2 * k, 2), v(vC + 2 * qt, 2)) for k in range(4)]
            if merge:
                for k in range(4):
                    t = vT + 6 + 2 * (k & 1)
                    g.append("v_lshlrev_b32 %s, 16, %s" % (v(t), v(vB + 4 * n + k)))
                    g.append("v_and_b32 %s, 0xffff0000, %s" % (v(t + 1), v(vB + 4 * n + k)))
                    g.append("v_pk_fma_f32 %s, %s, %s, %s" % (v(e + 2 * k, 2), v(t, 2), v(vC + 4 + 2 * qt, 2), v(e + 2 * k, 2)))
            d = dst(n)
            g += ["v_cvt_pk_bf16_f32 %s, %s, %s" % (v(d + k), v(e + 2 * k), v(e + 2 * k + 1)) for k in range(4)]
            if store:
                g.append("buffer_store_dwordx4 %s, %s, %s, %s offen offset:%d sc1" % (v(d, 4), v(vLn), s(sWS, 4), s(sD0), (n & 3) * 1024))
                if n & 3 == 3:
                    g.append("s_add_u32 %s, %s, 0x1000" % (s(sD0), s(sD0)))
            out.append(g)
        return out

    def rcp_l(c):
        for qt in range(2):
            c.I("v_rcp_f32 %s, %s" % (v(vC + 2 * qt), v(vLL[1][qt])))
        c.I("s_nop 0")
        for qt in range(2):
            c.I("v_mov_b32 %s, %s" % (v(vC + 2 * qt + 1), v(vC + 2 * qt)))

    def cont(x):
        c = Code()
        c.I("s_cmp_eq_u32 %s, 0" % s(sNext))
        c.I("s_cbranch_scc1 L2_fin")
        c += H2(x, False, nosm=True)
        rcp_l(c)
        c.I("s_lshl_b32 %s, %s, 14" % (s(sD0), s(sPair)))
        c.I("s_add_u32 %s, %s, 0x%x" % (s(sD0), s(sD0), WS_PART))
        c.I("v_mov_b32 %s, %s" % (v(vC + 8), v(vNM)))
        c.I("v_mov_b32 %s, %s" % (v(vC + 9), v(vNM + 4)))
        c.I("v_mov_b32 %s, %s" % (v(vC + 10), v(vLL[1][0])))
        c.I("v_mov_b32 %s, %s" % (v(vC + 11), v(vLL[1][1])))
        c.I("s_lshl_b32 %s, %s, 10" % (s(sT2), s(sPair)))
        c.I("s_add_u32 %s, %s, 0x%x" % (s(sT2), s(sT2), WS_STAT))
        c.I("buffer_store_dwordx4 %s, %s, %s, %s offen sc1" % (v(vC + 8, 4), v(vLn), s(sWS, 4), s(sT2)))
        for g in norm_groups(lambda n: vPk + 4 * (n & 3), False, True):
            put(c, g)
        for i in range(128):
            c.I("v_accvgpr_write_b32 %s, 0" % a(aO + i))
        for k in range(64):
            c.I("v_accvgpr_write_b32 %s, %s" % (a(aQ + k), v(vB + k)))
        c.I("s_mov_b32 %s, %s" % (s(sQb), s(sI)))
        c.I("s_mov_b32 %s, 0" % s(sU0))
        c.I("s_lshl_b32 %s, %s, 2" % (s(sU1), s(sI)))
        c.I("s_add_u32 %s, %s, 4" % (s(sU1), s(sU1)))
        c.I("s_mov_b32 %s, 0" % s(sMode))
        c.I("s_mov_b32 %s, 0" % s(sNext))
        c.I("s_mov_b32 %s, 2" % s(sHave))
        c.I("s_branch L2_first")
        return c

    def fin1():
        c = Code()
        c.L("L2_fin")
        ST.mark(c, 'fin')
        q = pv(1)
        d1 = dmaO(1)
        gaps = {i: [] for i in range(32)}
        for k, x in enumerate(d1):
            gaps[1 + 2 * k].append(x)
        weave(c, q, gaps, {0: ["s_waitcnt lgkmcnt(8)"], 16: ["s_waitcnt lgkmcnt(0)"]})
        c.I("s_waitcnt vmcnt(8)")
        c.I("s_barrier")
        for ch in (2, 3, 4):
            put(c, dmaO(ch))
        c.I("s_cmp_eq_u32 %s, 2" % s(sMode))
        c.I("s_cbranch_scc1 L2_merge")
        return c

    def fin_plain():
        c = Code()
        rcp_l(c)
        for g in norm_groups(lambda n: vB + 4 * n, False, False):
            put(c, g)
        c.I("s_branch L2_oproj")
        return c

    def fin_merge(have):
        c = Code()
        c.L("L2_merge")
        c.I("s_cmp_eq_u32 %s, 1" % s(sHave))
        c.I("s_cbranch_scc1 L2_have")
        if not have:
            c.I("v_mov_b32 %s, 0" % v(vT + 1))
            poll_loop(c, "L2_pt", vPoll, vT + 1, sFl, sCnt)
            put(c, acquire("L2_pa"))
            partner_loads(c)
            c.I("s_waitcnt vmcnt(0)")
        c.L("L2_have")
        for qt in range(2):
            nA, nB, lA, lB = vNM + 4 * qt, vC + 8 + qt, vLL[1][qt], vC + 10 + qt
            t0, t1, t2 = vT + 2, vT + 3, vT + 4
            c.I("v_min_f32 %s, %s, %s" % (v(t0), v(nA), v(nB)))
            c.I("v_sub_f32 %s, %s, %s" % (v(t1), v(t0), v(nA)))
            c.I("v_sub_f32 %s, %s, %s" % (v(t2), v(t0), v(nB)))
            c.I("v_exp_f32 %s, %s" % (v(t1), v(t1)))
            c.I("v_exp_f32 %s, %s" % (v(t2), v(t2)))
            c.I("s_nop 0")
            c.I("v_mul_f32 %s, %s, %s" % (v(t2), v(t2), v(lB)))
            c.I("v_fma_f32 %s, %s, %s, %s" % (v(t0), v(t1), v(lA), v(t2)))
            c.I("v_rcp_f32 %s, %s" % (v(t0), v(t0)))
            c.I("s_nop 0")
            for k in range(2):
                c.I("v_mul_f32 %s, %s, %s" % (v(vC + 2 * qt + k), v(t1), v(t0)))
                c.I("v_mul_f32 %s, %s, %s" % (v(vC + 4 + 2 * qt + k), v(t2), v(t0)))
        for g in norm_groups(lambda n: vB + 4 * n, True, False):
            put(c, g)
        return c

    def oproj():
        c = Code()
        c.L("L2_oproj")
        ST.mark(c, 'op')
        c.I("s_lshl_b32 %s, %s, 2" % (s(sT), s(sQb)))
        c.I("s_add_u32 %s, %s, %s" % (s(sT), s(sT), s(sW)))
        c.I("s_lshl_b32 %s, %s, 5" % (s(sT), s(sT)))
        c.I("s_add_u32 %s, %s, %s" % (s(sT), s(sT), s(sHead)))
        c.I("s_mul_i32 %s, %s, %d" % (s(sD0), s(sT), 14 * 1024))
        c.I("s_add_u32 %s, %s, 0x%x" % (s(sD0), s(sD0), WS_PO))
        c.I("s_add_u32 %s, %s, %d" % (s(sT2), s(sD0), 16 * 14 * 1024))
        c.I("s_lshl_b32 %s, %s, 7" % (s(sFl), s(sQb)))
        c.I("s_lshl_b32 %s, %s, 2" % (s(sT), s(sHead)))
        c.I("s_add_u32 %s, %s, %s" % (s(sFl), s(sFl), s(sT)))
        c.I("s_add_u32 %s, %s, 0x%x" % (s(sFl), s(sFl), WS_FLAG + FG_PO * 128))

        def setaddr(ch):
            return ["v_add_u32 %s, 0x%x, %s" % (v(vWA + k), CH[ch] * 32768, v(vWB + k)) for k in range(2)]

        def rd(ch, f):
            ks, nt = f >> 2, f & 3
            return [Ins("ds_read_b64_tr_b16 %s, %s offset:%d" % (a(aF + 4 * (f & 15) + 2 * r, 2), v(vWA + (nt & 1)), ks * 4096 + r * 2048 + (nt >> 1) * 256),
                        {"r": (("C", CH[ch]), ("O", ch))}) for r in range(2)]

        def drain(ch):
            out = []
            ac = vAcc[ch & 1]
            for qt in range(2):
                for pp in range(2):
                    pk = vPk + 4 * (2 * qt + pp)
                    for k in range(4):
                        src = ac + 8 * (2 * pp + (k >> 1)) + 4 * qt + 2 * (k & 1)
                        out.append("v_cvt_pk_bf16_f32 %s, %s, %s" % (v(pk + k), v(src), v(src + 1)))
                    out.append("buffer_store_dwordx4 %s, %s, %s, %s offen offset:%d sc1" % (v(pk, 4), v(vLn), s(sWS, 4), s(sT2 if qt else sD0), ((2 * ch + pp) & 3) * 1024))
            if ch & 1:
                out.append("s_add_u32 %s, %s, 0x1000" % (s(sD0), s(sD0)))
                out.append("s_add_u32 %s, %s, 0x1000" % (s(sT2), s(sT2)))
            return out

        put(c, setaddr(0))
        for f in range(16):
            c += rd(0, f)
        for ch in range(7):
            for hf in range(2):
                mains = []
                for f in range(16 * hf, 16 * hf + 16):
                    ks, nt = f >> 2, f & 3
                    for qt in range(2):
                        d = v(vAcc[ch & 1] + 8 * nt + 4 * qt, 4)
                        mains.append(M16 % (d, a(aF + 4 * (f & 15), 4), v(vB + 32 * qt + 4 * ks, 4), d if ks else "0"))
                streams, fixed = [], {}
                if hf == 1 and ch < 6:
                    c.append(Ins("@need", {"need": [("O", ch + 1)]}))
                    c.I("s_barrier")
                    fixed[0] = setaddr(ch + 1)
                if hf == 0 or ch < 6:
                    src = (ch, 16) if hf == 0 else (ch + 1, 0)
                    streams.append([(x, 2 * f + 1 + k, 2 * f + 1, min(31, 2 * f + 3)) for f in range(16) for k, x in enumerate(rd(src[0], src[1] + f))])
                if hf == 0 and ch > 0:
                    dr = drain(ch - 1)
                    streams.append([(x, 5 + k * 26.0 / len(dr), 5, 31) for k, x in enumerate(dr)])
                if hf == 1 and ch in (1, 2):
                    dd = [x for x in dmaO(ch + 4) if x != "s_nop 0"]
                    streams.append([(x, 1 + 2 * k, 1 + 2 * k, 31) for k, x in enumerate(dd)])
                gaps, load = schedule(32, 8, streams, fixed=fixed)
                weave(c, mains, gaps)
        c.I("s_nop 7")
        put(c, drain(6))
        ST.mark(c, 'o1')
        if fused_next:
            c.I("v_mov_b32 %s, 1" % v(vT))
            c.I("v_mov_b32 %s, 0" % v(vT + 1))
            c.I("s_waitcnt vmcnt(0)")
            c.I("s_barrier")
            c.I("buffer_store_dword %s, %s, %s, %s offen sc1" % (v(vT), v(vT + 1), s(sWS, 4), s(sFl)))
            ST.mark(c, 'o2')
        pre = Code()
        for ch in (1, 2, 3, 4):
            put(pre, dmaO(ch))
        w = autowait(Code(pre + c))
        return Code(w[len(pre):])

    def group(g, masked, entry):
        tag = "M" if masked else "U"
        code = Code()
        for k in range(4):
            x = 4 * g + k
            if not (k == 0 and entry):
                code += H2(x, masked)
            if k == 0:
                code.L("L2_%s_entry" % tag)
            code += H1(x, masked, tag)
            if masked and k == 1:
                code.I("s_cmp_eq_u32 %s, 2" % s(sHave))
                code.I("s_cbranch_scc1 L2_pub2")
                code.L("L2_pub2r")
        return code

    yield early
    OOL.L("L2_pub2")
    put(OOL, publish("L2_ps2"))
    OOL.I("s_branch L2_pub2r")
    ent, trA, trB = entry()
    out = Code(ent)
    out += first()
    out.I(".p2align 6")
    out.L("L2_U_top")
    out += group(1, False, False)
    out += loopend()
    out += group(1, True, False)
    out += cont(8)
    for tag in "UM":
        for k in range(4):
            out += rarecall(tag, k)
    out += rare(0)
    out += rare(1)
    out += fin1()
    out += fin_plain()
    out += fin_merge(False)
    op = oproj()
    out += op

    strip = lambda code: [x.t for x in code]
    for g in (2, 3):
        assert strip(group(g, False, False)) == strip(group(1, False, False))
        assert strip(group(g, True, False)) == strip(group(1, True, False))
    G = lambda g, m, e=False: list(group(g, m, e))
    t1 = trA + list(first()) + G(0, False, True) + list(loopend(2)) + G(1, False) + list(loopend(1)) + G(2, False) + list(loopend(0)) \
        + list(fin1()) + list(fin_merge(True)) + list(op)
    t2 = trB + list(first()) + G(0, False, True) + list(loopend(0)) + G(1, True) + list(cont(8)) + list(first()) + G(2, True, True) \
        + list(fin1()) + list(fin_plain()) + list(op)
    t3 = trA + list(first()) + G(0, True, True) + list(fin1()) + list(fin_merge(False)) + list(op)
    traces = [t1, t2, t3]
    for k in range(2):
        tr = trA + list(first())
        for x in group(0, False, True):
            tr.append(x)
            if x.t == "s_cbranch_vccnz L2_rc_U%d" % (k + 1):
                tr += list(rare((k + 1) & 1))
        tr += G(1, False)
        traces.append(tr)
    yield out, traces
```

```python
from asmlib import *
from layout import *
from common import *
import proj
from proj import put


def rbdecode(c, sRb, sMem):
    c.I("s_and_b32 %s, s2, 7" % s(sRb))
    c.I("s_lshl_b32 %s, %s, 1" % (s(sRb), s(sRb)))
    c.I("s_lshr_b32 %s, s2, 7" % s(sMem))
    c.I("s_add_u32 %s, %s, %s" % (s(sRb), s(sRb), s(sMem)))
    c.I("s_bfe_u32 %s, s2, 0x40003" % s(sMem))


def gen(ST, opt, fused_prev, fused_next, pre_next=()):
    LB = 98304
    V = Alloc(4, 216)
    vD = V(112, 4)
    vA = V(56, 4)
    vL, vPo, vXo, vWr, vSt = V(), V(), V(), V(), V()
    vXr = V(8, 4)
    vH = V(8, 4)
    vT = V(12, 4)
    sX = 12
    sRb, sMem, sP0, sX0, sH0, sFl, sCnt = range(32, 39)
    c = Code()
    c.I("s_load_dwordx2 %s, s[0:1], 0" % s(sX, 2))
    rbdecode(c, sRb, sMem)
    L = v(vL)
    c.I("v_and_b32 %s, 63, v0" % L)
    c.I("v_and_b32 %s, 7, %s" % (v(vT), L))
    c.I("v_bfe_u32 %s, %s, 3, 2" % (v(vT + 1), L))
    c.I("v_lshrrev_b32 %s, 5, %s" % (v(vT + 2), L))
    c.I("v_lshlrev_b32 %s, 4, %s" % (v(vPo), v(vT)))
    c.I("v_lshl_add_u32 %s, %s, 8, %s" % (v(vPo), v(vT + 1), v(vPo)))
    c.I("v_lshl_add_u32 %s, %s, 10, %s" % (v(vPo), v(vT + 2), v(vPo)))
    c.I("v_mul_u32_u24 %s, 896, %s" % (v(vXo), v(vT)))
    c.I("v_lshl_add_u32 %s, %s, 3, %s" % (v(vXo), v(vT + 1), v(vXo)))
    c.I("v_lshl_add_u32 %s, %s, 6, %s" % (v(vXo), v(vT + 2), v(vXo)))
    c.I("v_lshlrev_b32 %s, 3, %s" % (v(vSt), v(vT)))
    c.I("v_add_u32 %s, %d, %s" % (v(vSt), LB + 57344, v(vSt)))
    c.I("v_lshlrev_b32 %s, 4, %s" % (v(vWr), L))
    c.I("v_add_u32 %s, %d, %s" % (v(vWr), LB, v(vWr)))
    c.I("s_lshl_b32 %s, %s, 3" % (s(sT), s(sRb)))
    c.I("s_lshr_b32 %s, %s, 1" % (s(sT2), s(sMem)))
    c.I("s_add_u32 %s, %s, %s" % (s(sT), s(sT), s(sT2)))
    c.I("s_and_b32 %s, %s, 1" % (s(sT2), s(sMem)))
    c.I("s_lshl_b32 %s, %s, 7" % (s(sT2), s(sT2)))
    c.I("s_mul_i32 %s, %s, %d" % (s(sH0), s(sT), 14 * 1024))
    c.I("s_add_u32 %s, %s, %s" % (s(sH0), s(sH0), s(sT2)))
    c.I("s_lshl_b32 %s, %s, 2" % (s(sT), s(sT)))
    c.I("s_add_u32 %s, %s, %s" % (s(sT), s(sT), s(sW)))
    c.I("s_mul_i32 %s, %s, %d" % (s(sP0), s(sT), 4 * 14 * 1024))
    c.I("s_add_u32 %s, %s, %s" % (s(sP0), s(sP0), s(sT2)))
    c.I("s_add_u32 %s, %s, 0x%x" % (s(sP0), s(sP0), WS_PO))
    c.I("s_lshl_b32 %s, %s, 11" % (s(sT), s(sW)))
    c.I("s_add_u32 %s, %s, %s" % (s(sH0), s(sH0), s(sT)))
    c.I("s_add_u32 %s, %s, 0x%x" % (s(sH0), s(sH0), WS_HN))
    c.I("s_lshl_b32 %s, %s, 4" % (s(sT), s(sRb)))
    c.I("s_add_u32 %s, %s, %s" % (s(sT), s(sT), s(sMem)))
    c.I("s_mul_i32 %s, %s, %d" % (s(sX0), s(sT), 8 * 896))
    c.I("s_lshl_b32 %s, %s, 7" % (s(sT), s(sW)))
    c.I("s_add_u32 %s, %s, %s" % (s(sX0), s(sX0), s(sT)))
    c.I("s_waitcnt lgkmcnt(0)")
    srd_fin(c, sX, 2048 * 896)
    for r in range(2):
        for k in range(2):
            c.I("buffer_load_dwordx2 %s, %s, %s, %s offen offset:%d" % (v(vXr + 4 * r + 2 * k, 2), v(vXo), s(sX, 4), s(sX0), r * 512 + k * 32))
    put(c, pre_next)
    if fused_prev:
        c.I("s_lshl_b32 %s, %s, 7" % (s(sFl), s(sRb)))
        c.I("s_add_u32 %s, %s, 0x%x" % (s(sFl), s(sFl), WS_FLAG + FG_PO * 128))
        c.I("v_min_u32 %s, 15, %s" % (v(vT + 3), L))
        c.I("v_lshlrev_b32 %s, 2, %s" % (v(vT + 3), v(vT + 3)))
        poll_loop(c, "L3_po", vT + 4, vT + 3, sFl, sCnt)
    ST.mark(c, 'r0')
    for hh in range(4):
        for i in range(7):
            c.I("buffer_load_dwordx4 %s, %s, %s, %s offen offset:%d sc1" % (v(vD + 4 * (hh * 7 + i), 4), v(vPo), s(sWS, 4), s(sP0), (i & 1) * 2048))
            if i & 1 or i == 6:
                c.I("s_add_u32 %s, %s, %d" % (s(sP0), s(sP0), 4096 if i < 6 else 2048))
    for hh in range(4):
        for i in range(7):
            for k in range(4):
                x = vD + 4 * (hh * 7 + i) + k
                d = vA + 8 * i + 2 * k
                if hh == 0:
                    c.I("v_lshlrev_b32 %s, 16, %s" % (v(d), v(x)))
                    c.I("v_and_b32 %s, 0xffff0000, %s" % (v(d + 1), v(x)))
                else:
                    t = vT + 4 + 2 * (k & 1)
                    c.I("v_lshlrev_b32 %s, 16, %s" % (v(t), v(x)))
                    c.I("v_and_b32 %s, 0xffff0000, %s" % (v(t + 1), v(x)))
                    c.I("v_pk_add_f32 %s, %s, %s" % (v(d, 2), v(d, 2), v(t, 2)))
    ST.mark(c, 'r1')
    c.I("s_mul_i32 %s, %s, 14336" % (s(sT), s(sW)))
    c.I("v_add_u32 %s, %s, %s" % (v(vT), s(sT), v(vWr)))
    for i in range(7):
        for hf in range(2):
            c.I("ds_write_b128 %s, %s offset:%d" % (v(vT), v(vA + 8 * i + 4 * hf, 4), i * 2048 + hf * 1024))
    c.I("s_lshl_b32 %s, %s, 11" % (s(sT), s(sW)))
    c.I("v_add_u32 %s, %s, %s" % (v(vWr), s(sT), v(vWr)))
    sm, sq, one = vT, vT + 2, vT + 8
    c.I("v_mov_b32 %s, 0x3f803f80" % v(one))
    c.I("v_mov_b32 %s, 0" % v(sm))
    c.I("v_mov_b32 %s, 0" % v(sq))
    c.I("s_waitcnt lgkmcnt(0)")
    c.I("s_barrier")

    def rnd(r):
        q = Code()
        for w in range(4):
            for hf in range(2):
                q.I("ds_read_b128 %s, %s offset:%d" % (v(vD + 8 * w + 4 * hf, 4), v(vWr), w * 14336 + r * 8192 + hf * 1024))
        for k in range(4):
            q.I("v_pk_add_f32 %s, %s, %s" % (v(vD + 2 * k, 2), v(vD + 2 * k, 2), v(vD + 8 + 2 * k, 2)))
            q.I("v_pk_add_f32 %s, %s, %s" % (v(vD + 16 + 2 * k, 2), v(vD + 16 + 2 * k, 2), v(vD + 24 + 2 * k, 2)))
        for k in range(4):
            q.I("v_pk_add_f32 %s, %s, %s" % (v(vD + 2 * k, 2), v(vD + 2 * k, 2), v(vD + 16 + 2 * k, 2)))
        for k in range(4):
            t = vD + 32
            q.I("v_cvt_pk_bf16_f32 %s, %s, %s" % (v(t), v(vD + 2 * k), v(vD + 2 * k + 1)))
            q.I("v_lshlrev_b32 %s, 16, %s" % (v(t + 2), v(t)))
            q.I("v_and_b32 %s, 0xffff0000, %s" % (v(t + 3), v(t)))
            q.I("v_lshlrev_b32 %s, 16, %s" % (v(t + 4), v(vXr + 4 * r + k)))
            q.I("v_and_b32 %s, 0xffff0000, %s" % (v(t + 5), v(vXr + 4 * r + k)))
            q.I("v_pk_add_f32 %s, %s, %s" % (v(t + 2, 2), v(t + 2, 2), v(t + 4, 2)))
            q.I("v_cvt_pk_bf16_f32 %s, %s, %s" % (v(vH + 4 * r + k), v(t + 2), v(t + 3)))
        for k in range(4):
            q.I("v_dot2c_f32_bf16 %s, %s, %s" % (v(sm), v(vH + 4 * r + k), v(one)))
            q.I("v_dot2c_f32_bf16 %s, %s, %s" % (v(sq), v(vH + 4 * r + k), v(vH + 4 * r + k)))
        for k in range(2):
            q.I("buffer_store_dwordx2 %s, %s, %s, %s offen offset:%d sc1" % (v(vH + 4 * r + 2 * k, 2), v(vXo), s(sWS, 4), s(sX0), r * 512 + k * 32))
        return q

    c.I("s_add_u32 %s, %s, 0x%x" % (s(sX0), s(sX0), WS_H))
    c += rnd(0)
    c = autowait(c)
    c.I("s_cmp_eq_u32 %s, 3" % s(sW))
    c.I("s_cbranch_scc1 L3_one")
    r1 = autowait(rnd(1))
    d = Code()
    d.L("L3_one")
    d.I("s_nop 2")
    for x in (sm, sq):
        d.I("v_add_f32_dpp %s, %s, %s row_ror:8 row_mask:0xf bank_mask:0xf" % (v(x), v(x), v(x)))
    for sw in ("v_permlane16_swap_b32", "v_permlane32_swap_b32"):
        for x in (sm, sq):
            d.I("v_mov_b32 %s, %s" % (v(x + 1), v(x)))
        d.I("s_nop 1")
        for x in (sm, sq):
            d.I("%s %s, %s" % (sw, v(x), v(x + 1)))
        for x in (sm, sq):
            d.I("v_add_f32 %s, %s, %s" % (v(x), v(x), v(x + 1)))
    d.I("v_mov_b32 %s, %s" % (v(sm + 1), v(sq)))
    d.I("s_lshl_b32 %s, %s, 6" % (s(sT), s(sW)))
    d.I("v_add_u32 %s, %s, %s" % (v(vT + 4), s(sT), v(vSt)))
    d.I("ds_write_b64 %s, %s" % (v(vT + 4), v(sm, 2)))
    d.I("s_waitcnt lgkmcnt(0)")
    d.I("s_barrier")
    for w in range(4):
        d.I("ds_read_b64 %s, %s offset:%d" % (v(vD + 2 * w, 2), v(vSt), 64 * w))
    d.I("s_waitcnt lgkmcnt(0)")
    d.I("v_pk_add_f32 %s, %s, %s" % (v(vD, 2), v(vD, 2), v(vD + 2, 2)))
    d.I("v_pk_add_f32 %s, %s, %s" % (v(vD + 4, 2), v(vD + 4, 2), v(vD + 6, 2)))
    d.I("v_add_f32 %s, %s, %s" % (v(sm), v(vD), v(vD + 4)))
    d.I("v_add_f32 %s, %s, %s" % (v(sq), v(vD + 1), v(vD + 5)))
    proj.ln_scalars(d, sm, sq, sT)
    proj.ln_apply(d, [vH + k for k in range(8)], sm, sq, vT + 4)
    d.I("buffer_store_dwordx4 %s, %s, %s, %s offen sc1" % (v(vH, 4), v(vPo), s(sWS, 4), s(sH0)))
    d.I("s_cmp_eq_u32 %s, 3" % s(sW))
    d.I("s_cselect_b32 %s, 0x40000000, 0" % s(sT))
    d.I("s_add_u32 %s, %s, %s" % (s(sH0), s(sH0), s(sT)))
    d.I("s_add_u32 %s, %s, 0x2000" % (s(sH0), s(sH0)))
    d.I("buffer_store_dwordx4 %s, %s, %s, %s offen sc1" % (v(vH + 4, 4), v(vPo), s(sWS, 4), s(sH0)))
    if fused_next:
        d.I("s_lshl_b32 %s, %s, 7" % (s(sFl), s(sRb)))
        d.I("s_lshl_b32 %s, %s, 2" % (s(sT), s(sMem)))
        d.I("s_add_u32 %s, %s, %s" % (s(sFl), s(sFl), s(sT)))
        d.I("s_add_u32 %s, %s, 0x%x" % (s(sFl), s(sFl), WS_FLAG + FG_HN * 128))
        d.I("v_mov_b32 %s, 1" % v(vT + 8))
        d.I("v_mov_b32 %s, 0" % v(vT + 9))
        d.I("s_waitcnt vmcnt(0)")
        d.I("s_barrier")
        put(d, signal("L3_s", vT + 8, vT + 9, sFl))
    ST.mark(d, 'r2')
    return Code(c + r1 + d), [list(c + r1 + d), list(c + d)]
```

```python
from asmlib import *
from layout import *
from common import *
import proj
from proj import put
from ph3 import rbdecode


def gen(ST, opt, fused_prev, fused_next):
    V = Alloc(4, 256)
    vAcc = V(128, 4)
    V.p = 216
    vOB = V(4)
    vL, vST = V(), V()
    vT = V(8, 4)
    vQB, vQA = V(2), V(2)
    vP = V(16, 4)
    aX, aF = 0, 128
    sG, sU = 40, 44
    sRb, sSl, sOff, sXo, sXo1, sD, sFl, sCnt = range(48, 56)
    slot_of = [0, 1, 2, 3, 4, 5, 6, 7, 8, 9, 0, 1, 2, 3]
    LA = 5

    def dmaW(t):
        return ["s_add_u32 m0, %s, 0x%x" % (s(sW4k), slot_of[t] * 16384)] + \
            [Ins("buffer_load_dwordx4 %s, %s, %s offen offset:%d lds" % (v(vOB + j), s(sU if j & 1 else sG, 4), s(sOff), 1024 * j),
                 {"w": (("S", slot_of[t]), ("G", t), 4)}) for j in range(4)] + \
            ["s_add_u32 %s, %s, %d" % (s(sOff), s(sOff), 32 * 3584)]

    def xload(t):
        out = ["buffer_load_dwordx4 %s, %s, %s, %s offen offset:%d" % (a(aX + 8 * t + 4 * qt, 4), v(vST), s(sWS, 4), s(sXo + qt), (t & 3) * 1024)
               for qt in range(2)]
        if t & 3 == 3:
            out += ["s_add_u32 %s, %s, 0x1000" % (s(sXo + qt), s(sXo + qt)) for qt in range(2)]
        return out

    p = Code()
    p.I("s_load_dwordx2 %s, s[0:1], 56" % s(sG, 2))
    p.I("s_load_dwordx2 %s, s[0:1], 64" % s(sU, 2))
    rbdecode(p, sRb, sSl)
    L = v(vL)
    t0, t1, t2, t3 = vT, vT + 1, vT + 2, vT + 3
    p.I("v_and_b32 %s, 63, v0" % L)
    p.I("v_lshrrev_b32 %s, 4, %s" % (v(t2), L))
    p.I("v_bfe_u32 %s, %s, 2, 2" % (v(t0), L))
    p.I("s_lshl_b32 %s, %s, 3" % (s(sT), s(sW)))
    p.I("v_add_u32 %s, %s, %s" % (v(t1), s(sT), v(t0)))
    p.I("v_mul_u32_u24 %s, 3584, %s" % (v(t1), v(t1)))
    p.I("v_lshl_add_u32 %s, %s, 6, %s" % (v(t1), v(t2), v(t1)))
    p.I("v_and_b32 %s, 3, %s" % (v(t3), L))
    p.I("v_lshl_add_u32 %s, %s, 4, %s" % (v(t1), v(t3), v(t1)))
    p.I("v_xor_b32 %s, 32, %s" % (v(vT + 4), v(t1)))
    for j in range(4):
        p.I("v_add_u32 %s, 0x%x, %s" % (v(vOB + j), 4 * (j >> 1) * 3584 + 4096 - j * 1024, v(vT + 4 if j >> 1 else t1)))
    p.I("v_lshlrev_b32 %s, 11, %s" % (v(t1), v(t2)))
    p.I("v_lshl_add_u32 %s, %s, 6, %s" % (v(t1), v(t0), v(t1)))
    p.I("v_bfe_u32 %s, %s, 4, 1" % (v(t0), L))
    p.I("v_lshl_add_u32 %s, %s, 5, %s" % (v(t1), v(t0), v(t1)))
    p.I("v_lshl_add_u32 %s, %s, 3, %s" % (v(vQB), v(t3), v(t1)))
    p.I("v_xor_b32 %s, 32, %s" % (v(vQB + 1), v(vQB)))
    p.I("v_lshlrev_b32 %s, 4, %s" % (v(vST), L))
    p.I("s_waitcnt lgkmcnt(0)")
    for d in (sG, sU):
        p.I("s_sub_u32 %s, %s, 4096" % (s(d), s(d)))
        p.I("s_subb_u32 %s, %s, 0" % (s(d + 1), s(d + 1)))
        srd_fin(p, d, 448 * 3584 + 4096)
    p.I("s_min_u32 %s, %s, 13" % (s(sT), s(sSl)))
    p.I("s_lshl_b32 %s, %s, 8" % (s(sOff), s(sT)))
    for t_ in range(LA):
        g = dmaW(t_)
        put(p, [g[0], "s_nop 0"] + g[1:])
    yield p, (vOB, vP + 16)

    c = Code()
    c.I("s_cmp_ge_u32 %s, 14" % s(sSl))
    c.I("s_cbranch_scc1 L_end")
    c.I("s_lshl_b32 %s, %s, 2" % (s(sT), s(sRb)))
    c.I("s_add_u32 %s, %s, %s" % (s(sT), s(sT), s(sW)))
    c.I("s_mul_i32 %s, %s, %d" % (s(sXo), s(sT), 28 * 1024))
    c.I("s_add_u32 %s, %s, 0x%x" % (s(sXo), s(sXo), WS_HN))
    c.I("s_add_u32 %s, %s, %d" % (s(sXo1), s(sXo), 14 * 1024))
    c.I("s_mul_i32 %s, %s, %d" % (s(sD), s(sT), 2 * MID_TS))
    c.I("s_lshl_b32 %s, %s, 12" % (s(sT), s(sSl)))
    c.I("s_add_u32 %s, %s, %s" % (s(sD), s(sD), s(sT)))
    c.I("s_add_u32 %s, %s, 0x%x" % (s(sD), s(sD), WS_MID))
    if fused_prev:
        c.I("s_lshl_b32 %s, %s, 7" % (s(sFl), s(sRb)))
        c.I("s_add_u32 %s, %s, 0x%x" % (s(sFl), s(sFl), WS_FLAG + FG_HN * 128))
        c.I("v_min_u32 %s, 15, %s" % (v(vT + 3), L))
        c.I("v_lshlrev_b32 %s, 2, %s" % (v(vT + 3), v(vT + 3)))
        poll_loop(c, "L4_hn", vT + 4, vT + 3, sFl, sCnt)
        put(c, acquire("L4_a"))
    ST.mark(c, 'g0')
    for t_ in range(4):
        put(c, xload(t_))
    sWd, sTo = 56, 60
    c.I("s_load_dwordx2 %s, s[0:1], 72" % s(sWd, 2))
    c.I("s_and_b32 %s, %s, 1" % (s(sTo), s(sRb)))
    c.I("s_mul_i32 %s, %s, 14" % (s(sTo), s(sTo)))
    c.I("s_add_u32 %s, %s, %s" % (s(sTo), s(sTo), s(sSl)))
    c.I("s_lshl_b32 %s, %s, 2" % (s(sTo), s(sTo)))
    c.I("s_add_u32 %s, %s, %s" % (s(sTo), s(sTo), s(sW)))
    c.I("s_mul_i32 %s, %s, %d" % (s(sTo), s(sTo), 14 * 1024))
    c.I("s_waitcnt lgkmcnt(0)")
    srd_fin(c, sWd, 1792 * 896)

    def tw(t):
        if not opt.get("wdl2", True):
            return []
        out = [Ins("buffer_load_dwordx4 %s, %s, %s, %s offen offset:%d" % (v(vP, 4), v(vST), s(sWd, 4), s(sTo), (t & 3) * 1024), {"nodst": True})]
        if t & 3 == 3:
            out.append("s_add_u32 %s, %s, 0x1000" % (s(sTo), s(sTo)))
        return out
    sx = {t_: tw(t_) + (xload(t_ + 4) if t_ + 4 < 14 else []) + (dmaW(t_ + LA) if t_ + LA < 14 else []) for t_ in range(14)}
    proj.proj_main(c, lambda qt, t: a(aX + 8 * t + 4 * qt, 4), vQB, vQA, lambda nt, qt: v(vAcc + 8 * nt + 4 * qt, 4),
                   lambda k, n: a(aF + k, n), 16, slot_of, {}, rstride=8192, step_extra=sx, tagname="G")
    ST.mark(c, 'g1')
    c.I("s_waitcnt vmcnt(0)")
    c.I("s_nop 4")
    n = 0
    for qt in range(2):
        for ks in range(4):
            pk = vP + 4 * (n & 3)
            for k in range(4):
                src = vAcc + 8 * (2 * ks + (k >> 1)) + 4 * qt + 2 * (k & 1)
                c.I("v_pk_mul_f32 %s, %s, %s" % (v(src, 2), v(src, 2), v(src + 64, 2)))
            for k in range(4):
                src = vAcc + 8 * (2 * ks + (k >> 1)) + 4 * qt + 2 * (k & 1)
                c.I("v_cvt_pk_bf16_f32 %s, %s, %s" % (v(pk + k), v(src), v(src + 1)))
            c.I("buffer_store_dwordx4 %s, %s, %s, %s offen offset:%d%s" % (v(pk, 4), v(vST), s(sWS, 4), s(sD), ks * 1024, opt.get("midst", " sc1")))
            n += 1
        if qt == 0:
            c.I("s_add_u32 %s, %s, %d" % (s(sD), s(sD), MID_TS))
    if fused_next:
        c.I("s_lshl_b32 %s, %s, 7" % (s(sFl), s(sRb)))
        c.I("s_lshl_b32 %s, %s, 2" % (s(sT), s(sSl)))
        c.I("s_add_u32 %s, %s, %s" % (s(sFl), s(sFl), s(sT)))
        c.I("s_add_u32 %s, %s, 0x%x" % (s(sFl), s(sFl), WS_FLAG + FG_MID * 128))
        c.I("v_mov_b32 %s, 1" % v(vT))
        c.I("v_mov_b32 %s, 0" % v(vT + 1))
        c.I("s_waitcnt vmcnt(0)")
        c.I("s_barrier")
        put(c, signal("L4_s", vT, vT + 1, sFl))
    ST.mark(c, 'g2')
    w = autowait(Code(p + c))
    yield Code(w[len(p):])
```

```python
from asmlib import *
from layout import *
from common import *
from ph3 import rbdecode
from proj import put as put_

M16 = "v_mfma_f32_16x16x32_bf16 %s, %s, %s, %s"


def gen(ST, opt, fused_prev):
    D = opt.get("D", 8)
    NK = 56
    NS = NK // 4
    TS = MID_TS
    V = Alloc(4, 256)
    vAct = V(16 * D, 4)
    vW = [V(16, 4), V(16, 4)]
    vOW, vLn, vL = V(), V(), V()
    vRW = V(2)
    vT = V(8)
    vRes = V(8, 4)
    vAo = V(4)
    vSum = V(16, 4)
    vIn = V(32, 4)
    vRo, vRd, vWr = V(2), V(), V()
    sWt, sR = 12, 16
    sWs = sWS
    sRb, sCt, sOffW, sOffA, sLw, sFl, sCnt, sBig = range(32, 40)

    c = Code()
    c.I("s_load_dwordx2 %s, s[0:1], 72" % s(sWt, 2))
    c.I("s_load_dwordx2 %s, s[0:1], 80" % s(sR, 2))
    c.I("v_and_b32 %s, 63, v0" % v(vL))
    L = v(vL)
    t0, t1, t2, t3 = vT, vT + 1, vT + 2, vT + 3
    rbdecode(c, sBig, sCt)
    c.I("s_cmp_ge_u32 %s, 14" % s(sCt))
    c.I("s_cbranch_scc1 L_end")
    c.I("s_cmp_ge_u32 %s, 7" % s(sCt))
    c.I("s_cselect_b32 %s, 1, 0" % s(sT))
    c.I("s_cselect_b32 %s, 7, 0" % s(sT2))
    c.I("s_sub_u32 %s, %s, %s" % (s(sCt), s(sCt), s(sT2)))
    c.I("s_lshl_b32 %s, %s, 1" % (s(sRb), s(sBig)))
    c.I("s_add_u32 %s, %s, %s" % (s(sRb), s(sRb), s(sT)))
    c.I("v_lshlrev_b32 %s, 4, %s" % (v(vLn), L))
    for q in range(4):
        c.I("v_add_u32 %s, 0x%x, %s" % (v(vAo + q), q * TS, v(vLn)))
    c.I("v_lshrrev_b32 %s, 5, %s" % (v(t0), L))
    c.I("v_bfe_u32 %s, %s, 2, 2" % (v(t1), L))
    c.I("v_lshl_add_u32 %s, %s, 2, %s" % (v(t1), v(t0), v(t1)))
    c.I("v_mul_u32_u24 %s, 896, %s" % (v(t1), v(t1)))
    c.I("v_bfe_u32 %s, %s, 4, 1" % (v(t2), L))
    c.I("v_lshl_add_u32 %s, %s, 6, %s" % (v(t1), v(t2), v(t1)))
    c.I("v_lshlrev_b32 %s, 1, %s" % (v(t0), v(t0)))
    c.I("v_and_b32 %s, 3, %s" % (v(t3), L))
    c.I("v_xor_b32 %s, %s, %s" % (v(t0), v(t0), v(t3)))
    c.I("v_lshl_add_u32 %s, %s, 4, %s" % (v(vOW), v(t0), v(t1)))
    c.I("v_lshrrev_b32 %s, 4, %s" % (v(t0), L))
    c.I("v_lshlrev_b32 %s, 9, %s" % (v(t0), v(t0)))
    c.I("v_bfe_u32 %s, %s, 2, 2" % (v(t1), L))
    c.I("v_lshl_add_u32 %s, %s, 6, %s" % (v(t0), v(t1), v(t0)))
    c.I("v_lshl_add_u32 %s, %s, 5, %s" % (v(t0), v(t2), v(t0)))
    c.I("v_lshl_add_u32 %s, %s, 3, %s" % (v(t0), v(t3), v(t0)))
    c.I("s_mul_i32 %s, %s, %d" % (s(sLw), s(sW), D * 4096))
    c.I("v_add_u32 %s, %s, %s" % (v(vRW), s(sLw), v(t0)))
    c.I("v_xor_b32 %s, 32, %s" % (v(vRW + 1), v(vRW)))
    c.I("v_and_b32 %s, 7, v0" % v(t0))
    c.I("v_lshrrev_b32 %s, 3, v0" % v(t1))
    c.I("s_lshl_b32 %s, %s, 6" % (s(sT), s(sRb)))
    c.I("v_add_u32 %s, %s, %s" % (v(t2), s(sT), v(t1)))
    c.I("v_mul_u32_u24 %s, 896, %s" % (v(t3), v(t2)))
    c.I("v_lshl_add_u32 %s, %s, 4, %s" % (v(t3), v(t0), v(t3)))
    c.I("s_lshl_b32 %s, %s, 7" % (s(sT), s(sCt)))
    c.I("v_add_u32 %s, %s, %s" % (v(vRo), s(sT), v(t3)))
    c.I("v_add_u32 %s, %d, %s" % (v(vRo + 1), 32 * 896, v(vRo)))
    c.I("v_and_b32 %s, 15, %s" % (v(vT + 4), v(t1)))
    c.I("v_lshrrev_b32 %s, 1, %s" % (v(t3), v(t0)))
    c.I("v_mul_u32_u24 %s, 4416, %s" % (v(t3), v(t3)))
    c.I("v_lshl_add_u32 %s, %s, 4, %s" % (v(t3), v(vT + 4), v(t3)))
    c.I("v_and_b32 %s, 1, %s" % (v(t0), v(t0)))
    c.I("v_mul_u32_u24 %s, 544, %s" % (v(t0), v(t0)))
    c.I("v_lshrrev_b32 %s, 4, %s" % (v(t1), v(t1)))
    c.I("v_mul_u32_u24 %s, 1088, %s" % (v(t1), v(t1)))
    c.I("v_add3_u32 %s, %s, %s, %s" % (v(vRd), v(t3), v(t0), v(t1)))
    c.I("v_lshrrev_b32 %s, 4, %s" % (v(t0), L))
    c.I("v_mul_u32_u24 %s, 272, %s" % (v(t0), v(t0)))
    c.I("v_and_b32 %s, 15, %s" % (v(t1), L))
    c.I("v_lshl_add_u32 %s, %s, 4, %s" % (v(t0), v(t1), v(t0)))
    c.I("s_mul_i32 %s, %s, 17664" % (s(sT), s(sW)))
    c.I("v_add_u32 %s, %s, %s" % (v(vWr), s(sT), v(t0)))
    c.I("s_waitcnt lgkmcnt(0)")
    srd_fin(c, sWt, NK * 32 * 896)
    srd_fin(c, sR, 2048 * 896)
    c.I("s_mul_i32 %s, %s, %d" % (s(sOffW), s(sW), NS * 32 * 896))
    c.I("s_lshl_b32 %s, %s, 7" % (s(sT), s(sCt)))
    c.I("s_add_u32 %s, %s, %s" % (s(sOffW), s(sOffW), s(sT)))
    c.I("s_mul_i32 %s, %s, %d" % (s(sOffA), s(sRb), 4 * TS))
    c.I("s_mul_i32 %s, %s, %d" % (s(sT), s(sW), NS * 1024))
    c.I("s_add_u32 %s, %s, %s" % (s(sOffA), s(sOffA), s(sT)))
    c.I("s_add_u32 %s, %s, 0x%x" % (s(sOffA), s(sOffA), WS_MID))

    def issue(st):
        sl = st % D
        out = []
        for j in range(4):
            out.append("s_add_u32 m0, %s, 0x%x" % (s(sLw), sl * 4096 + j * 1024))
            if not opt.get("noact"):
              out.append("buffer_load_dwordx4 %s, %s, %s, %s offen offset:%d" % (v(vAct + 16 * sl + 4 * j, 4), v(vAo + j), s(sWs, 4), s(sOffA), (st & 3) * 1024))
            if opt.get("noact"):
              out.append("s_nop 0")
            if not opt.get("now"):
              out.append(Ins("buffer_load_dwordx4 %s, %s, %s offen lds" % (v(vOW), s(sWt, 4), s(sOffW)), {"w": (sl, ("D", st), 4)}))
            out.append("s_add_u32 %s, %s, %d" % (s(sOffW), s(sOffW), 8 * 896))
        if st & 3 == 3:
            out.append("s_add_u32 %s, %s, 0x1000" % (s(sOffA), s(sOffA)))
        return out

    def rd(st):
        sl = st % D
        return [Ins("ds_read_b64_tr_b16 %s, %s offset:%d" % (v(vW[st & 1] + 4 * nt + 2 * r, 2), v(vRW + (nt & 1)), sl * 4096 + r * 2048 + (nt >> 1) * 256),
                    {"r": (sl, ("D", st)), "private": True}) for nt in range(4) for r in range(2)]

    def put(lst):
        for x in lst:
            c.append(x if isinstance(x, Ins) else Ins(x))

    if fused_prev:
        c.I("s_lshl_b32 %s, %s, 7" % (s(sFl), s(sBig)))
        c.I("s_add_u32 %s, %s, 0x%x" % (s(sFl), s(sFl), WS_FLAG + FG_MID * 128))
        c.I("v_min_u32 %s, 13, %s" % (v(vT + 3), L))
        c.I("v_lshlrev_b32 %s, 2, %s" % (v(vT + 3), v(vT + 3)))
        wg_wait(c, "L5_m", vT + 4, vT + 3, sFl, sCnt)
        put(acquire("L5_a"))
    ST.mark(c, 'd0')
    for st in range(D - 1):
        put(issue(st))
    c.append(Ins("@need", {"need": [("D", 0)]}))
    put(rd(0))
    for st in range(NS):
        sl = st % D
        mains = []
        for nt in range(4):
            for qt in range(4):
                d = a((nt * 4 + qt) * 4, 4)
                mains.append(M16 % (d, v(vW[st & 1] + 4 * nt, 4), v(vAct + 16 * sl + 4 * qt, 4), d if st else "0"))
        gaps = {i: [] for i in range(16)}
        if st + D - 1 < NS:
            for k, x in enumerate(issue(st + D - 1)):
                gaps[k // 2].append(x)
        if st == NS - 3:
            gaps[0].append("s_mov_b32 %s, 0x%x" % (s(sT), WS_H))
            for i in range(2):
                gaps[1 + i].append("buffer_load_dwordx4 %s, %s, %s, %s offen" % (v(vRes + 4 * i, 4), v(vRo + i), s(sWs, 4), s(sT)))
        if st + 1 < NS:
            gaps[9].append(Ins("@need", {"need": [("D", st + 1)]}))
            for k, x in enumerate(rd(st + 1)):
                gaps[9 + k // 2].append(x)
        weave(c, mains, gaps)
    ST.mark(c, 'd1')
    c.I("s_barrier")
    c.I("s_nop 4")
    for nt in range(4):
        for qt in range(4):
            c.I("ds_write_b128 %s, %s offset:%d" % (v(vWr), a((nt * 4 + qt) * 4, 4), nt * 4416 + qt * 1088))
    c.I("s_waitcnt lgkmcnt(0)")
    c.I("s_barrier")
    for i in range(2):
        for w in range(4):
            for e in range(2):
                c.I("ds_read_b128 %s, %s offset:%d" % (v(vIn + 8 * w + 4 * e, 4), v(vRd), w * 17664 + i * 2 * 1088 + e * 272))
        sm = vSum + 8 * i
        for k in range(8):
            c.I("v_add_f32 %s, %s, %s" % (v(sm + k), v(vIn + k), v(vIn + 8 + k)))
        for k in range(8):
            c.I("v_add_f32 %s, %s, %s" % (v(vIn + 16 + k), v(vIn + 16 + k), v(vIn + 24 + k)))
        for k in range(8):
            c.I("v_add_f32 %s, %s, %s" % (v(sm + k), v(sm + k), v(vIn + 16 + k)))
        for k in range(4):
            c.I("v_cvt_pk_bf16_f32 %s, %s, %s" % (v(vT), v(sm + 2 * k), v(sm + 2 * k + 1)))
            c.I("v_lshlrev_b32 %s, 16, %s" % (v(vT + 1), v(vT)))
            c.I("v_and_b32 %s, 0xffff0000, %s" % (v(vT + 2), v(vT)))
            c.I("v_lshlrev_b32 %s, 16, %s" % (v(vT + 3), v(vRes + 4 * i + k)))
            c.I("v_and_b32 %s, 0xffff0000, %s" % (v(vT + 4), v(vRes + 4 * i + k)))
            c.I("v_add_f32 %s, %s, %s" % (v(vT + 1), v(vT + 1), v(vT + 3)))
            c.I("v_add_f32 %s, %s, %s" % (v(vT + 2), v(vT + 2), v(vT + 4)))
            c.I("v_cvt_pk_bf16_f32 %s, %s, %s" % (v(sm + k), v(vT + 1), v(vT + 2)))
        c.I("buffer_store_dwordx4 %s, %s, %s, 0 offen" % (v(sm, 4), v(vRo + i), s(sR, 4)))
    ST.mark(c, 'd2')
    return autowait(c)
```

```python
from asmlib import *

M16 = "v_mfma_f32_16x16x32_bf16 %s, %s, %s, %s"


def put(c, lst):
    for x in lst:
        c.append(x if isinstance(x, Ins) else Ins(x))


def rnd_bf16(code, t):
    code.I("v_cvt_pk_bf16_f32 %s, %s, %s" % (v(t), v(t), v(t)))
    code.I("v_and_b32 %s, 0xffff0000, %s" % (v(t), v(t)))


def ln_scalars(c, sm, sq, sTmp):
    c.I("s_mov_b32 %s, 0x3b124925" % s(sTmp))
    c.I("v_mul_f32 %s, %s, %s" % (v(sm), s(sTmp), v(sm)))
    c.I("v_mul_f32 %s, %s, %s" % (v(sq), s(sTmp), v(sq)))
    c.I("v_fma_f32 %s, -%s, %s, %s" % (v(sq), v(sm), v(sm), v(sq)))
    c.I("v_max_f32 %s, 0, %s" % (v(sq), v(sq)))
    rnd_bf16(c, sm)
    rnd_bf16(c, sq)
    c.I("v_add_f32 %s, 0x3727c5ac, %s" % (v(sq), v(sq)))
    rnd_bf16(c, sq)
    c.I("v_sqrt_f32 %s, %s" % (v(sq), v(sq)))
    c.I("s_nop 0")
    rnd_bf16(c, sq)
    c.I("v_rcp_f32 %s, %s" % (v(sq), v(sq)))
    c.I("s_nop 0")
    c.I("v_mul_f32 %s, -%s, %s" % (v(sm), v(sm), v(sq)))
    c.I("v_mov_b32 %s, %s" % (v(sm + 1), v(sm)))
    c.I("v_mov_b32 %s, %s" % (v(sq + 1), v(sq)))


def ln_apply(c, regs, sm, sq, t4):
    for n, x in enumerate(regs):
        t = t4 + 2 * (n & 1)
        c.I("v_lshlrev_b32 %s, 16, %s" % (v(t), v(x)))
        c.I("v_and_b32 %s, 0xffff0000, %s" % (v(t + 1), v(x)))
        c.I("v_pk_fma_f32 %s, %s, %s, %s" % (v(t, 2), v(t, 2), v(sq, 2), v(sm, 2)))
        c.I("v_cvt_pk_bf16_f32 %s, %s, %s" % (v(x), v(t), v(t + 1)))


def frag_loads(c, vXf, vLn16, srd, sOff, flags=""):
    c.I("s_add_u32 %s, %s, %d" % (s(sOff + 1), s(sOff), 14 * 1024))
    for ks in range(14):
        for qt in range(2):
            c.I("buffer_load_dwordx4 %s, %s, %s, %s offen offset:%d%s" % (v(vXf + 4 * (qt * 14 + ks), 4), v(vLn16), s(srd, 4), s(sOff + qt), (ks & 3) * 1024, flags))
        if ks & 3 == 3:
            for qt in range(2):
                c.I("s_add_u32 %s, %s, 0x1000" % (s(sOff + qt), s(sOff + qt)))


def proj_main(c, xfrag, vQB, vQA, acc, ring, nring, slot_of, hooks, rstride=2048, fill=(), fill_steps=10, need_extra=None,
              after_bar=None, step_extra=None, tagname="W", first_need=True, marks=None, addr_of=None):
    need_extra = need_extra or {}
    after_bar = after_bar or {}
    step_extra = step_extra or {}

    def setaddr(t):
        off, base = addr_of(t) if addr_of else (slot_of[t] * 16384, vQB)
        return ["v_add_u32 %s, 0x%x, %s" % (v(vQA + k), off, v(base + k)) for k in range(2)]

    def rd(t, nt):
        return [Ins("ds_read_b64_tr_b16 %s, %s offset:%d" % (ring(4 * (nt % nring) + 2 * r, 2), v(vQA + (nt & 1)), r * rstride + (nt >> 1) * 256),
                    {"r": (("S", slot_of[t]), (tagname, t))}) for r in range(2)]

    if first_need:
        c.append(Ins("@need", {"need": [(tagname, k) for k in range(3)]}))
        c.I("s_barrier")
    put(c, setaddr(0))
    for nt in range(nring):
        c += rd(0, nt)
    fill = list(fill)
    per = (len(fill) + fill_steps - 1) // fill_steps if fill else 0
    for t in range(14):
        if t and t % 2 == 0:
            c.append(Ins("@need", {"need": [(tagname, k) for k in (t + 1, t + 2) if k < 14] + need_extra.get(t // 2, [])}))
            c.I("s_barrier")
            put(c, after_bar.get(t // 2, []))
            if marks:
                marks(c, t // 2)
        mains = []
        for nt in range(16):
            for qt in range(2):
                d = acc(nt, qt)
                mains.append(M16 % (d, ring(4 * (nt % nring), 4), xfrag(qt, t), d if t else "0"))
        streams = []
        rs = []
        for f in range(16):
            g = f + nring
            tt, nt = (t, g) if g < 16 else (t + 1, g - 16)
            if tt == 14:
                continue
            if g == 16:
                rs += [(x, max(0, 2 * f - 1), 0, 2 * f + 1) for x in setaddr(t + 1)]
            rs += [(x, 2 * f + 1 + k, 2 * f + 1, min(31, 2 * f + 3)) for k, x in enumerate(rd(tt, nt))]
        streams.append(rs)
        hk = hooks.get(t // 2, []) if t >= 2 else []
        hk = hk[:(len(hk) + 1) // 2] if t % 2 == 0 else hk[(len(hk) + 1) // 2:]
        flat = [x for grp in hk for x in grp] + list(step_extra.get(t, []))
        n = len(flat)
        if n:
            streams.append([(x, 1 + (k * 29) // n, 1 + (k * 29) // n, 31) for k, x in enumerate(flat)])
        mine, fill = fill[:per], fill[per:]
        if mine:
            streams.append([(x, (k * 31.0) / len(mine), 0, 31) for k, x in enumerate(mine)])
        gaps, load = schedule(32, 8, streams)
        weave(c, mains, gaps)
```

```python
import sys
from asmlib import *
from common import *
import gen as G
import ph1, ph2, ph3, ph4, ph5

MARKS = {"front": "start kv0 kv1 q1 qc qok a1 a2 fin op e0 e1",
         "tail": "start r0 r1 r2 g0 g1 g2 d0 d1 d2 e0 e1",
         "all": "start kv0 kv1 q1 a1 fin op r0 r2 g2 d2 e1"}


def wrap(name, parts, ST, region, init):
    c = Code()
    pre = preamble(256, "L_end")
    c += pre
    if init:
        ST.init(c)
        ST.mark(c, 'start')
    for p in parts:
        c += p
    ST.mark(c, 'e0')
    if ST.on:
        c.I("s_waitcnt vmcnt(0)")
    ST.mark(c, 'e1')
    ST.dump(c, sW, 0, region)
    c.L("L_end")
    c.I("s_endpgm")
    c += OOL
    del OOL[:]
    c = Code(Ins(x.t.replace("L_end", "L_end_" + name[:5]), x.ann) for x in c)
    return dict(name=name, code=c, vgpr=512, accum=256, sgpr=102, grid=256, block=256, lds=163840)


def build(opt):
    stamp = opt.get("stamp", False)
    fuse = opt.get("fuse", 0)
    SLEEP[0] = opt.get("sleep", 2)
    mk = lambda k: Stamps(stamp, opt.get("marks", MARKS[k]).split())
    if fuse == 2:
        SF = STl = mk("all")
    else:
        SF, STl = mk("front"), mk("tail")
    pre = preamble(256, "L_end")
    g2 = ph2.gen(SF, opt, fuse == 2)
    c1, tr1 = ph1.gen(SF, opt, next(g2))
    c2, tr2 = next(g2)
    for i, t in enumerate(tr1):
        assert opt.get('nocheck') or not check(list(pre) + t + (tr2[i % 2] if i < 2 else []), "ph1.%d" % i)
    for i, t in enumerate(tr2):
        assert opt.get('nocheck') or not check(list(pre) + tr1[0] + t, "ph2.%d" % i)
    ks = []
    if fuse < 2:
        ks.append(wrap("front_kernel", [c1, c2], SF, 0, False))
    if fuse < 0:
        return ks
    g4 = ph4.gen(STl, opt, fuse >= 1, fuse >= 1)
    p4, keep = next(g4)
    c3, tr3 = ph3.gen(STl, opt, fuse == 2, fuse >= 1, p4 if fuse >= 1 else ())
    if fuse == 0:
        ks.append(wrap("reduce_kernel", [c3], STl, 1, True))
    c4 = next(g4)
    if fuse == 0:
        ks.append(wrap("gateup_kernel", [p4, c4], STl, 2, True))
    c5 = ph5.gen(STl, opt, fuse >= 1)
    if fuse == 0:
        ks.append(wrap("down_kernel", [c5], STl, 3, True))
        for t, n in ((tr3[0], "ph3"), (tr3[1], "ph3b"), (list(p4 + c4), "ph4"), (list(c5), "ph5")):
            assert not check(list(pre) + t, n)
    else:
        assert opt.get('nocheck') or not check(list(pre) + tr3[0] + list(c4) + list(c5), "tail")
        assert opt.get('nocheck') or not check(list(pre) + tr3[1] + list(c4) + list(c5), "tail")
    if fuse == 2:
        assert opt.get('nocheck') or not check(list(pre) + tr1[0] + tr2[0] + tr3[0] + list(c4) + list(c5), "all")
        ks.append(wrap("sequential_preLN__compressed_kv_cla__glu_gated_bilinear__prompt_kernel" if opt.get("final") else "fused_kernel", [c1, c2, c3, c4, c5], SF, 0, False))
    return ks


if __name__ == "__main__":
    opt = {m.split("=")[0]: eval(m.split("=", 1)[1]) for m in sys.argv[2:]}
    open(sys.argv[1], "w").write(G.build(build(opt)))
    print("wrote", sys.argv[1])
```

```python
import sys, importlib
from asmlib import *

HEADER = open("sequential_preLN__compressed_kv_cla__glu_gated_bilinear__prompt.s.ref").read().split("; Override launch")[0]


def build(kernels, launches=None):
    out = [HEADER.rstrip()]
    if len(kernels) == 1 and kernels[0]["name"].startswith("sequential"):
        k = kernels[0]
        out.append("; @launch grid=(%d,1,1) block=(%d,1,1) lds=%d" % (k["grid"], k["block"], k["lds"]))
    else:
      for k in (launches or kernels):
        out.append("; @launch kernel=%s grid=(%d,1,1) block=(%d,1,1) lds=%d" % (k["name"], k["grid"], k["block"], k["lds"]))
    out.append('.amdgcn_target "amdgcn-amd-amdhsa--gfx950"')
    out.append(".text")
    for k in kernels:
        out.append(".globl %s" % k["name"])
        out.append(".p2align 8")
        out.append(".type %s,@function" % k["name"])
        out.append("%s:" % k["name"])
        out.append(k["code"].text())
    out.append('.section .rodata,"a"')
    for k in kernels:
        out.append(".p2align 6")
        out.append(".amdhsa_kernel %s" % k["name"])
        out.append("  .amdhsa_next_free_vgpr %d" % k["vgpr"])
        out.append("  .amdhsa_next_free_sgpr %d" % k["sgpr"])
        out.append("  .amdhsa_accum_offset %d" % k["accum"])
        out.append("  .amdhsa_group_segment_fixed_size 0")
        out.append("  .amdhsa_kernarg_size 104")
        out.append("  .amdhsa_user_sgpr_count 2")
        out.append("  .amdhsa_user_sgpr_kernarg_segment_ptr 1")
        out.append("  .amdhsa_system_sgpr_workgroup_id_x 1")
        out.append("  .amdhsa_float_denorm_mode_32 3")
        out.append(".end_amdhsa_kernel")
    return "\n".join(out) + "\n"


if __name__ == "__main__":
    mods = [m for m in sys.argv[2:] if "=" not in m]
    opt = {m.split("=")[0]: eval(m.split("=")[1]) for m in sys.argv[2:] if "=" in m}
    ks = [importlib.import_module(m).gen(**opt) for m in mods]
    open(sys.argv[1], "w").write(build(ks))
    print("wrote", sys.argv[1])
```

```python
import re


class Ins:
    __slots__ = ("t", "ann")

    def __init__(self, t, ann=None):
        self.t = t
        self.ann = ann

    def __repr__(self):
        return self.t


def R(kind, base, n=1):
    return "%s%d" % (kind, base) if n == 1 else "%s[%d:%d]" % (kind, base, base + n - 1)


def v(b, n=1):
    return R("v", b, n)


def a(b, n=1):
    return R("a", b, n)


def s(b, n=1):
    return R("s", b, n)


class Alloc:
    def __init__(self, start, limit):
        self.p = start
        self.limit = limit
        self.names = {}

    def __call__(self, n=1, align=1, name=None):
        self.p = (self.p + align - 1) // align * align
        b = self.p
        self.p += n
        assert self.p <= self.limit, "out of registers"
        if name:
            self.names[name] = (b, n)
        return b


class Code(list):
    def I(self, t, ann=None):
        self.append(Ins(t, ann))
        return self

    def L(self, name):
        self.append(Ins(name + ":"))

    def C(self, text):
        self.append(Ins("; " + text))

    def text(self):
        out = []
        for i in self:
            if i.t.endswith(":") or i.t.startswith(";") or i.t.startswith("."):
                out.append(i.t)
            else:
                out.append(" " + i.t)
        return "\n".join(out)


def weave(code, mains, gaps, pre=None):
    for i, m in enumerate(mains):
        if pre and i in pre:
            for g in pre[i]:
                code.append(g if isinstance(g, Ins) else Ins(g))
        code.append(m if isinstance(m, Ins) else Ins(m))
        for g in gaps.get(i, []):
            code.append(g if isinstance(g, Ins) else Ins(g))


def mfma(d, A, B, c):
    return "v_mfma_f32_32x32x16_bf16 %s, %s, %s, %s" % (d, A, B, c)


_REG = re.compile(r"^(-|abs\(|\|)?([vas])(\d+)\)?\|?$|^(-)?([vas])\[(\d+):(\d+)\]$")
_TRANS = ("v_exp_f32", "v_log_f32", "v_rcp_f32", "v_rsq_f32", "v_sqrt_f32", "v_sin_f32", "v_cos_f32",
          "v_rcp_iflag_f32")


def regs_of(tok):
    tok = tok.strip()
    if tok in ("vcc",):
        return [("s", "vcc")]
    if tok in ("vcc_lo", "vcc_hi"):
        return [("s", "vcc")]
    if tok == "exec":
        return [("s", "exec")]
    if tok == "m0":
        return [("s", "m0")]
    m = _REG.match(tok)
    if not m:
        return []
    if m.group(2):
        return [(m.group(2), int(m.group(3)))]
    return [(m.group(5), i) for i in range(int(m.group(6)), int(m.group(7)) + 1)]


def split_ops(rest):
    ops, depth, cur = [], 0, ""
    for ch in rest:
        if ch in "[(":
            depth += 1
        if ch in "])":
            depth -= 1
        if ch == "," and depth == 0:
            ops.append(cur.strip())
            cur = ""
        else:
            cur += ch
    if cur.strip():
        ops.append(cur.strip())
    mods = []
    if ops:
        parts = ops[-1].split()
        ops[-1] = parts[0]
        mods = parts[1:]
    return ops, mods


class P:
    pass


def parse(t):
    p = P()
    t = t.split(";")[0].strip()
    sp = t.split(None, 1)
    p.op = sp[0]
    for suf in ("_e32", "_e64"):
        if p.op.endswith(suf):
            p.op = p.op[: -len(suf)]
    rest = sp[1] if len(sp) > 1 else ""
    p.ops, p.mods = split_ops(rest) if p.op not in ("s_waitcnt",) else ([], rest.split())
    op = p.op
    o = p.ops
    rg = lambda k: regs_of(o[k]) if k < len(o) else []
    p.d, p.s = [], []
    p.cls = "other"
    p.ab, p.c = [], []
    if op.startswith("v_mfma"):
        p.cls = "mfma"
        p.d = rg(0)
        p.ab = rg(1) + rg(2)
        p.c = rg(3)
        p.s = p.ab + p.c
        p.passes = 8 if "32x32" in op else 4
    elif op.startswith("ds_read") or op.startswith("ds_bpermute") or op.startswith("ds_swizzle"):
        p.cls = "ds"
        p.d = rg(0)
        p.s = sum((rg(k) for k in range(1, len(o))), [])
    elif op.startswith("ds_write"):
        p.cls = "ds"
        p.s = sum((rg(k) for k in range(len(o))), [])
    elif op.startswith("buffer_load") or op.startswith("global_load"):
        p.cls = "vmem"
        if "lds" in p.mods or "_lds_" in op:
            p.s = sum((rg(k) for k in range(len(o))), []) + [("s", "m0")]
            p.dma = True
        else:
            p.d = rg(0)
            p.s = sum((rg(k) for k in range(1, len(o))), [])
    elif op.startswith("buffer_store") or op.startswith("global_store"):
        p.cls = "vmem"
        p.s = sum((rg(k) for k in range(len(o))), [])
        p.store = rg(0) if op.startswith("buffer") else rg(1)
        p.wide = "x3" in op or "x4" in op
    elif op.startswith("buffer_atomic") or op.startswith("global_atomic"):
        p.cls = "vmem"
        p.s = sum((rg(k) for k in range(len(o))), [])
        if "sc0" in p.mods:
            p.d = rg(0)
    elif op in ("buffer_wbl2", "buffer_inv"):
        p.cls = "vmem"
    elif op.startswith("s_load") or op in ("s_memtime", "s_memrealtime"):
        p.cls = "smem"
        p.d = rg(0)
        p.s = rg(1) + rg(2)
    elif op.startswith("v_"):
        p.cls = "valu"
        p.d = rg(0)
        p.s = sum((rg(k) for k in range(1, len(o))), [])
        if op.startswith("v_cmpx"):
            p.d = p.d + [("s", "exec")]
        if op.startswith(("v_fmac", "v_dot2c", "v_mac", "v_pk_fmac")):
            p.s += p.d
        if op.startswith("v_permlane") and "swap" in op:
            p.d = rg(0) + rg(1)
            p.s = rg(0) + rg(1)
        if op.startswith(("v_add_co", "v_sub_co", "v_addc_co", "v_subb_co", "v_div_scale")):
            p.d = rg(0) + rg(1)
            p.s = sum((rg(k) for k in range(2, len(o))), [])
        if op.startswith("v_writelane") or "dpp" in op or "sdwa" in op:
            p.s += [r for r in p.d if r[0] == "v"]
    elif op.startswith("s_"):
        p.cls = "salu"
        if op.startswith(("s_cmp", "s_cbranch", "s_branch", "s_waitcnt", "s_barrier", "s_nop", "s_setprio",
                          "s_endpgm", "s_sleep", "s_bitcmp")):
            p.s = sum((rg(k) for k in range(len(o))), [])
            if op in ("s_cbranch_vccz", "s_cbranch_vccnz"):
                p.s = [("s", "vcc")]
        else:
            p.d = rg(0)
            p.s = sum((rg(k) for k in range(1, len(o))), [])
            if "saveexec" in op:
                p.d += [("s", "exec")]
                p.s += [("s", "exec")]
            if op.startswith(("s_addk", "s_mulk", "s_cmov")):
                p.s += p.d
    return p


def check(trace, name="", verbose=True):
    errs = []
    ws = 0
    last = {}
    vmq, lgq = [], []
    smem_pending = []
    pend = {}
    slot_owner = {}
    slab_landed_bar = {}
    slab_parts_out = {}
    slab_issued, slab_nparts = {}, {}
    slab_reads_out = {}
    slab_read_since_bar = set()

    def err(i, msg):
        errs.append("%s[%d] %s :: %s" % (name, i, trace[i].t, msg))

    def need(i, key, n, msg):
        if key in last and ws - last[key] - 1 < n:
            err(i, "%s: %d wait states, need %d" % (msg, ws - last[key] - 1, n))

    for i, ins in enumerate(trace):
        t = ins.t
        if t.endswith(":") or t.startswith(";") or t.startswith("."):
            continue
        p = parse(t)
        if (ins.ann or {}).get("nodst"):
            p.d = []
        for r in p.s + p.d:
            if r in pend:
                err(i, "touches %s%s with load pending (%s)" % (r[0], r[1], pend[r]))
        isv = p.cls == "valu"
        if p.cls == "mfma":
            for r in p.s:
                need(i, ("valu_w", r), 2, "VALU write -> MFMA read %s%s" % r)
            for r in p.ab:
                if ("mfma_w", r) in last:
                    need(i, ("mfma_w", r), last[("mfma_p", r)] + 4, "MFMA D -> MFMA A/B %s%s" % r)
            if p.c:
                for r in p.c:
                    if ("mfma_w", r) in last and last.get(("mfma_dset", r)) != tuple(p.c):
                        need(i, ("mfma_w", r), last[("mfma_p", r)] + 2, "MFMA D -> overlapping C %s%s" % r)
            if tuple(p.d) != tuple(p.c):
                for r in p.d:
                    if ("mfma_w", r) in last and last.get(("mfma_dset", r)) != tuple(p.d):
                        need(i, ("mfma_w", r), last[("mfma_p", r)] + 2, "MFMA D -> MFMA D WAW %s%s" % r)
            need(i, ("valu_w", ("s", "exec")), 4, "VALU exec write -> MFMA")
        if isv or p.cls in ("vmem", "ds"):
            for r in p.s + p.d:
                if ("mfma_w", r) in last:
                    need(i, ("mfma_w", r), last[("mfma_p", r)] + 4, "MFMA D -> VALU/mem %s%s" % r)
        if isv:
            for r in p.d:
                if ("mfma_c", r) in last:
                    need(i, ("mfma_c", r), last[("mfma_cp", r)] - 1, "MFMA C read -> VALU write %s%s" % r)
                need(i, ("store_d", r), 2, "wide store data -> VALU overwrite %s%s" % r)
            if p.op not in _TRANS:
                for r in p.s:
                    need(i, ("trans_w", r), 1, "trans -> VALU %s%s" % r)
            for r in p.s:
                if r[0] == "s":
                    n = 4 if p.op.startswith(("v_readlane", "v_writelane")) else 2
                    if p.op == "v_div_fmas_f32":
                        n = 4
                    need(i, ("valu_w", r), n, "VALU sgpr write -> VALU read %s" % (r[1],))
            if p.op.startswith("v_cndmask") and len(p.ops) == 4:
                pass
            if p.op.startswith(("v_readlane", "v_readfirstlane")):
                for r in p.s:
                    if r[0] == "v":
                        need(i, ("valu_w", r), 1, "VALU write -> readlane")
                need(i, ("valu_w", ("s", "exec")), 4, "exec write -> readlane")
            if p.op.startswith("v_permlane") or "dpp" in p.op:
                for r in p.s:
                    need(i, ("valu_w", r), 2, "VALU write -> permlane/dpp %s%s" % r)
        if p.cls in ("ds", "vmem") and p.d:
            for r in p.d:
                if ("mfma_c", r) in last:
                    need(i, ("mfma_c", r), last[("mfma_cp", r)] - 1, "MFMA C read -> load write")
                need(i, ("store_d", r), 1, "wide store data -> overwrite")
        if p.cls == "vmem":
            for r in p.s:
                if r[0] == "s":
                    need(i, ("valu_w", r), 5, "VALU sgpr write -> VMEM read")
            if getattr(p, "dma", False):
                need(i, ("salu_w", ("s", "m0")), 1, "m0 write -> LDS DMA")
        if p.cls == "salu":
            for r in p.s:
                if r == ("s", "vcc") and p.op.startswith("s_cbranch"):
                    need(i, ("valu_w", r), 0, "")
        ann = ins.ann or {}
        if "w" in ann:
            slot, slab = ann["w"][:2]
            slab_issued[slab] = slab_issued.get(slab, 0) + 1
            slab_nparts[slab] = ann["w"][2]
            old = slot_owner.get(slot)
            if old is not None and old != slab:
                if slab_reads_out.get(old, 0) > 0 or old in slab_read_since_bar:
                    err(i, "overwrites slot %s (slab %s) whose reads are not fenced by a barrier" % (slot, old))
                if slab_parts_out.get(old, 0) > 0:
                    err(i, "slot %s still has DMA of %s in flight" % (slot, old))
            slot_owner[slot] = slab
            slab_parts_out[slab] = slab_parts_out.get(slab, 0) + 1
            slab_landed_bar[slab] = False
        for slot in ann.get("alias", ()):
            old = slot_owner.get(slot)
            if old is not None:
                if slab_reads_out.get(old, 0) > 0 or old in slab_read_since_bar or slab_parts_out.get(old, 0) > 0:
                    err(i, "overwrites aliased slot %s (slab %s) still in use" % (slot, old))
                slot_owner[slot] = ("dead", slot)
        if "r" in ann:
            slot, slab = ann["r"]
            if slab is not None:
                if slot_owner.get(slot) != slab:
                    err(i, "reads slot %s expecting %s but owner is %s" % (slot, slab, slot_owner.get(slot)))
                elif slab_issued.get(slab) != slab_nparts.get(slab):
                    err(i, "reads slab %s with %s/%s parts issued" % (slab, slab_issued.get(slab), slab_nparts.get(slab)))
                elif not slab_landed_bar.get(slab) and not ann.get("private"):
                    err(i, "reads slab %s not landed+barrier" % (slab,))
                elif ann.get("private") and slab_parts_out.get(slab, 0) > 0:
                    err(i, "reads private slab %s with DMA in flight" % (slab,))
                slab_reads_out[slab] = slab_reads_out.get(slab, 0) + 1
                if not ann.get("private"):
                    slab_read_since_bar.add(slab)
        if p.cls == "mfma":
            for r in p.d:
                last[("mfma_w", r)] = ws
                last[("mfma_p", r)] = p.passes
                last[("mfma_dset", r)] = tuple(p.d)
            for r in p.c:
                last[("mfma_c", r)] = ws
                last[("mfma_cp", r)] = p.passes
        elif isv:
            for r in p.d:
                last[("valu_w", r)] = ws
                last.pop(("mfma_w", r), None)
                if p.op in _TRANS:
                    last[("trans_w", r)] = ws
                else:
                    last.pop(("trans_w", r), None)
        elif p.cls == "salu":
            for r in p.d:
                last[("salu_w", r)] = ws
                last.pop(("valu_w", r), None)
        if p.cls == "vmem":
            vmq.append((p.d, ann))
            for r in p.d:
                pend[r] = "vm@%d" % i
                last.pop(("mfma_w", r), None)
            if getattr(p, "store", None) and p.wide:
                for r in p.store:
                    last[("store_d", r)] = ws
            if len(vmq) > 63:
                err(i, "more than 63 vmem ops outstanding")
        elif p.cls == "ds":
            lgq.append((p.d, ann))
            for r in p.d:
                pend[r] = "ds@%d" % i
                last.pop(("mfma_w", r), None)
        elif p.cls == "smem":
            smem_pending.append(p.d)
            for r in p.d:
                pend[r] = "sm@%d" % i
        if p.op == "s_waitcnt":
            txt = " ".join(p.mods)
            m = re.search(r"vmcnt\((\d+)\)", txt)
            if m:
                n = int(m.group(1))
                while len(vmq) > n:
                    d, an = vmq.pop(0)
                    for r in d:
                        pend.pop(r, None)
                    if "w" in an:
                        slab_parts_out[an["w"][1]] -= 1
            m = re.search(r"lgkmcnt\((\d+)\)", txt)
            if m:
                n = int(m.group(1))
                if n > 15:
                    err(i, "lgkmcnt > 15")
                if smem_pending and n > 0:
                    err(i, "counted lgkmcnt with SMEM outstanding")
                if n == 0:
                    for d in smem_pending:
                        for r in d:
                            pend.pop(r, None)
                    smem_pending = []
                while len(lgq) > n:
                    d, an = lgq.pop(0)
                    for r in d:
                        pend.pop(r, None)
                    if "r" in an and an["r"][1] is not None:
                        slab_reads_out[an["r"][1]] -= 1
                    if "w" in an:
                        slab_parts_out[an["w"][1]] -= 1
        if p.op == "s_barrier":
            for slab, n in slab_parts_out.items():
                if n == 0:
                    slab_landed_bar[slab] = True
            slab_read_since_bar = set(sl for sl in slab_read_since_bar if slab_reads_out.get(sl, 0) > 0)
        if p.op == "s_nop":
            ws += int(p.ops[0], 0) + 1
        else:
            ws += 1
    if verbose:
        for e in errs[:40]:
            print("CHECK:", e)
        print("check %s: %d instrs, %d errors" % (name, len(trace), len(errs)))
    return errs


STAMP_OFF = 200 << 20


class Stamps:
    def __init__(self, on, names=None):
        self.on, self.sb, self.st, self.n = on, 76, 72, 12
        self.names = names

    def init(self, c):
        if not self.on:
            return
        for k in range(2 * self.n):
            c.I("s_mov_b32 %s, 0" % s(self.sb + k))

    def mark(self, c, k):
        if not self.on:
            return
        if self.names is not None:
            if k not in self.names:
                return
            k = self.names.index(k)
        c.I("s_waitcnt lgkmcnt(0)")
        c.I("s_memtime s[100:101]")
        c.I("s_waitcnt lgkmcnt(0)")
        c.I("s_mov_b32 %s, s100" % s(self.sb + k))
        c.I("s_memrealtime s[100:101]")
        c.I("s_waitcnt lgkmcnt(0)")
        c.I("s_mov_b32 %s, s100" % s(self.sb + self.n + k))

    def dump(self, c, sW, vt, region=0, wg="s2"):
        if not self.on:
            return
        q = 72
        c.I("s_load_dwordx2 s[72:73], s[0:1], 96")
        c.I("s_waitcnt lgkmcnt(0)")
        c.I("s_add_u32 %s, s72, 0x%x" % (s(q), STAMP_OFF + region * (1 << 17)))
        c.I("s_addc_u32 %s, s73, 0" % s(q + 1))
        c.I("s_and_b32 %s, %s, 0xffff" % (s(q + 1), s(q + 1)))
        c.I("s_mov_b32 %s, 0x20000" % s(q + 2))
        c.I("s_mov_b32 %s, 0x20000" % s(q + 3))
        c.I("s_lshl_b32 s70, %s, 2" % wg)
        c.I("s_add_u32 s70, s70, %s" % s(sW))
        c.I("s_lshl_b32 s70, s70, 7")
        c.I("v_mov_b32 v7, 0")
        for k in range(2 * self.n):
            c.I("v_mov_b32 %s, %s" % (v(8 + k), s(self.sb + k)))
        for k in range(self.n // 2):
            c.I("buffer_store_dwordx4 %s, v7, %s, s70 offen offset:%d" % (v(8 + 4 * k, 4), s(q, 4), 16 * k))


def cost_of(t):
    op = t.split()[0]
    if op in _TRANS:
        return 8
    if op.startswith("buffer_load") and " lds" in t:
        return COST_DMA
    return 4


COST_DMA = 8


def schedule(n, budget, streams, fixed=None, reserve=None):
    gaps = {i: [] for i in range(n)}
    load = [0] * n
    for g, cst in (reserve or {}).items():
        load[g] += cst
    if fixed:
        for g, lst in fixed.items():
            for x in lst:
                gaps[g].append(x)
                load[g] += cost_of(x.t if isinstance(x, Ins) else x)
    items = []
    for si, st in enumerate(streams):
        run = -1
        for k, (ins, ideal, lo, hi) in enumerate(st):
            run = max(run, ideal)
            items.append((run, si, k, ins, lo, hi))
    items.sort(key=lambda z: (z[0], z[1], z[2]))
    lastg = [0] * len(streams)
    over = 0
    for ideal, si, k, ins, lo, hi in items:
        cst = cost_of(ins.t if isinstance(ins, Ins) else ins)
        lo2 = max(lo, lastg[si])
        hi2 = max(min(hi, n - 1), lo2)
        cand = sorted(range(lo2, hi2 + 1), key=lambda g: (abs(g - ideal), g))
        best = None
        for g in cand:
            if load[g] + cst <= budget:
                best = g
                break
        if best is None:
            best = min(cand, key=lambda g: (load[g], abs(g - ideal)))
            over += load[best] + cst - max(budget, load[best])
        gaps[best].append(ins)
        load[best] += cst
        lastg[si] = best
    return gaps, load


def autowait(code, vm0=0, age=20):
    out = Code()
    vmq, lgq = [], []
    n = 0
    for ins in code:
        t = ins.t
        if t.endswith(":") or t.startswith(";") or t.startswith("."):
            out.append(ins)
            continue
        if t == "@need":
            idx = -1
            for k, e in enumerate(vmq):
                if e[1] in ins.ann["need"]:
                    idx = k
            extra = " lgkmcnt(0)" if ins.ann.get("lgkm0") else ""
            if idx >= 0:
                N = len(vmq) - 1 - idx
                assert N <= 63
                out.I("s_waitcnt vmcnt(%d)%s" % (N, extra))
                vmq = vmq[idx + 1:]
            elif extra:
                out.I("s_waitcnt lgkmcnt(0)")
            if extra:
                lgq = []
            continue
        p = parse(t)
        touch = set(p.s + ([] if (ins.ann or {}).get("nodst") else p.d))
        parts = []
        for q, nm, cap in ((vmq, "vmcnt", 63), (lgq, "lgkmcnt", 15)):
            idx = -1
            for k, e in enumerate(q):
                if e[0] & touch:
                    idx = k
            if idx >= 0:
                if nm == "lgkmcnt":
                    while idx + 1 < len(q) and n - q[idx + 1][2] >= age:
                        idx += 1
                N = min(cap, len(q) - 1 - idx)
                parts.append("%s(%d)" % (nm, N))
                del q[:len(q) - N]
        if parts:
            out.I("s_waitcnt " + " ".join(parts))
        if p.op == "s_waitcnt":
            txt = " ".join(p.mods)
            m = re.search(r"vmcnt\((\d+)\)", txt)
            if m:
                k = int(m.group(1))
                del vmq[:max(0, len(vmq) - k)]
            m = re.search(r"lgkmcnt\((\d+)\)", txt)
            if m:
                k = int(m.group(1))
                del lgq[:max(0, len(lgq) - k)]
        if p.cls == "vmem" and len(vmq) >= 62:
            out.I("s_waitcnt vmcnt(61)")
            del vmq[:len(vmq) - 61]
        if p.cls == "vmem":
            an = ins.ann or {}
            vmq.append((set() if an.get("nodst") else set(p.d), an.get("tag") or an.get("w", (None, None))[1], n))
        elif p.cls == "ds":
            lgq.append((set(p.d), None, n))
        out.append(ins)
        n += 1
    return out


def fix_m0(code):
    out = Code()
    for x in code:
        if out and " lds" in x.t and x.t.startswith("buffer_load") and re.match(r"s_\w+ m0,", out[-1].t):
            out.I("s_nop 0")
        out.append(x)
    return out


def spread(lst, lo, hi, wv=6):
    isv = lambda x: (x.t if isinstance(x, Ins) else x).startswith("buffer_")
    tot = sum(wv if isv(x) else 1 for x in lst) or 1
    out, acc = [], 0.0
    for x in lst:
        out.append((x, lo + acc * (hi - lo) / tot, 0, hi + 1))
        acc += wv if isv(x) else 1
    return out


_SZ = {}


def sizes(code):
    import subprocess, tempfile, os
    isins = lambda x: not (x.t.endswith(":") or x.t.startswith(";") or x.t.startswith("."))
    key = lambda t: re.sub(r"\bL\w+", "0", t) if t.startswith(("s_cbranch", "s_branch", "s_call")) else t
    todo = sorted(set(key(x.t) for x in code if isins(x)) - set(_SZ))
    if todo:
        with tempfile.TemporaryDirectory() as d:
            open(d + "/a.s", "w").write('.amdgcn_target "amdgcn-amd-amdhsa--gfx950"\n.text\n' + "\n".join(todo) + "\n")
            subprocess.check_call(["clang", "-x", "assembler", "-target", "amdgcn-amd-amdhsa", "-mcpu=gfx950", "-c", d + "/a.s", "-o", d + "/a.o"])
            out = subprocess.check_output(["llvm-objdump", "-d", "--mcpu=gfx950", d + "/a.o"]).decode()
        ls = [l.split("//")[1].split(":")[1].split() for l in out.splitlines() if "//" in l]
        assert len(ls) == len(todo)
        for t, w in zip(todo, ls):
            _SZ[t] = 4 * len(w)
    return [(_SZ[key(x.t)] if isins(x) else 0) for x in code]


_E64 = ("v_add_u32", "v_exp_f32", "v_mov_b32", "v_add_f32", "v_mul_f32", "v_sub_f32", "v_lshlrev_b32", "v_cmp_nge_f32", "v_xor_b32", "v_and_b32",
        "v_subrev_u32", "v_max_f32", "v_rcp_f32", "v_min_u32", "v_cmp_ne_u32")


def align8(code, only_mfma=True):
    sz = sizes(code)
    out, osz = Code(), []
    off = 0
    for x, n in zip(code, sz):
        if x.t.startswith(".p2align"):
            off = 0
        want = x.t.startswith("v_mfma") if only_mfma else n == 8
        if want and off % 8 == 4:
            fixed = False
            k = len(out) - 1
            while k >= 0 and not out[k].t.startswith(("v_mfma", ".p2align")) and not out[k].t.endswith(":"):
                op = out[k].t.split()[0]
                if osz[k] == 4 and op in _E64:
                    out[k] = Ins(out[k].t.replace(op, op + "_e64", 1), out[k].ann)
                    osz[k] = 8
                    fixed = True
                    break
                k -= 1
            if not fixed:
                out.I("s_nop 0")
                osz.append(4)
            off += 4
        out.append(x)
        osz.append(n)
        off += n
    return out
```

```python
from asmlib import *
from layout import *

sW, sWS, sW4k, sT, sT2, sT3 = 3, 4, 8, 9, 10, 11
SPIN = 0x20000
SLEEP = [0]
CT = [1]


def srd_fin(c, d, size):
    c.I("s_and_b32 %s, %s, 0xffff" % (s(d + 1), s(d + 1)))
    c.I("s_mov_b32 %s, 0x%x" % (s(d + 2), size))
    c.I("s_mov_b32 %s, 0x20000" % s(d + 3))


def preamble(nwg, endlabel):
    c = Code()
    c.I("s_cmp_ge_u32 s2, %d" % nwg)
    c.I("s_cbranch_scc1 %s" % endlabel)
    c.I("s_load_dwordx2 %s, s[0:1], 96" % s(sWS, 2))
    c.I("v_lshrrev_b32 v1, 6, v0")
    c.I("s_nop 0")
    c.I("v_readfirstlane_b32 %s, v1" % s(sW))
    c.I("s_nop 0")
    if CT[0]:
        c.I("v_and_b32 v2, 63, v0")
        c.I("v_lshlrev_b32 v2, 4, v2")
        for x in code_touch(2, v(8, 4), 12, 0):
            c.append(x if isinstance(x, Ins) else Ins(x))
    c.I("s_waitcnt lgkmcnt(0)")
    srd_fin(c, sWS, WS_END)
    c.I("s_lshl_b32 %s, %s, 12" % (s(sW4k), s(sW)))
    return c


def poll_loop(c, lab, vVal, vOff, sOff, sCnt):
    c.I("s_mov_b32 %s, 0x%x" % (s(sCnt), SPIN))
    c.L(lab + "_poll")
    c.I("buffer_load_dword %s, %s, %s, %s offen sc1" % (v(vVal), v(vOff), s(sWS, 4), s(sOff)))
    c.I("s_waitcnt vmcnt(0)")
    c.I("v_cmp_ne_u32 vcc, 1, %s" % v(vVal))
    c.I("s_cbranch_vccz %s_done" % lab)
    if SLEEP[0]:
        c.I("s_sleep %d" % SLEEP[0])
    c.I("s_sub_u32 %s, %s, 1" % (s(sCnt), s(sCnt)))
    c.I("s_cbranch_scc0 %s_poll" % lab)
    c.L(lab + "_done")


sFast = 71
OOL = Code()


def signal(lab, vOne, vZero, sOff):
    st = "buffer_store_dword %s, %s, %s, %s offen" % (v(vOne), v(vZero), s(sWS, 4), s(sOff))
    if not any(x.t == lab + "_slow:" for x in OOL):
        blk = Code()
        blk.L(lab + "_slow")
        blk.I(st + " sc1")
        blk.I("s_branch %s_back" % lab)
        OOL[0:0] = blk
    return ["s_cmp_eq_u32 %s, 0" % s(sFast), "s_cbranch_scc1 %s_slow" % lab, st, lab + "_back:"]


def acquire(lab):
    if not any(x.t == lab + "_acq:" for x in OOL):
        OOL.L(lab + "_acq")
        OOL.I("buffer_inv sc1")
        OOL.I("s_waitcnt vmcnt(0)")
        OOL.I("s_branch %s_acqb" % lab)
    return ["s_cmp_eq_u32 %s, 0" % s(sFast), "s_cbranch_scc1 %s_acq" % lab, lab + "_acqb:"]


POLL1 = [1]


def wg_wait(c, lab, vVal, vOff, sOff, sCnt):
    if POLL1[0]:
        c.I("s_cmp_lg_u32 %s, 0" % s(sW))
        c.I("s_cbranch_scc1 %s_done" % lab)
    poll_loop(c, lab, vVal, vOff, sOff, sCnt)
    if POLL1[0]:
        c.I("s_barrier")


def code_srd(q, so, n):
    return ["s_getpc_b64 %s" % s(q, 2), "L_ct%d:" % n,
            "s_sub_u32 %s, %s, L_ct%d-L_begin" % (s(q), s(q), n), "s_subb_u32 %s, %s, 0" % (s(q + 1), s(q + 1)),
            "s_and_b32 %s, %s, 0xffff" % (s(q + 1), s(q + 1)), "s_mov_b32 %s, L_last-L_begin" % s(q + 2), "s_mov_b32 %s, 0x20000" % s(q + 3),
            "s_lshr_b32 %s, s2, 3" % s(so), "s_lshl_b32 %s, %s, 2" % (s(so), s(so)), "s_add_u32 %s, %s, %s" % (s(so), s(so), s(sW)),
            "s_lshl_b32 %s, %s, 10" % (s(so), s(so))]


def code_load(vLane16, dst, q, so):
    if not CT[0]:
        return []
    return [Ins("buffer_load_dwordx4 %s, %s, %s, %s offen" % (dst, v(vLane16), s(q, 4), s(so)), {"nodst": True})]


def code_touch(vLane16, dst, q, n):
    if not CT[0]:
        return []
    return code_srd(q, sT, n) + code_load(vLane16, dst, q, sT)
```

```python
from asmlib import *
from layout import *
from common import *
import proj
from proj import put, M16


class R1:
    V = Alloc(1, 256)
    vL = V(1)
    vST = V(1)
    vPoll = V(1)
    vX = V(64, 4)
    vY = V(64, 4)
    vOA = V(8, 4)
    vOB = V(4)
    vRA = V(2)
    vRB = V(2)
    vT = V(8, 4)
    vDum = V(4, 4)
    vC2 = V(8, 4)
    vXr = V(48, 4)
    vE = V(8, 4)
    vP = V(8, 4)
    vQ2 = 192


def gen(ST, opt, att):
    r = R1
    vL, vST, vX, vY, vOA, vOB, vRA, vRB, vT, vDum, vQ2, vPoll = r.vL, r.vST, r.vX, r.vY, r.vOA, r.vOB, r.vRA, r.vRB, r.vT, r.vDum, r.vQ2, r.vPoll
    vE, vXr, vP, vQA = r.vE, r.vXr, r.vP, r.vDum
    sA, sB, sWq, sX, sDbg = 12, 16, 20, 24, 28
    sOffB, sCnt, sFlag, sSt, sInc0, sInc1, sQo, sXo = range(32, 40)
    sOffA, sAw, sBw, sRd, sHead, sTyp, sMt = range(41, 48)
    sWid, sDelta, sOob = 68, 69, 70
    sPf = 48

    pro = Code()
    c = pro
    c.I("s_load_dwordx2 %s, s[0:1], 8" % s(sA, 2))
    c.I("s_load_dwordx2 s[72:73], s[0:1], 24")
    c.I("s_load_dwordx2 s[74:75], s[0:1], 32")
    c.I("s_load_dwordx2 %s, s[0:1], 0" % s(sX, 2))
    c.I("s_load_dwordx2 %s, s[0:1], 88" % s(sDbg, 2))
    touch = ((16, 448 * 8192, 4), (40, 4096 * 896, 4), (56, 448 * 3584, 2), (64, 448 * 3584, 2), (72, 1792 * 896, 2))
    for k, (arg, nb, per) in enumerate(touch):
        c.I("s_load_dwordx2 %s, s[0:1], %d" % (s(sPf + 4 * k, 2), arg))
    c.I("v_and_b32 %s, 63, v0" % v(vL))
    c.I("s_and_b32 %s, s2, 7" % s(sT))
    c.I("s_lshr_b32 %s, s2, 3" % s(sT2))
    c.I("s_lshl_b32 %s, %s, 1" % (s(sHead), s(sT)))
    c.I("s_and_b32 %s, %s, 1" % (s(sT), s(sT2)))
    c.I("s_add_u32 %s, %s, %s" % (s(sHead), s(sHead), s(sT)))
    c.I("s_bfe_u32 %s, %s, 0x10001" % (s(sTyp), s(sT2)))
    c.I("s_lshr_b32 %s, %s, 2" % (s(sMt), s(sT2)))
    t0, t1, t2, t3 = vT, vT + 1, vT + 2, vT + 3
    L = v(vL)
    c.I("v_lshrrev_b32 %s, 3, %s" % (v(t0), L))
    c.I("v_and_b32 %s, 7, %s" % (v(t1), L))
    c.I("v_mul_u32_u24 %s, 896, %s" % (v(vT + 4), v(t1)))
    c.I("v_lshl_add_u32 %s, %s, 4, %s" % (v(vT + 4), v(t0), v(vT + 4)))
    c.I("v_lshlrev_b32 %s, 4, %s" % (v(vT + 5), v(t1)))
    c.I("v_bfe_u32 %s, %s, 3, 2" % (v(t3), L))
    c.I("v_lshl_add_u32 %s, %s, 8, %s" % (v(vT + 5), v(t3), v(vT + 5)))
    c.I("v_lshrrev_b32 %s, 5, %s" % (v(t3), L))
    c.I("v_lshl_add_u32 %s, %s, 10, %s" % (v(vT + 5), v(t3), v(vT + 5)))
    c.I("s_lshl_b32 %s, %s, 6" % (s(sT), s(sW)))
    c.I("v_add_u32 %s, %s, %s" % (v(t0), s(sT), v(t0)))
    c.I("v_lshlrev_b32 %s, 11, %s" % (v(t0), v(t0)))
    c.I("v_lshrrev_b32 %s, 4, %s" % (v(t2), L))
    c.I("v_xor_b32 %s, %s, %s" % (v(t1), v(t1), v(t2)))
    c.I("v_lshl_add_u32 %s, %s, 4, %s" % (v(t0), v(t1), v(t0)))
    c.I("v_xor_b32 %s, 64, %s" % (v(t1), v(t0)))
    for i in range(8):
        c.I("v_add_u32 %s, 0x%x, %s" % (v(vOA + i), i * 16384 - (i & 3) * 1024, v(t1 if i & 1 else t0)))
    c.I("v_bfe_u32 %s, %s, 2, 2" % (v(t0), L))
    c.I("s_lshl_b32 %s, %s, 3" % (s(sT), s(sW)))
    c.I("v_add_u32 %s, %s, %s" % (v(t0), s(sT), v(t0)))
    c.I("v_lshlrev_b32 %s, 13, %s" % (v(t0), v(t0)))
    c.I("v_lshl_add_u32 %s, %s, 6, %s" % (v(t0), v(t2), v(t0)))
    c.I("v_and_b32 %s, 3, %s" % (v(t1), L))
    c.I("s_and_b32 %s, %s, 1" % (s(sT), s(sW)))
    c.I("s_lshl_b32 %s, %s, 1" % (s(sT), s(sT)))
    c.I("v_xor_b32 %s, %s, %s" % (v(t1), s(sT), v(t1)))
    c.I("v_lshl_add_u32 %s, %s, 4, %s" % (v(t0), v(t1), v(t0)))
    for j in range(4):
        g, q = j >> 1, j & 1
        c.I("v_add_u32 %s, 0x%x, %s" % (v(vOB + j), 4 * g * 8192 + 4 * q * 64 + 4096 - j * 1024, v(t0)))
    c.I("v_and_b32 %s, 15, %s" % (v(t0), L))
    c.I("v_lshlrev_b32 %s, 7, %s" % (v(t0), v(t0)))
    c.I("v_bfe_u32 %s, %s, 1, 3" % (v(t3), L))
    c.I("v_xor_b32 %s, %s, %s" % (v(t3), v(t3), v(t2)))
    c.I("v_lshl_add_u32 %s, %s, 4, %s" % (v(t0), v(t3), v(t0)))
    c.I("s_lshr_b32 %s, %s, 1" % (s(sT), s(sW)))
    c.I("s_lshl_b32 %s, %s, 14" % (s(sT), s(sT)))
    c.I("s_add_u32 %s, %s, 0x10000" % (s(sT), s(sT)))
    c.I("v_add_u32 %s, %s, %s" % (v(vRA), s(sT), v(t0)))
    c.I("v_xor_b32 %s, 64, %s" % (v(vRA + 1), v(vRA)))
    c.I("v_lshlrev_b32 %s, 12, %s" % (v(t0), v(t2)))
    c.I("v_bfe_u32 %s, %s, 2, 2" % (v(t3), L))
    c.I("v_lshl_add_u32 %s, %s, 6, %s" % (v(t0), v(t3), v(t0)))
    c.I("v_bfe_u32 %s, %s, 4, 1" % (v(t3), L))
    c.I("v_lshl_add_u32 %s, %s, 5, %s" % (v(t0), v(t3), v(t0)))
    c.I("v_and_b32 %s, 3, %s" % (v(t3), L))
    c.I("v_lshl_add_u32 %s, %s, 3, %s" % (v(t0), v(t3), v(t0)))
    c.I("s_and_b32 %s, %s, 1" % (s(sT), s(sW)))
    c.I("s_lshl_b32 %s, %s, 10" % (s(sT), s(sT)))
    c.I("v_add_u32 %s, %s, %s" % (v(vRB), s(sT), v(t0)))
    c.I("v_xor_b32 %s, 32, %s" % (v(vRB + 1), v(vRB)))
    c.I("v_lshlrev_b32 %s, 4, %s" % (v(vST), L))
    c.I("s_waitcnt lgkmcnt(0)")
    ST.init(c)
    ST.mark(c, 'start')
    srd_fin(c, sA, 2048 * 1024 * 2)
    c.I("s_cmp_eq_u32 %s, 0" % s(sTyp))
    c.I("s_cselect_b32 %s, s72, s74" % s(sB))
    c.I("s_cselect_b32 %s, s73, s75" % s(sB + 1))
    c.I("s_cselect_b32 %s, 0x2000, 0x1000" % s(sInc0) if False else "s_cselect_b32 %s, 2, 1" % s(sInc0))
    c.I("s_cselect_b32 %s, 2, 3" % s(sInc1))
    c.I("s_lshl_b32 %s, %s, 12" % (s(sInc0), s(sInc0)))
    c.I("s_lshl_b32 %s, %s, 12" % (s(sInc1), s(sInc1)))
    c.I("s_add_u32 %s, %s, %d" % (s(sInc1), s(sInc1), US - 16384))
    c.I("s_sub_u32 %s, %s, 4096" % (s(sB), s(sB)))
    c.I("s_subb_u32 %s, %s, 0" % (s(sB + 1), s(sB + 1)))
    srd_fin(c, sB, 1024 * 4096 * 2 + 4096)
    srd_fin(c, sX, 2048 * 896)
    c.I("s_sub_u32 %s, %s, 4096" % (s(sWq), s(sPf)))
    c.I("s_subb_u32 %s, %s, 0" % (s(sWq + 1), s(sPf + 1)))
    srd_fin(c, sWq, 448 * 8192 + 4096)
    srd_fin(c, sDbg, 256)
    c.I("s_lshl_b32 %s, %s, 19" % (s(sOffA), s(sMt)))
    c.I("s_lshl_b32 %s, %s, 9" % (s(sOffB), s(sHead)))
    c.I("s_mov_b32 %s, %s" % (s(sQo), s(sOffB)))
    c.I("s_lshl_b32 %s, %s, 13" % (s(sAw), s(sW)))
    c.I("s_add_u32 %s, %s, 0x10000" % (s(sAw), s(sAw)))
    c.I("s_mov_b32 %s, %s" % (s(sBw), s(sW4k)))

    def dmaA(n, half):
        return [Ins("buffer_load_dwordx4 %s, %s, %s offen offset:%d%s lds" % (v(vOA + 4 * half + i), s(sA, 4), s(sOffA), 1024 * i, opt.get("afl", "")),
                    {"w": (("A", n % 3), ("A", n), 8)}) for i in range(4)]

    def dmaB(n):
        return [Ins("buffer_load_dwordx4 %s, %s, %s offen offset:%d%s lds" % (v(vOB + j), s(sB, 4), s(sOffB), 1024 * j, opt.get("bfl", " nt")),
                    {"w": (("B", n % 4), ("B", n), 4)}) for j in range(4)]

    advB = ["s_add_u32 %s, %s, 0x4000" % (s(sBw), s(sBw)),
            "s_and_b32 %s, %s, 0xffff" % (s(sBw), s(sBw)),
            "s_add_u32 %s, %s, 0x40000" % (s(sOffB), s(sOffB))]
    advA = ["s_add_u32 %s, %s, 0x8000" % (s(sAw), s(sAw)),
            "s_cmp_ge_u32 %s, 0x28000" % s(sAw),
            "s_cselect_b32 %s, 0x18000, 0" % s(sT),
            "s_sub_u32 %s, %s, %s" % (s(sAw), s(sAw), s(sT)),
            "s_add_u32 %s, %s, 128" % (s(sOffA), s(sOffA))]
    gA = lambda n, half: [("s_add_u32 m0, %s, 0x1000" % s(sAw)) if half else ("s_mov_b32 m0, %s" % s(sAw))] + dmaA(n, half) + (advA if half else [])
    gB = lambda n: ["s_mov_b32 m0, %s" % s(sBw)] + dmaB(n) + advB

    slot_of = [0, 1, 2, 3, 6, 7, 8, 9, 4, 5, 2, 3, 6, 7]
    worder = []

    def gW(t):
        sl = slot_of[t]
        al = [("A", (sl - 4) // 2)] if sl >= 4 else [("B", sl)]
        return ["s_add_u32 m0, %s, 0x%x" % (s(sW4k), sl * 16384), "s_add_u32 %s, %s, 0x%x" % (s(sT3), s(sQo), t * 0x40000)] + \
            [Ins("buffer_load_dwordx4 %s, %s, %s offen offset:%d lds" % (v(vOB + j), s(sWq, 4), s(sT3), 1024 * j),
                 {"w": (("S", sl), ("W", t), 4), "alias": al}) for j in range(4)]

    sTA, sTB, sToA, sToB = 48, 64, 72, 73

    def touch_l(t):
        d, o = (sTA, sToA) if t % 2 == 0 else (sTB, sToB)
        if not opt.get("touch", True):
            return []
        return [Ins("buffer_load_dwordx4 %s, %s, %s, %s offen" % (v(vDum, 4), v(vST), s(d, 4), s(o)), {"nodst": True}),
                "s_add_u32 %s, %s, 1024" % (s(o), s(o))]

    vLN = vXr
    c.I("s_mul_i32 %s, s2, %d" % (s(sXo), 8 * 896))
    c.I("s_cmp_eq_u32 %s, 0" % s(sW))
    c.I("s_cselect_b32 %s, 0, 0x40000000" % s(sOob))
    c.I("s_cbranch_scc0 L1_noln1")
    ln1 = Code()
    for i in range(7):
        ln1.I("buffer_load_dwordx4 %s, %s, %s, %s offen offset:%d" % (v(vLN + 4 * i, 4), v(vT + 4), s(sX, 4), s(sXo), 128 * i))
    pro2 = Code()
    c = pro2
    c.L("L1_noln1")
    put(c, gA(0, 0) + gB(0) + gA(0, 1) + gB(1))
    NPRE = 16
    if opt.get("bigpro", True):
        put(c, gA(1, 0) + gA(1, 1) + gB(2) + gB(3))
        NPRE = 32
    c.I("s_cmp_lt_u32 %s, 2" % s(sW))
    c.I("s_cselect_b32 %s, %s, %s" % (s(sTA), s(sPf), s(sPf + 4)))
    c.I("s_cselect_b32 %s, %s, %s" % (s(sTA + 1), s(sPf + 1), s(sPf + 5)))
    srd_fin(c, sTA, 448 * 8192)
    c.I("s_cmp_eq_u32 %s, 0" % s(sW))
    c.I("s_cselect_b32 %s, %s, %s" % (s(sTB), s(sPf + 8), s(sTB)))
    c.I("s_cselect_b32 %s, %s, %s" % (s(sTB + 1), s(sPf + 9), s(sTB + 1)))
    c.I("s_cmp_eq_u32 %s, 1" % s(sW))
    c.I("s_cselect_b32 %s, %s, %s" % (s(sTB), s(sPf + 12), s(sTB)))
    c.I("s_cselect_b32 %s, %s, %s" % (s(sTB + 1), s(sPf + 13), s(sTB + 1)))
    srd_fin(c, sTB, 448 * 3584)
    c.I("s_and_b32 %s, %s, 1" % (s(sT), s(sW)))
    c.I("s_lshl_b32 %s, s2, 1" % s(sToA))
    c.I("s_add_u32 %s, %s, %s" % (s(sToA), s(sToA), s(sT)))
    c.I("s_mul_i32 %s, %s, 7168" % (s(sToA), s(sToA)))
    c.I("s_mul_i32 %s, s2, 6272" % s(sToB))
    c.I("s_add_u32 %s, %s, 7168" % (s(sTA + 2), s(sToA)))
    c.I("s_add_u32 %s, %s, 6272" % (s(sTB + 2), s(sToB)))
    put(c, code_srd(24, sT, 4))
    c.I("s_lshr_b32 %s, s2, 3" % s(sT))
    c.I("s_mul_i32 %s, %s, 3072" % (s(sT), s(sT)))
    c.I("s_cmp_eq_u32 %s, 3" % s(sW))
    for k in range(3):
        c.I("s_cselect_b32 %s, %s, %s" % (s(sTB + k), s(24 + k) if CT[0] or k < 2 else "0", s(sTB + k)))
    c.I("s_cselect_b32 %s, %s, %s" % (s(sToB), s(sT), s(sToB)))
    c.I("s_mov_b32 %s, 0" % s(sRd))
    c.I("s_lshr_b32 %s, s2, 1" % s(sT))
    c.I("s_mul_i32 %s, %s, %d" % (s(sXo), s(sT), 14 * 1024))
    c.I("s_and_b32 %s, s2, 1" % s(sT))
    c.I("s_lshl_b32 %s, %s, 7" % (s(sT), s(sT)))
    c.I("s_add_u32 %s, %s, %s" % (s(sXo), s(sXo), s(sT)))
    c.I("s_add_u32 %s, %s, 0x%x" % (s(sXo), s(sXo), WS_XN))
    c.I("s_add_u32 %s, %s, %s" % (s(sXo), s(sXo), s(sOob)))
    c.I("s_min_u32 %s, s2, %d" % (s(sFlag), FG_N // 2 - 1))
    c.I("s_lshl_b32 %s, %s, 8" % (s(sFlag), s(sFlag)))
    c.I("s_add_u32 %s, %s, 0x%x" % (s(sFlag), s(sFlag), WS_FLAG))
    c.I("s_add_u32 %s, %s, %s" % (s(sFlag), s(sFlag), s(sOob)))
    c.I("s_getreg_b32 %s, hwreg(HW_REG_XCC_ID, 0, 4)" % s(sT))
    c.I("s_lshl_b32 %s, 1, %s" % (s(sT), s(sT)))
    c.I("v_mov_b32 %s, %s" % (v(vT + 7), s(sT)))
    c.I("s_and_b32 %s, s2, 7" % s(sSt))
    c.I("s_lshl_b32 %s, %s, 2" % (s(sSt), s(sSt)))
    c.I("s_add_u32 %s, %s, 4" % (s(sSt), s(sSt)))
    c.I("v_min_u32 %s, 1, %s" % (v(vT + 3), L))
    c.I("v_lshlrev_b32 %s, 12, %s" % (v(vT + 6), v(vT + 3)))
    c.I("v_mul_lo_u32 %s, %s, %s" % (v(vT + 3), v(vT + 3), s(sSt)))
    c.I("s_add_u32 %s, %s, %s" % (s(sSt), s(sSt), s(sOob)))
    c.I("v_lshlrev_b32 %s, 2, %s" % (v(vT + 2), L))
    c.I("v_mov_b32 %s, 0" % v(vT + 1))
    c.I("v_mov_b32 %s, 1" % v(vT))
    c.I("s_cmp_eq_u32 %s, 0" % s(sW))
    c.I("s_cbranch_scc0 L1_noln2")
    pro2 = fix_m0(pro2)
    ln2 = Code()
    c = ln2
    sm, sq, one, t4 = vLN + 32, vLN + 34, vLN + 36, vLN + 40
    c.I("v_mov_b32 %s, 0x3f803f80" % v(one))
    for k in range(4):
        c.I("v_mov_b32 %s, 0" % v(sm + k))
    c.I("s_waitcnt vmcnt(%d)" % NPRE)
    for k in range(28):
        c.I("v_dot2c_f32_bf16 %s, %s, %s" % (v(sm + (k & 1)), v(vLN + k), v(one)))
        c.I("v_dot2c_f32_bf16 %s, %s, %s" % (v(sq + (k & 1)), v(vLN + k), v(vLN + k)))
    c.I("s_nop 2")
    c.I("v_add_f32 %s, %s, %s" % (v(sm), v(sm), v(sm + 1)))
    c.I("v_add_f32 %s, %s, %s" % (v(sq), v(sq), v(sq + 1)))
    c.I("s_nop 0")
    for x in (sm, sq):
        c.I("v_add_f32_dpp %s, %s, %s row_ror:8 row_mask:0xf bank_mask:0xf" % (v(x), v(x), v(x)))
    for sw in ("v_permlane16_swap_b32", "v_permlane32_swap_b32"):
        for x in (sm, sq):
            c.I("v_mov_b32 %s, %s" % (v(x + 1), v(x)))
        c.I("s_nop 1")
        for x in (sm, sq):
            c.I("%s %s, %s" % (sw, v(x), v(x + 1)))
        for x in (sm, sq):
            c.I("v_add_f32 %s, %s, %s" % (v(x), v(x), v(x + 1)))
    proj.ln_scalars(c, sm, sq, sT, scale=0x3db8aa3b)
    proj.ln_apply(c, [vLN + k for k in range(28)], sm, sq, t4)
    pro3 = Code()
    c = pro3
    c.L("L1_noln2")

    def reads(dst, n):
        An, ks = n >> 1, n & 1
        boff = 16384 * (n & 1)
        ra = [Ins("ds_read_b128 %s, %s offset:%d" % (v(dst + 4 * mt, 4), v(vRA + ks), mt * 2048),
                  {"r": (("A", An % 3), ("A", An))}) for mt in range(8)]
        rb = []
        for nt in range(8):
            for rr in range(2):
                rb.append(Ins("ds_read_b64_tr_b16 %s, %s offset:%d" % (v(dst + 32 + 4 * nt + 2 * rr, 2), v(vRB + (nt & 1)),
                                                                       boff + rr * 2048 + (nt >> 1) * 256),
                              {"r": (("B", n % 4), ("B", n))}))
        return [ra[0]] + rb + ra[1:]

    c.I("s_waitcnt vmcnt(%d)" % (NPRE - 12))
    c.I("s_barrier")
    ST.mark(c, 'kv0')
    put(c, reads(vX, 0))
    c.I("s_cmp_eq_u32 %s, 0" % s(sTyp))
    c.I("s_cbranch_scc0 L1_V_start")

    def mf(src, typ, czero):
        out = []
        order = [(mt, nt) for mt in range(8) for nt in range(8)]
        if typ == "K":
            order = [(mt, nt) for nt in range(8) for mt in range(8)]
        for mt, nt in order:
            cf, wf = v(src + 4 * mt, 4), v(src + 32 + 4 * nt, 4)
            if typ == "K":
                acc = a((mt * 8 + nt) * 4, 4)
                out.append(M16 % (acc, wf, cf, "0" if czero else acc))
            else:
                acc = a(((mt >> 1) * 8 + nt) * 8 + (mt & 1) * 4, 4)
                out.append(M16 % (acc, cf, wf, "0" if czero else acc))
        return out

    rot = ["s_add_u32 %s, %s, 0x8000" % (s(sT2), s(sRd)),
           "s_cmp_eq_u32 %s, 0x18000" % s(sT2),
           "s_cselect_b32 %s, 0, %s" % (s(sT2), s(sT2)),
           "s_sub_u32 %s, %s, %s" % (s(sDelta), s(sT2), s(sRd)),
           "s_mov_b32 %s, %s" % (s(sRd), s(sT2))]
    rotv = ["v_add_u32 %s, %s, %s" % (v(vRA), s(sDelta), v(vRA)),
            "v_add_u32 %s, %s, %s" % (v(vRA + 1), s(sDelta), v(vRA + 1)),
            "v_xor_b32 %s, 0x8000, %s" % (v(vRB), v(vRB)),
            "v_xor_b32 %s, 0x8000, %s" % (v(vRB + 1), v(vRB + 1))]

    def step(code, t, typ, main, auto, after=(), tailres=4):
        if auto:
            code.append(Ins("@need", {"need": [("B", t + 1), ("A", (t + 1) >> 1)] + list(auto), "lgkm0": True}))
        else:
            code.I("s_waitcnt vmcnt(%d) lgkmcnt(0)" % (19 if opt.get("touch", True) else 16))
        code.I("s_barrier")
        put(code, after)
        src, dst = (vX, vY) if t % 2 == 0 else (vY, vX)
        rds = reads(dst, t + 1) if t < 31 else []
        main = list(main)
        if t % 2 == 0:
            main = rot + main
        n = len(main)
        ms = spread(main, 1, 61, opt.get("wv", 8))
        streams = [[(x, 2 * i, 0, 48) for i, x in enumerate(rds)] + ([(x, 50 + k, 49, 63) for k, x in enumerate(rotv)] if t % 2 == 0 else []), ms]
        gaps, load = schedule(64, 8, streams, reserve={63: tailres})
        weave(code, mf(src, typ, t == 0), gaps)

    stdA = lambda t: gA(t // 2 + 2, 1) if t % 2 == 0 else gA((t + 5) // 2, 0)
    std = lambda t: (gB(t + 4) + stdA(t)) if opt.get("bfirst", True) else (stdA(t) + gB(t + 4))

    lnst = []
    for i in range(7):
        lnst.append(Ins("buffer_store_dwordx4 %s, %s, %s, %s offen offset:%d sc1" % (v(vLN + 4 * i, 4), v(vT + 5), s(sWS, 4), s(sXo), (i & 1) * 2048), {"tag": "LN"}))
        if i & 1:
            lnst.append("s_add_u32 %s, %s, 0x1000" % (s(sXo), s(sXo)))
    lnst.append(Ins("buffer_store_dword %s, %s, %s, %s offen sc1" % (v(vT + 1), v(vT + 2), s(sWS, 4), s(sFlag)), {"tag": "LN"}))
    lnst.append(Ins("buffer_atomic_or %s, %s, %s, %s offen sc1" % (v(vT + 7), v(vT + 6), s(sDbg, 4), s(sSt)), {"tag": "LN"}))
    arrive = ["buffer_atomic_add %s, %s, %s, %s offen sc1" % (v(vT), v(vT + 6), s(sDbg, 4), s(sOob))]
    NH = opt.get("nh", 2)

    def headpart(typ):
        code = Code()
        if opt.get("bigpro", True):
            m = {0: gA(2, 0) + std(0), 1: std(1)}
        else:
            m = {0: gA(1, 0) + gA(1, 1) + gB(2) + gB(3), 1: gA(2, 0) + std(0) + std(1)}
        for t in range(2 * NH):
            main = m.get(t, std(t))
            if t >= 2 * NH - 3:
                main = main + touch_l(t)
            if t == opt.get("lnat", 0):
                main = lnst + main
            last = t == 2 * NH - 1
            ST.mark(code, 's%d' % t)
            step(code, t, typ, main, ["x"] + (["LN"] if last else []), after=arrive if last else ())
        ST.mark(code, 'h1')
        code.I("s_mov_b32 %s, %d" % (s(sCnt), opt.get("nloop", 13 - NH)))
        pre = Code(pro2)
        w = autowait(Code(list(pro2) + [Ins("s_waitcnt vmcnt(%d)" % (NPRE - 12))] + list(fix_m0(code))))
        return Code(w[len(pro2) + 1:])

    def body(it, typ):
        code = Code()
        mid = lambda t: std(t) + touch_l(t)
        step(code, 2 * it, typ, mid(2 * it), None)
        step(code, 2 * it + 1, typ, mid(2 * it + 1) + ["s_sub_u32 %s, %s, 1" % (s(sCnt), s(sCnt)), "s_cmp_lg_u32 %s, 0" % s(sCnt)], None, tailres=8)
        code.I("s_cbranch_scc1 L1_%s_top" % typ)
        return fix_m0(code)

    XR = 10
    xreg = lambda qt, t: v(vXr + 8 * t + 4 * qt, 4) if t < 6 else (v(232 + 8 * (t - 6) + 4 * qt, 4) if t < 9 else a(128 + 8 * (t - 6) + 4 * qt, 4))

    def xload(t):
        out = ["buffer_load_dwordx4 %s, %s, %s, %s offen offset:%d sc1" % (xreg(qt, t), v(vST), s(sWS, 4), s(sXo + qt), (t & 3) * 1024)
               for qt in range(2)]
        if t & 3 == 3:
            out += ["s_add_u32 %s, %s, 0x1000" % (s(sXo + qt), s(sXo + qt)) for qt in range(2)]
        return out

    def endpart(typ):
        code = Code()
        lab = "L1_%s_" % typ
        if not any(x.t == lab + "poll:" for x in OOL):
            OOL.L(lab + "cw")
            OOL.I("s_mov_b32 %s, 0x%x" % (s(sT3), SPIN))
            OOL.L(lab + "poll")
            OOL.I("buffer_load_dword %s, %s, %s, 0 offen sc1" % (v(vPoll), v(vT + 3), s(sDbg, 4)))
            OOL.I("s_waitcnt vmcnt(0)")
            OOL.I("v_readfirstlane_b32 %s, %s" % (s(sT), v(vPoll)))
            OOL.I("s_sub_u32 %s, %s, 1" % (s(sT3), s(sT3)))
            OOL.I("s_cbranch_scc1 %sgot" % lab)
            OOL.I("s_cmp_lg_u32 %s, 256" % s(sT))
            OOL.I("s_cbranch_scc1 %spoll" % lab)
            OOL.I("s_branch %sgot" % lab)
        chk = ["v_readfirstlane_b32 %s, %s" % (s(sT), v(vPoll)), "s_cmp_lg_u32 %s, 256" % s(sT), "s_cbranch_scc1 %scw" % lab, lab + "got:"]
        setup = ["v_readlane_b32 %s, %s, 1" % (s(sT2), v(vPoll)),
                 "s_bfe_u32 %s, s2, 0x30004" % s(sT),
                 "s_sub_u32 %s, 15, %s" % (s(sT3), s(sT)),
                 "s_bitcmp1_b32 s2, 7",
                 "s_cselect_b32 %s, %s, %s" % (s(sT), s(sT3), s(sT)),
                 "s_lshl_b32 %s, %s, 2" % (s(sT), s(sT)),
                 "s_add_u32 %s, %s, %s" % (s(sT), s(sT), s(sW)),
                 "s_mul_i32 %s, %s, %d" % (s(sXo), s(sT), 28 * 1024),
                 "s_add_u32 %s, %s, 0x%x" % (s(sXo), s(sXo), WS_XN),
                 "s_add_u32 %s, %s, %d" % (s(sXo + 1), s(sXo), 14 * 1024),
                 "s_bcnt1_i32_b32 %s, %s" % (s(sT2), s(sT2)),
                 "s_cmp_eq_u32 %s, %d" % (s(sT2), 99 if opt.get("slow") else 1),
                 "s_cselect_b32 %s, 1, 0" % s(sFast)]
        kvb = ["s_lshl_b32 %s, %s, 6" % (s(sT), s(sHead)),
               "s_lshl_b32 %s, %s, 3" % (s(sT2), s(sMt)),
               "s_add_u32 %s, %s, %s" % (s(sT), s(sT), s(sT2)),
               "s_lshr_b32 %s, %s, 1" % (s(sT2), s(sW)),
               "s_lshl_b32 %s, %s, 2" % (s(sT2), s(sT2)),
               "s_add_u32 %s, %s, %s" % (s(sT), s(sT), s(sT2)),
               "s_mul_i32 %s, %s, %d" % (s(sSt), s(sT), US),
               "s_and_b32 %s, %s, 1" % (s(sT2), s(sW)),
               "s_lshl_b32 %s, %s, 10" % (s(sDelta), s(sT2)),
               "s_add_u32 %s, %s, 12" % (s(sT), s(sTyp)),
               "s_lshl_b32 %s, %s, %s" % (s(sT2), s(sT2), s(sT)),
               "s_add_u32 %s, %s, %s" % (s(sSt), s(sSt), s(sT2)),
               "s_mul_i32 %s, %s, 0x%x" % (s(sT2), s(sTyp), WS_VF),
               "s_add_u32 %s, %s, %s" % (s(sSt), s(sSt), s(sT2)),
               "s_lshl_b32 %s, %s, 7" % (s(sOffB), s(sHead)),
               "s_lshl_b32 %s, %s, 3" % (s(sT), s(sTyp)),
               "s_add_u32 %s, %s, %s" % (s(sT), s(sT), s(sMt)),
               "s_lshl_b32 %s, %s, 2" % (s(sT), s(sT)),
               "s_add_u32 %s, %s, 0x%x" % (s(sOffB), s(sOffB), WS_FLAG + FG_KV * 128),
               "s_add_u32 %s, %s, %s" % (s(sFlag), s(sOffB), s(sT)),
               "v_subrev_u32 %s, %s, %s" % (v(vRB), s(sDelta), v(vRB)),
               "v_subrev_u32 %s, %s, %s" % (v(vRB + 1), s(sDelta), v(vRB + 1)),
               "v_min_u32 %s, 15, %s" % (v(vT + 2), L),
               "v_lshlrev_b32 %s, 2, %s" % (v(vT + 2), v(vT + 2))]
        cl = [Ins("buffer_load_dword %s, %s, %s, 0 offen sc1" % (v(vPoll), v(vT + 3), s(sDbg, 4)), {"tag": "C"})]
        xs = [xload(t_) for t_ in range(XR - 1)]
        def xt(k0, k1):
            if not opt.get("xl2", False):
                return []
            return ["s_add_u32 %s, %s, %d" % (s(sT3), s(sOob), k0 * 1024)] + \
                [Ins("buffer_load_dwordx4 %s, %s, %s, %s offen offset:%d sc1" % (v(vDum, 4), v(vST), s(sWS, 4), s(sT3), i * 1024), {"nodst": True}) for i in range(k1 - k0)]
        setup += ["s_bitcmp1_b32 s2, 3", "s_cselect_b32 %s, %s, %s" % (s(sOob), s(sXo + 1), s(sXo))]
        m = {26: cl + std(26), 27: gW(4) + gB(31) + code_touch(vST, v(vDum, 4), 24, 1 + (typ == 'V')), 28: setup + gW(0) + xs[0] + gW(5) + xs[1], 29: gW(1) + xs[2] + gW(6) + xs[3] + xs[4],
             30: gW(2) + xs[5] + gW(7) + xs[6], 31: gW(3) + xs[7] + gW(8) + xs[8] + kvb}
        ST.mark(code, 'l1')
        for t in range(26, 32):
            if t % 2 == 0:
                ST.mark(code, 's%d' % t)
            step(code, t, typ, m[t], ["x"] + (["C"] if t == 28 else []), after=chk if t == 28 else ())
        if typ == "K":
            code.I("s_branch L1_tail")
        pre = Code()
        for t in (23, 24, 25):
            put(pre, std(t) + touch_l(t))
        w = autowait(Code(pre + fix_m0(code)))
        return Code(w[len(pre):]), m

    def drain(n):
        pk = vP + 4 * (n & 1)
        out = ["v_accvgpr_read_b32 %s, %s" % (v(vE + k), a(8 * n + k)) for k in range(8)]
        out += ["v_cvt_pk_bf16_f32 %s, %s, %s" % (v(pk + k), v(vE + 2 * k), v(vE + 2 * k + 1)) for k in range(4)]
        so = sSt if n < 16 else sCnt
        out.append(Ins("buffer_store_dwordx4 %s, %s, %s, %s offen offset:%d sc1" % (v(pk, 4), v(vST), s(sWS, 4), s(so), (n & 3) * 1024), {"tag": "KV"}))
        if n & 3 == 3:
            out.append("s_add_u32 %s, %s, %s" % (s(so), s(so), s(sInc1 if n & 4 else sInc0)))
        return out

    def tail(m):
        c = Code()
        c.L("L1_tail")
        c.append(Ins("@need", {"need": [("W", k) for k in range(3)], "lgkm0": True}))
        c.I("s_barrier")
        ST.mark(c, 'kv1')
        put(c, gW(9))
        c.I("s_add_u32 %s, %s, %d" % (s(sCnt), s(sSt), 2 * US))
        sb = opt.get("sb", 4)
        pl = ["buffer_load_dword %s, %s, %s, %s offen sc1" % (v(vPoll), v(vT + 2), s(sWS, 4), s(sOffB))]
        sx = {8: att["dmaO"], 9: pl, 10: att["dma0"], 11: att["dma1"], 12: att["dma2"]}
        for t_ in range(9, 14):
            sx[t_ - 9] = xload(t_)
        OOL.L("L1_kvw")
        poll_loop(OOL, "L1_kv", vPoll, vT + 2, sOffB, sInc0)
        OOL.I("s_branch L1_kvok")
        chk = ["v_cmp_ne_u32 vcc, 1, %s" % v(vPoll), "s_cbranch_vccnz L1_kvw", "L1_kvok:"] + acquire("L1_kva")
        ab = {sb: signal("L1_kvs", vT, vT + 1, sFlag), 5: chk}
        q = Code()
        dz = lambda n: drain(n) + ["v_accvgpr_write_b32 %s, 0" % a(8 * n + k) for k in range(8)]
        nb = opt.get("nb", 0)
        first = proj.proj_main(q, xreg, vRB, vQA, lambda nt, qt: v(vX + 8 * nt + 4 * qt, 4), lambda k, n: a(192 + k, n), 16, slot_of,
                               {2: [gW(10), gW(11)], 3: [gW(12), gW(13)]}, need_extra={sb: ["KV"]}, after_bar=ab, step_extra=sx,
                               first_need=False, first_reads=False, fill=[x for n in range(nb, 16) for x in dz(n)], fill_steps=opt.get("fs", 7),
                               marks=lambda c, b: ST.mark(c, 'p%d' % b), late=att["qcvt"])
        for n in range(16, 32):
            put(c, drain(n))
        put(c, list(att["decode"]) + list(att["consts"]) + first)
        for n in range(nb):
            put(c, dz(n))
        ST.mark(c, 'bu')
        c += q
        ST.mark(c, 'q1')
        pre = Code()
        for t in (28, 29, 30, 31):
            put(pre, m[t])
        w = autowait(Code(pre + fix_m0(c)))
        return Code(w[len(pre):])

    code = Code()
    code += pro + ln1 + pro2 + ln2 + pro3
    parts = {}
    for typ in "KV":
        hp = headpart(typ)
        ep, m = endpart(typ)
        parts[typ] = (hp, ep)
        code.L("L1_%s_start" % typ)
        code += hp
        code.I(".p2align 6")
        code.L("L1_%s_top" % typ)
        code += body(NH, typ)
        code += ep
    tc = tail(m)
    code += tc

    traces = []
    for typ in "KV":
        for ln in (False, True):
            tr = list(pro) + (list(ln1) if ln else []) + list(pro2) + (list(ln2) if ln else []) + list(pro3) + list(parts[typ][0])
            for it in range(NH, 13):
                pa = body(it, typ)
                assert [x.t for x in pa] == [x.t for x in body(NH, typ)]
                tr += pa
            tr += parts[typ][1] + tc
            traces.append(tr)
    return code, traces
```

```python
from asmlib import *
from layout import *
from common import *
from proj import put, M16
import ph1

BIG = 0x4e800000
HUGE = 0x40000000


def gen(ST, opt, fused_next):
    SP = opt.get("SP", 40)
    EV0 = opt.get("ev0", 5)
    V = Alloc(4, ph1.R1.vOA)
    vLn, vPoll = ph1.R1.vST, ph1.R1.vPoll
    vL = ph1.R1.vL
    vX = ph1.R1.vXr
    vS = [V(16, 4), V(16, 4)]
    vNM = V(8, 4)
    vP0 = [V(4, 4), V(4, 4)]
    vP1 = V(4, 4)
    vE = V(8, 4)
    vLL = [[V(4, 4), V(4, 4)], [V(4, 4), V(4, 4)]]
    vOnes, vOW = ph1.R1.vOA, ph1.R1.vOA + 4
    vThr, vRV, vNinf, vWB = ph1.R1.vC2, ph1.R1.vC2 + 4, ph1.R1.vC2 + 5, ph1.R1.vC2 + 6
    vDm = ph1.R1.vT + 6
    vRK = vLn
    vThrP = V()
    vC = V(12, 4)
    vWA = V(2)
    vPk = V(16, 4)
    vT = V(12, 4)
    vB = ph1.R1.vQ2
    vAcc = [vS[0], vS[0] + 32]
    assert vS[0] + 64 <= vLL[0][0] + 8
    aO, aQ, aF = 0, 128, 192
    sK, sV, sWo = 48, 52, 56
    (sOffK, sOffV, sQb, sU0, sU1, sMode, sDiag, sHead, sI, sNext, sPair,
     sNU, sBig, sD0, sD1, sEvt, sNxt, sHave, sFl, sCnt) = list(range(60, 71)) + list(range(41, 48)) + [30, 31]
    sRet = 28
    sCS = 32
    vCT = V(4, 4)
    sM = 12

    def S(p, qt, kt, r=0):
        return vS[p] + 8 * qt + 4 * kt + r

    def P(p, qt):
        return vP0[p] if qt == 0 else vP1

    def dmaK(x):
        return [Ins("buffer_load_dwordx4 %s, %s, %s offen offset:%d lds" % (v(vDm), s(sK, 4), s(sOffK), 1024 * i),
                    {"w": (("K", x & 3), ("K", x), 4), "alias": [("S", x & 3)]}) for i in range(4)]

    def dmaV(x):
        return [Ins("buffer_load_dwordx4 %s, %s, %s offen offset:%d lds" % (v(vDm), s(sV, 4), s(sOffV), 1024 * i),
                    {"w": (("V", x & 3), ("V", x), 4), "alias": [("S", 4 + (x & 3))]}) for i in range(4)]

    m0K = lambda x: "s_add_u32 m0, %s, 0x%x" % (s(sW4k), (x & 3) * 16384)
    m0V = lambda x: "s_add_u32 m0, %s, 0x%x" % (s(sW4k), 65536 + (x & 3) * 16384)
    advK = "s_add_u32 %s, %s, %d" % (s(sOffK), s(sOffK), 0 if opt.get("noadv") else US)
    advV = "s_add_u32 %s, %s, %d" % (s(sOffV), s(sOffV), 0 if opt.get("noadv") else US)

    CH = [4, 0, 1, 2, 3, 4, 0]
    CH_ALIAS = {0: [("K", 0), ("K", 1)], 1: [("K", 2), ("K", 3)], 2: [("V", 0), ("V", 1)], 3: [("V", 2), ("V", 3)], 4: [("S", 8), ("S", 9)]}

    def dmaO(ch):
        out = []
        for hf in range(2):
            out.append("s_lshl_b32 %s, %s, 1" % (s(sT3), s(sW4k)) if hf == 0 else "s_add_u32 %s, %s, %d" % (s(sD1), s(sD1), 32 * 896))
            out.append("s_add_u32 m0, %s, 0x%x" % (s(sT3), CH[ch] * 32768 + hf * 4096))
            out.append("s_nop 0")
            out += [Ins("buffer_load_dwordx4 %s, %s, %s offen offset:%d lds" % (v(vOW + j), s(sWo, 4), s(sD1), 1024 * j),
                        {"w": (("C", CH[ch]), ("O", ch), 8), "alias": CH_ALIAS[CH[ch]]}) for j in range(4)]
        out.append("s_sub_u32 %s, %s, %d" % (s(sD1), s(sD1), 32 * 896 - 128))
        return out

    def decode():
        c = Code()
        c.I("s_mov_b32 %s, s52" % s(sWo))
        c.I("s_mov_b32 %s, s53" % s(sWo + 1))
        c.I("s_and_b32 %s, s2, 7" % s(sT))
        c.I("s_lshl_b32 %s, %s, 1" % (s(sHead), s(sT)))
        c.I("s_bfe_u32 %s, s2, 0x10003" % s(sT))
        c.I("s_add_u32 %s, %s, %s" % (s(sHead), s(sHead), s(sT)))
        c.I("s_bfe_u32 %s, s2, 0x30004" % s(sI))
        c.I("s_lshl_b32 %s, %s, 3" % (s(sPair), s(sHead)))
        c.I("s_add_u32 %s, %s, %s" % (s(sPair), s(sPair), s(sI)))
        c.I("s_lshl_b32 %s, %s, 2" % (s(sPair), s(sPair)))
        c.I("s_add_u32 %s, %s, %s" % (s(sPair), s(sPair), s(sW)))
        c.I("s_mul_i32 %s, %s, %d" % (s(sT), s(sHead), 64 * US))
        c.I("s_add_u32 %s, %s, %s" % (s(sK), s(sWS), s(sT)))
        c.I("s_addc_u32 %s, %s, 0" % (s(sK + 1), s(sWS + 1)))
        c.I("s_add_u32 %s, %s, 0x%x" % (s(sV), s(sK), WS_VF - WS_KF))
        c.I("s_addc_u32 %s, %s, 0" % (s(sV + 1), s(sK + 1)))
        c.I("s_mov_b32 %s, 0x20000" % s(sK + 3))
        c.I("s_mov_b32 %s, 0x20000" % s(sV + 3))
        c.I("v_add_u32 %s, %s, %s" % (v(vDm), s(sW4k), v(vLn)))
        c.I("s_lshl_b32 %s, %s, 2" % (s(sT), s(sI)))
        c.I("s_sub_u32 %s, 64, %s" % (s(sT2), s(sT)))
        c.I("s_add_u32 %s, %s, 4" % (s(sT3), s(sT)))
        c.I("s_sub_u32 %s, 15, %s" % (s(sQb), s(sI)))
        c.I("s_cmp_gt_u32 %s, %d" % (s(sT2), SP))
        c.I("s_cselect_b32 %s, 1, 0" % s(sNext))
        c.I("s_cselect_b32 %s, %d, 0" % (s(sU0), SP))
        c.I("s_cselect_b32 %s, %s, %s" % (s(sT3), s(sT2), s(sT3)))
        c.I("s_cselect_b32 %s, %d, %s" % (s(sT2), SP, s(sT2)))
        c.I("s_cselect_b32 %s, %s, %s" % (s(sT), s(sQb), s(sI)))
        c.I("s_xor_b32 %s, %s, 1" % (s(sDiag), s(sNext)))
        c.I("s_lshl_b32 %s, %s, 1" % (s(sMode), s(sNext)))
        c.I("s_bitcmp1_b32 s2, 7")
        c.I("s_cselect_b32 %s, %s, %s" % (s(sU1), s(sT2), s(sT3)))
        c.I("s_cselect_b32 %s, 0, %s" % (s(sU0), s(sU0)))
        c.I("s_cselect_b32 %s, %s, %s" % (s(sQb), s(sQb), s(sT)))
        c.I("s_cselect_b32 %s, %s, 1" % (s(sDiag), s(sDiag)))
        c.I("s_cselect_b32 %s, %s, %s" % (s(sMode), s(sMode), s(sNext)))
        c.I("s_cselect_b32 %s, 0, %s" % (s(sNext), s(sNext)))
        c.I("s_mul_i32 %s, %s, %d" % (s(sK + 2), s(sU1), US))
        c.I("s_mov_b32 %s, %s" % (s(sV + 2), s(sK + 2)))
        c.I("s_mul_i32 %s, %s, %d" % (s(sOffK), s(sU0), US))
        c.I("s_mov_b32 %s, %s" % (s(sOffV), s(sOffK)))
        return c

    def consts():
        e = Code()
        L = v(vL)
        t0, t1, t2, t3 = [ph1.R1.vDum + k for k in range(4)]
        t4, t5 = ph1.R1.vT + 4, ph1.R1.vT + 5
        e.I("s_mov_b32 %s, 0" % s(sHave))
        e.I("s_lshl_b32 %s, %s, 14" % (s(sD0), s(sPair)))
        e.I("s_add_u32 %s, %s, 0x%x" % (s(sD0), s(sD0), WS_QF))
        e.I("s_lshr_b32 %s, %s, 2" % (s(sFl), s(sPair)))
        e.I("s_lshl_b32 %s, %s, 7" % (s(sFl), s(sFl)))
        e.I("s_lshl_b32 %s, %s, 2" % (s(sT), s(sW)))
        e.I("s_add_u32 %s, %s, %s" % (s(sFl), s(sFl), s(sT)))
        e.I("s_add_u32 %s, %s, 0x%x" % (s(sFl), s(sFl), WS_FLAG + FG_QX * 128))
        e.I("s_cmp_eq_u32 %s, 2" % s(sMode))
        e.I("s_cselect_b32 %s, %s, 0x%x" % (s(sNU), s(sD0), HUGE))
        e.I("s_cselect_b32 %s, 3, 0" % s(sHave))
        e.I("s_add_u32 %s, %s, 0x1000" % (s(sEvt), s(sNU)))
        e.I("s_add_u32 %s, %s, 0x2000" % (s(sNxt), s(sNU)))
        e.I("s_add_u32 %s, %s, 0x3000" % (s(sCnt), s(sNU)))
        e.I("v_add_u32 %s, 0x10000, %s" % (v(vRV), v(vLn)))
        e.I("v_and_b32 %s, 15, %s" % (v(t2), L))
        e.I("v_lshrrev_b32 %s, 4, %s" % (v(t4), L))
        e.I("v_lshlrev_b32 %s, 2, %s" % (v(t3), v(t4)))
        e.I("v_sub_u32 %s, %s, %s" % (v(t2), v(t2), v(t3)))
        e.I("s_lshl_b32 %s, %s, 5" % (s(sT), s(sW)))
        e.I("v_add_u32 %s, %s, %s" % (v(vThr), s(sT), v(t2)))
        for j in range(1, 4):
            e.I("v_subrev_u32 %s, %d, %s" % (v(vThr + j), 32 * j, v(vThr)))
        e.I("v_mov_b32 %s, 0xff800000" % v(vNinf))
        for r in range(4):
            e.I("v_mov_b32 %s, 0x3f803f80" % v(vOnes + r))
        e.I("s_mov_b32 %s, 0x%x" % (s(sBig), opt.get('BIG', BIG)))
        e.I("v_lshrrev_b32 %s, 5, %s" % (v(t0), L))
        e.I("v_bfe_u32 %s, %s, 2, 2" % (v(t1), L))
        e.I("v_lshl_add_u32 %s, %s, 2, %s" % (v(t2), v(t0), v(t1)))
        e.I("v_mul_u32_u24 %s, 896, %s" % (v(t2), v(t2)))
        e.I("v_bfe_u32 %s, %s, 4, 1" % (v(t5), L))
        e.I("v_lshl_add_u32 %s, %s, 6, %s" % (v(t2), v(t5), v(t2)))
        e.I("v_lshlrev_b32 %s, 1, %s" % (v(t0), v(t0)))
        e.I("v_and_b32 %s, 3, %s" % (v(t3), L))
        e.I("v_xor_b32 %s, %s, %s" % (v(t0), v(t0), v(t3)))
        e.I("v_lshl_add_u32 %s, %s, 4, %s" % (v(vOW), v(t0), v(t2)))
        for j in range(1, 4):
            e.I("v_add_u32 %s, %d, %s" % (v(vOW + j), j * (8 * 896 - 1024), v(vOW)))
        e.I("v_lshlrev_b32 %s, 9, %s" % (v(t0), v(t4)))
        e.I("v_lshl_add_u32 %s, %s, 6, %s" % (v(t0), v(t1), v(t0)))
        e.I("v_lshl_add_u32 %s, %s, 5, %s" % (v(t0), v(t5), v(t0)))
        e.I("v_lshl_add_u32 %s, %s, 3, %s" % (v(vWB), v(t3), v(t0)))
        e.I("v_xor_b32 %s, 32, %s" % (v(vWB + 1), v(vWB)))
        srd_fin(e, sWo, 4096 * 896)
        e.I("s_lshl_b32 %s, %s, 2" % (s(sT), s(sHead)))
        e.I("s_add_u32 %s, %s, %s" % (s(sT), s(sT), s(sW)))
        e.I("s_mul_i32 %s, %s, %d" % (s(sD1), s(sT), 64 * 896))
        return e

    def qcvt(ks):
        out = []
        for qt in range(2):
            n = 8 * qt + ks
            for k in range(4):
                src = ph1.R1.vX + 8 * (2 * ks + (k >> 1)) + 4 * qt + 2 * (k & 1)
                out.append("v_cvt_pk_bf16_f32 %s, %s, %s" % (v(vB + 4 * n + k), v(src), v(src + 1)))
            out.append("buffer_store_dwordx4 %s, %s, %s, %s offen offset:%d sc1" % (v(vB + 4 * n, 4), v(vLn), s(sWS, 4), s((sNU, sEvt, sNxt, sCnt)[n >> 2]), (n & 3) * 1024))
            if n < 12:
                out += ["v_accvgpr_write_b32 %s, %s" % (a(aQ + 4 * n + k), v(vB + 4 * n + k)) for k in range(4)]
        return out

    early = dict(decode=list(decode()), consts=list(consts()), qcvt=qcvt, dmaO=[x for x in dmaO(0) if x != "s_nop 0"],
                 dma0=[m0K(0)] + dmaK(0) + [advK, m0K(1)] + dmaK(1) + [advK],
                 dma1=[m0V(0)] + dmaV(0) + [advV, m0V(1)] + dmaV(1) + [advV], dma2=[m0K(2)] + dmaK(2) + [advK])

    def mix(c, base, extra, every):
        extra = list(extra)
        for k, x in enumerate(base):
            put(c, [x])
            if k % every == every - 1 and extra:
                put(c, [extra.pop(0)])
        put(c, extra)

    def entry():
        more = [m0K(3)] + dmaK(3) + [advK, m0V(2)] + dmaV(2) + [advV]
        c = Code()
        put(c, code_srd(sCS, sCS + 4, 3))
        for k in range(48, 64):
            c.I("v_accvgpr_write_b32 %s, %s" % (a(aQ + k), v(vB + k)))
        c.I("s_waitcnt vmcnt(%d) lgkmcnt(0)" % opt["nk0"])
        c.I("s_barrier")
        for f_ in range(16):
            c.append(rdK(0, f_))
        c.I("s_cmp_eq_u32 %s, 1" % s(sMode))
        c.I("s_cbranch_scc1 L2_qld")
        f = Code()
        f.I("s_waitcnt lgkmcnt(8)")
        qq = qk(0, czero=True)
        mix(f, qq[:16] + ["s_waitcnt lgkmcnt(0)"] + qq[16:], more, 3)
        f.I("s_waitcnt vmcnt(%d)" % (opt["nv0"] + 8))
        f.I("s_branch L2_qok")
        g = Code()
        g.L("L2_qld")
        put(g, more)
        g.I("v_mov_b32 %s, 0" % v(vT + 1))
        poll_loop(g, "L2_qx", vPoll, vT + 1, sFl, sCnt)
        put(g, acquire("L2_qa"))
        for n in range(16):
            g.I("buffer_load_dwordx4 %s, %s, %s, %s offen offset:%d" % (a(aQ + 4 * n, 4), v(vLn), s(sWS, 4), s(sD0), (n & 3) * 1024))
            if n & 3 == 3:
                g.I("s_add_u32 %s, %s, 0x1000" % (s(sD0), s(sD0)))
        g.I("s_add_u32 %s, %s, %d" % (s(sFl), s(sFl), (FG_PT - FG_QX) * 128))
        g.I("s_waitcnt vmcnt(0) lgkmcnt(0)")
        put(g, qq)
        h = Code()
        h.L("L2_qok")
        h.I("s_barrier")
        for f_ in range(16):
            h.append(rdK(1, f_))
        ST.mark(h, 'a1')
        f, g = fix_m0(f), fix_m0(g)
        OOL.L("L2_pubq")
        OOL.I("s_waitcnt vmcnt(8)")
        put(OOL, publish("L2_qs"))
        OOL.I("s_add_u32 %s, %s, %d" % (s(sFl), s(sFl), (FG_PT - FG_QX) * 128))
        OOL.I("s_branch L2_pubqr")
        return Code(c + f + g + h), list(c + f + h), list(c + g + h)

    def rdK(x, f):
        return Ins("ds_read_b128 %s, %s offset:%d" % (a(aF + 4 * f, 4), v(vRK), (x & 3) * 16384 + 1024 * f), {"r": (("K", x & 3), ("K", x))})

    def rdV(x, f):
        return Ins("ds_read_b128 %s, %s offset:%d" % (a(aF + 4 * f, 4), v(vRV), (x & 3) * 16384 + 1024 * f), {"r": (("V", x & 3), ("V", x))})

    def qk(p, czero=False, q2=False):
        out = []
        for f in range(16):
            kt, ks = f >> 3, f & 7
            for qt in range(2):
                d = v(S(p, qt, kt), 4)
                c0 = "0" if czero else v(vNM + 4 * qt, 4)
                qr = v(vB + 32 * qt + 4 * ks, 4) if q2 else a(aQ + 32 * qt + 4 * ks, 4)
                out.append(M16 % (d, a(aF + 4 * f, 4), qr, c0 if ks == 0 else d))
        return out

    def pv(p):
        out = []
        for f in range(16):
            for qt in range(2):
                d = a(aO + 8 * f + 4 * qt, 4)
                out.append(M16 % (d, a(aF + 4 * f, 4), v(P(p, qt), 4), d))
        return out

    def ones(p, qt):
        return M16 % (v(vLL[p][qt], 4), v(vOnes, 4), v(P(p, qt), 4), v(vLL[1 - p][qt], 4))

    def maskops(p, qt, thr):
        cm, se = [], []
        for e in range(8):
            kt, r = e >> 2, e & 3
            cm.append("v_cmp_gt_i32 %s, %d, %s" % (s(sM + 2 * e, 2), 16 * kt + r - 16 * qt, v(thr)))
            se.append("v_cndmask_b32 %s, %s, %s, %s" % (v(S(p, qt, kt, r)), v(S(p, qt, kt, r)), v(vNinf), s(sM + 2 * e, 2)))
        return cm, se

    def softmax(p, qt, thr=None):
        out = []
        cm, se = maskops(p, qt, thr) if thr is not None else ([], [])
        out += cm + se
        for e in range(8):
            out.append("v_exp_f32 %s, %s" % (v(vE + e), v(S(p, qt, e >> 2, e & 3))))
            if e & 1 and e >= 3:
                k = (e - 3) // 2
                out.append("v_cvt_pk_bf16_f32 %s, %s, %s" % (v(P(p, qt) + k), v(vE + 2 * k), v(vE + 2 * k + 1)))
        out.append("v_cvt_pk_bf16_f32 %s, %s, %s" % (v(P(p, qt) + 3), v(vE + 6), v(vE + 7)))
        return out

    def nreads(gaps, upto):
        return sum(1 for g in range(upto) for y in gaps[g] if isinstance(y, Ins) and y.t.startswith("ds_read"))

    def H2(x, masked, nosm=False):
        p = x & 1
        code = Code()
        mains = pv(1 - p)
        rd = [(rdK(x + 1, f), 2 * f + 1, 2 * f + 1, 2 * f + 3) for f in range(16)]
        sm = [] if nosm else softmax(p, 0, (vThr + (x & 3)) if masked else None)
        if masked:
            smi = [(t, 1 + 29.0 * k / len(sm), 8 if k >= 12 else 0, 31) for k, t in enumerate(sm)]
        else:
            smi = [(t, 2 + 27.0 * k / len(sm), 6 if k >= 5 else 0, 31) for k, t in enumerate(sm)]
        dm = [(d, 2 + 8 * i, 1, 30) for i, d in enumerate(dmaV(x + 2))] + [(advV, 29, 0, 31)]
        if opt.get("nodma") and not masked:
            dm = dm[4:]
        fx = [m0V(x + 2)]
        if (x & 3) == 1 and not masked:
            dm = [(y, 0.5, 0, 3) for y in code_load(vLn, v(vCT, 4), sCS, sCS + 4)] + dm
        if masked and (x & 3) == 2:
            fx.append("s_mov_b32 %s, %s" % (s(sOffV), s(sNxt)))
        gaps, load = schedule(32, 8, [rd, smi, dm], fixed={0: fx}, reserve={15: 4, 31: 4})
        pre = {0: ["s_waitcnt lgkmcnt(8)"], 16: ["s_waitcnt lgkmcnt(%d)" % nreads(gaps, 16)]}
        weave(code, mains, gaps, pre)
        return code

    def H1(x, masked, tag):
        p = x & 1
        code = Code()
        last = masked and (x & 3) == 3
        q = qk(1 - p, czero=last, q2=last)
        o0, o1 = 4, 24 if not masked else 27
        mains = q[:o0] + [ones(p, 0)] + q[o0:o1 - 1] + [ones(p, 1)] + q[o1 - 1:]
        pos = [i for i in range(34) if i not in (o0, o1)]
        rd = [(rdV(x, f), pos[2 * f + 1], pos[2 * f + 1], min(33, pos[2 * f + 1] + 2)) for f in range(16)]
        sm = softmax(p, 1, (vThr + (x & 3)) if masked else None)
        smi = [(t, 0 + (o1 - 3.0) * k / len(sm), 0, o1 - 2) for k, t in enumerate(sm)]
        dm = [(d, 3 + opt.get("ksp", 8) * i, 2, 32) for i, d in enumerate(dmaK(x + 4))] + [(advK, 30, 0, 33)]
        if opt.get("nodma") and not masked:
            dm = dm[4:]
        ck = [("v_add_f32 %s, %s, %s" % (v(vT), v(vLL[p][0]), v(vLL[p][1])), o1 + 5, o1 + 5, 32),
              ("v_cmp_nge_f32 vcc, %s, %s" % (s(sBig), v(vT)), o1 + 6, o1 + 5, 33)]
        fx = [m0K(x + 4)]
        if masked and (x & 3) == 0:
            fx.append("s_mov_b32 %s, %s" % (s(sOffK), s(sNxt)))
        gaps, load = schedule(34, 8, [rd, smi, dm, ck], fixed={1: fx}, reserve={pos[16] - 1: 4, 33: 4})
        pre = {0: ["s_waitcnt lgkmcnt(8)"], pos[16]: ["s_waitcnt lgkmcnt(%d)" % nreads(gaps, pos[16])]}
        br = ["s_cbranch_vccnz L2_rc_%s%d" % (tag, x & 3), "L2_rr_%s%d:" % (tag, x & 3)]
        bar = ["s_waitcnt vmcnt(12)"] + ([] if (opt.get("nobar") and not masked) else ["s_barrier"])
        if opt.get("ebr", 1):
            g = max(k for k in gaps if any((y.t if isinstance(y, Ins) else y).startswith("v_cmp_nge") for y in gaps[k]))
            gaps[min(33, g + 1)] += br
            br = []
        if opt.get("ebar") is not None:
            gaps[opt["ebar"]] += bar
            bar = []
        weave(code, mains, gaps, pre)
        put(code, br + bar)
        return code

    def rowmax(code, p, qt, t, tmp):
        b = S(p, qt, 0)
        code.I("v_max3_f32 %s, %s, %s, %s" % (v(t), v(b), v(b + 1), v(b + 2)))
        code.I("v_max3_f32 %s, %s, %s, %s" % (v(t), v(t), v(b + 3), v(b + 4)))
        code.I("v_max3_f32 %s, %s, %s, %s" % (v(t), v(t), v(b + 5), v(b + 6)))
        code.I("v_max_f32 %s, %s, %s" % (v(t), v(t), v(b + 7)))
        for sw in ("v_permlane16_swap_b32", "v_permlane32_swap_b32"):
            code.I("v_mov_b32 %s, %s" % (v(tmp), v(t)))
            code.I("s_nop 1")
            code.I("%s %s, %s" % (sw, v(t), v(tmp)))
            code.I("v_max_f32 %s, %s, %s" % (v(t), v(t), v(tmp)))

    def first():
        c = Code()
        c.L("L2_first")
        for qt in range(2):
            for r in range(4):
                c.I("v_mov_b32 %s, 0" % v(vLL[1][qt] + r))
        c.I("s_sub_u32 %s, %s, %s" % (s(sNU), s(sU1), s(sU0)))
        c.I("s_lshr_b32 %s, %s, 2" % (s(sNU), s(sNU)))
        c.I("s_sub_u32 %s, %s, %s" % (s(sNU), s(sNU), s(sDiag)))
        c.I("s_cmp_eq_u32 %s, 0" % s(sNext))
        c.I("s_cselect_b32 %s, 0x%x, 0" % (s(sNxt), HUGE))
        c.I("s_cmp_eq_u32 %s, 2" % s(sMode))
        c.I("s_cselect_b32 %s, %d, 0" % (s(sEvt), EV0))
        c.I("s_mul_i32 %s, %s, %s" % (s(sEvt), s(sEvt), "0" if opt.get("noev") else s(sFast)))
        c.I("s_cmp_eq_u32 %s, 2" % s(sHave))
        c.I("s_cselect_b32 %s, 99, %s" % (s(sEvt), s(sEvt)))
        c.I("s_cmp_eq_u32 %s, 0" % s(sNU))
        c.I("s_cselect_b32 %s, 0, 0x1000" % s(sT))
        c.I("v_add_u32 %s, %s, %s" % (v(vThrP), s(sT), v(vThr)))
        for qt in range(2):
            cm, se = maskops(0, qt, vThrP)
            put(c, cm + se)
        for qt in range(2):
            rowmax(c, 0, qt, vT + 2 + qt, vT + 4)
        for qt in range(2):
            for r in range(4):
                c.I("v_sub_f32 %s, 0, %s" % (v(vNM + 4 * qt + r), v(vT + 2 + qt)))
            for e in range(8):
                c.I("v_sub_f32 %s, %s, %s" % (v(S(0, qt, 0, e)), v(S(0, qt, 0, e)), v(vT + 2 + qt)))
        put(c, softmax(0, 0))
        c.I("s_cmp_eq_u32 %s, 3" % s(sHave))
        c.I("s_cbranch_scc1 L2_pubq")
        c.L("L2_pubqr")
        ST.mark(c, 'a2')
        c.I("s_cmp_eq_u32 %s, 0" % s(sNU))
        c.I("s_cbranch_scc1 L2_M_entry")
        c.I("s_branch L2_U_entry")
        return c

    def rare(p):
        c = Code()
        c.L("L2_rare%d" % p)
        c.I("s_nop 7")
        c.I("s_nop 7")
        for qt in range(2):
            d, f, tmp = vT + 2 + 2 * qt, vT + 3 + 2 * qt, vT + 6
            rowmax(c, p, qt, d, tmp)
            c.I("v_log_f32 %s, %s" % (v(tmp), v(vLL[1 - p][qt])))
            c.I("s_nop 0")
            c.I("v_max_f32 %s, %s, %s" % (v(d), v(d), v(tmp)))
            c.I("v_exp_f32 %s, -%s" % (v(f), v(d)))
            for r in range(4):
                c.I("v_sub_f32 %s, %s, %s" % (v(vNM + 4 * qt + r), v(vNM + 4 * qt + r), v(d)))
            for r in range(4):
                c.I("v_mul_f32 %s, %s, %s" % (v(vLL[1 - p][qt] + r), v(vLL[1 - p][qt] + r), v(f)))
            for e in range(8):
                c.I("v_sub_f32 %s, %s, %s" % (v(S(p, qt, 0, e)), v(S(p, qt, 0, e)), v(d)))
            c.I("v_mul_f32 %s, %s, %s" % (v(tmp), s(sT), v(d)))
            for e in range(8):
                c.I("v_sub_f32 %s, %s, %s" % (v(S(1 - p, qt, 0, e)), v(S(1 - p, qt, 0, e)), v(tmp)))
            put(c, softmax(p, qt))
        for dt in range(16):
            for qt in range(2):
                for r in range(4):
                    c.I("v_accvgpr_read_b32 %s, %s" % (v(vX + 4 * qt + r), a(aO + 8 * dt + 4 * qt + r)))
            for qt in range(2):
                for r in range(4):
                    c.I("v_mul_f32 %s, %s, %s" % (v(vX + 4 * qt + r), v(vX + 4 * qt + r), v(vT + 3 + 2 * qt)))
            for qt in range(2):
                for r in range(4):
                    c.I("v_accvgpr_write_b32 %s, %s" % (a(aO + 8 * dt + 4 * qt + r), v(vX + 4 * qt + r)))
        c.I("s_nop 1")
        c.I(ones(p, 0))
        c.I(ones(p, 1))
        c.I("s_nop 7")
        c.I("s_setpc_b64 %s" % s(sRet, 2))
        return c

    def rarecall(tag, k):
        c = Code()
        c.L("L2_rc_%s%d" % (tag, k))
        c.I("s_mov_b32 %s, %s" % (s(sT), "0" if (tag == "M" and k == 3) else "1.0"))
        c.I("s_call_b64 %s, L2_rare%d" % (s(sRet, 2), k & 1))
        c.I("s_branch L2_rr_%s%d" % (tag, k))
        return c

    def partner_loads(c):
        c.I("s_lshl_b32 %s, %s, 10" % (s(sT2), s(sPair)))
        c.I("s_add_u32 %s, %s, 0x%x" % (s(sT2), s(sT2), WS_STAT))
        c.I("buffer_load_dwordx4 %s, %s, %s, %s offen" % (v(vC + 8, 4), v(vLn), s(sWS, 4), s(sT2)))
        c.I("s_lshl_b32 %s, %s, 14" % (s(sT2), s(sPair)))
        c.I("s_add_u32 %s, %s, 0x%x" % (s(sT2), s(sT2), WS_PART))
        for i in range(16):
            c.I("buffer_load_dwordx4 %s, %s, %s, %s offen offset:%d" % (v(vB + 4 * i, 4), v(vLn), s(sWS, 4), s(sT2), (i & 3) * 1024))
            if i & 3 == 3 and i < 15:
                c.I("s_add_u32 %s, %s, 0x1000" % (s(sT2), s(sT2)))

    def publish(lab):
        return ["v_mov_b32 %s, 1" % v(vT + 10), "v_mov_b32 %s, 0" % v(vT + 11), "s_mov_b32 %s, 0" % s(sHave)] + signal(lab, vT + 10, vT + 11, sFl)

    def loopend(which=None):
        c = Code()
        c.I("s_sub_u32 %s, %s, 1" % (s(sNU), s(sNU)))
        c.I("s_cmp_gt_u32 %s, %s" % (s(sNU), s(sEvt)))
        c.I("s_cbranch_scc1 L2_U_top")
        c.I("s_cmp_eq_u32 %s, 2" % s(sHave))
        c.I("s_cbranch_scc0 L2_nopub")
        if which in (None, 3):
            put(c, publish("L2_ps"))
            c.I("s_mov_b32 %s, 0" % s(sEvt))
            c.I("s_cmp_lg_u32 %s, 0" % s(sNU))
            c.I("s_cbranch_scc1 L2_U_top")
        c.L("L2_nopub")
        c.I("s_cmp_eq_u32 %s, 0" % s(sNU))
        c.I("s_cbranch_scc1 L2_U_exit")
        c.I("s_cmp_eq_u32 %s, %d" % (s(sNU), EV0))
        c.I("s_cbranch_scc1 L2_ev2")
        if which in (None, 1):
            c.I("v_cmp_ne_u32 vcc, 1, %s" % v(vPoll))
            c.I("s_cbranch_vccnz L2_ev2")
            partner_loads(c)
            c.I("s_mov_b32 %s, 1" % s(sHave))
            c.I("s_mov_b32 %s, 0" % s(sEvt))
            c.I("s_branch L2_U_top")
        c.L("L2_ev2")
        if which in (None, 2):
            c.I("v_mov_b32 %s, 0" % v(vT + 1))
            c.I("s_nop 0")
            c.I("buffer_load_dword %s, %s, %s, %s offen sc1" % (v(vPoll), v(vT + 1), s(sWS, 4), s(sFl)))
            c.I("s_branch L2_U_top")
        c.L("L2_U_exit")
        c.I("s_cmp_eq_u32 %s, 0" % s(sDiag))
        c.I("s_cbranch_scc1 L2_fin")
        return c

    def norm_groups(dst, merge, store):
        out = []
        for n in range(16):
            qt, ks = n >> 3, n & 7
            e = vX + 8 * (n & 1)
            g = ["v_accvgpr_read_b32 %s, %s" % (v(e + k), a(aO + 8 * (2 * ks + (k >> 2)) + 4 * qt + (k & 3))) for k in range(8)]
            g += ["v_pk_mul_f32 %s, %s, %s" % (v(e + 2 * k, 2), v(e + 2 * k, 2), v(vC + 2 * qt, 2)) for k in range(4)]
            if merge:
                for k in range(4):
                    t = vT + 6 + 2 * (k & 1)
                    g.append("v_lshlrev_b32 %s, 16, %s" % (v(t), v(vB + 4 * n + k)))
                    g.append("v_and_b32 %s, 0xffff0000, %s" % (v(t + 1), v(vB + 4 * n + k)))
                    g.append("v_pk_fma_f32 %s, %s, %s, %s" % (v(e + 2 * k, 2), v(t, 2), v(vC + 4 + 2 * qt, 2), v(e + 2 * k, 2)))
            d = dst(n)
            g += ["v_cvt_pk_bf16_f32 %s, %s, %s" % (v(d + k), v(e + 2 * k), v(e + 2 * k + 1)) for k in range(4)]
            if store:
                g.append("buffer_store_dwordx4 %s, %s, %s, %s offen offset:%d sc1" % (v(d, 4), v(vLn), s(sWS, 4), s(sD0), (n & 3) * 1024))
                if n & 3 == 3:
                    g.append("s_add_u32 %s, %s, 0x1000" % (s(sD0), s(sD0)))
            out.append(g)
        return out

    def rcp_l(c):
        for qt in range(2):
            c.I("v_rcp_f32 %s, %s" % (v(vC + 2 * qt), v(vLL[1][qt])))
        c.I("s_nop 0")
        for qt in range(2):
            c.I("v_mov_b32 %s, %s" % (v(vC + 2 * qt + 1), v(vC + 2 * qt)))

    def cont(x):
        c = Code()
        c.I("s_cmp_eq_u32 %s, 0" % s(sNext))
        c.I("s_cbranch_scc1 L2_fin")
        c += H2(x, False, nosm=True)
        rcp_l(c)
        c.I("s_lshl_b32 %s, %s, 14" % (s(sD0), s(sPair)))
        c.I("s_add_u32 %s, %s, 0x%x" % (s(sD0), s(sD0), WS_PART))
        c.I("v_mov_b32 %s, %s" % (v(vC + 8), v(vNM)))
        c.I("v_mov_b32 %s, %s" % (v(vC + 9), v(vNM + 4)))
        c.I("v_mov_b32 %s, %s" % (v(vC + 10), v(vLL[1][0])))
        c.I("v_mov_b32 %s, %s" % (v(vC + 11), v(vLL[1][1])))
        c.I("s_lshl_b32 %s, %s, 10" % (s(sT2), s(sPair)))
        c.I("s_add_u32 %s, %s, 0x%x" % (s(sT2), s(sT2), WS_STAT))
        c.I("buffer_store_dwordx4 %s, %s, %s, %s offen sc1" % (v(vC + 8, 4), v(vLn), s(sWS, 4), s(sT2)))
        for g in norm_groups(lambda n: vPk + 4 * (n & 3), False, True):
            put(c, g)
        for i in range(128):
            c.I("v_accvgpr_write_b32 %s, 0" % a(aO + i))
        for k in range(64):
            c.I("v_accvgpr_write_b32 %s, %s" % (a(aQ + k), v(vB + k)))
        c.I("s_mov_b32 %s, %s" % (s(sQb), s(sI)))
        c.I("s_mov_b32 %s, 0" % s(sU0))
        c.I("s_lshl_b32 %s, %s, 2" % (s(sU1), s(sI)))
        c.I("s_add_u32 %s, %s, 4" % (s(sU1), s(sU1)))
        c.I("s_mov_b32 %s, 0" % s(sMode))
        c.I("s_mov_b32 %s, 0" % s(sNext))
        c.I("s_mov_b32 %s, 2" % s(sHave))
        c.I("s_branch L2_first")
        return c

    def fin1():
        c = Code()
        c.L("L2_fin")
        ST.mark(c, 'fin')
        q = pv(1)
        d1 = dmaO(1)
        gaps = {i: [] for i in range(32)}
        for k, x in enumerate(d1):
            gaps[1 + 2 * k].append(x)
        weave(c, q, gaps, {0: ["s_waitcnt lgkmcnt(8)"], 16: ["s_waitcnt lgkmcnt(0)"]})
        c.I("s_waitcnt vmcnt(8)")
        c.I("s_barrier")
        for ch in (2, 3, 4):
            put(c, dmaO(ch))
        put(c, code_load(vLn, a(aQ, 4), sCS, sCS + 4))
        c.I("s_cmp_eq_u32 %s, 2" % s(sMode))
        c.I("s_cbranch_scc1 L2_merge")
        return c

    def fin_plain():
        c = Code()
        rcp_l(c)
        for g in norm_groups(lambda n: vB + 4 * n, False, False):
            put(c, g)
        c.I("s_branch L2_oproj")
        return c

    def fin_merge(have):
        c = Code()
        c.L("L2_merge")
        c.I("s_cmp_eq_u32 %s, 1" % s(sHave))
        c.I("s_cbranch_scc1 L2_have")
        if not have:
            c.I("v_mov_b32 %s, 0" % v(vT + 1))
            poll_loop(c, "L2_pt", vPoll, vT + 1, sFl, sCnt)
            put(c, acquire("L2_pa"))
            partner_loads(c)
            c.I("s_waitcnt vmcnt(0)")
        c.L("L2_have")
        for qt in range(2):
            nA, nB, lA, lB = vNM + 4 * qt, vC + 8 + qt, vLL[1][qt], vC + 10 + qt
            t0, t1, t2 = vT + 2, vT + 3, vT + 4
            c.I("v_min_f32 %s, %s, %s" % (v(t0), v(nA), v(nB)))
            c.I("v_sub_f32 %s, %s, %s" % (v(t1), v(t0), v(nA)))
            c.I("v_sub_f32 %s, %s, %s" % (v(t2), v(t0), v(nB)))
            c.I("v_exp_f32 %s, %s" % (v(t1), v(t1)))
            c.I("v_exp_f32 %s, %s" % (v(t2), v(t2)))
            c.I("s_nop 0")
            c.I("v_mul_f32 %s, %s, %s" % (v(t2), v(t2), v(lB)))
            c.I("v_fma_f32 %s, %s, %s, %s" % (v(t0), v(t1), v(lA), v(t2)))
            c.I("v_rcp_f32 %s, %s" % (v(t0), v(t0)))
            c.I("s_nop 0")
            for k in range(2):
                c.I("v_mul_f32 %s, %s, %s" % (v(vC + 2 * qt + k), v(t1), v(t0)))
                c.I("v_mul_f32 %s, %s, %s" % (v(vC + 4 + 2 * qt + k), v(t2), v(t0)))
        for g in norm_groups(lambda n: vB + 4 * n, True, False):
            put(c, g)
        return c

    def oproj():
        c = Code()
        c.L("L2_oproj")
        ST.mark(c, 'op')
        c.I("s_lshl_b32 %s, %s, 2" % (s(sT), s(sQb)))
        c.I("s_add_u32 %s, %s, %s" % (s(sT), s(sT), s(sW)))
        c.I("s_lshl_b32 %s, %s, 5" % (s(sT), s(sT)))
        c.I("s_add_u32 %s, %s, %s" % (s(sT), s(sT), s(sHead)))
        c.I("s_mul_i32 %s, %s, %d" % (s(sD0), s(sT), 14 * 1024))
        c.I("s_add_u32 %s, %s, 0x%x" % (s(sD0), s(sD0), WS_PO))
        c.I("s_add_u32 %s, %s, %d" % (s(sT2), s(sD0), 16 * 14 * 1024))
        c.I("s_lshl_b32 %s, %s, 7" % (s(sFl), s(sQb)))
        c.I("s_lshl_b32 %s, %s, 2" % (s(sT), s(sHead)))
        c.I("s_add_u32 %s, %s, %s" % (s(sFl), s(sFl), s(sT)))
        c.I("s_add_u32 %s, %s, 0x%x" % (s(sFl), s(sFl), WS_FLAG + FG_PO * 128))

        def setaddr(ch):
            return ["v_add_u32 %s, 0x%x, %s" % (v(vWA + k), CH[ch] * 32768, v(vWB + k)) for k in range(2)]

        def rd(ch, f):
            ks, nt = f >> 2, f & 3
            return [Ins("ds_read_b64_tr_b16 %s, %s offset:%d" % (a(aF + 4 * (f & 15) + 2 * r, 2), v(vWA + (nt & 1)), ks * 4096 + r * 2048 + (nt >> 1) * 256),
                        {"r": (("C", CH[ch]), ("O", ch))}) for r in range(2)]

        def drain(ch):
            out = []
            ac = vAcc[ch & 1]
            for qt in range(2):
                for pp in range(2):
                    pk = vPk + 4 * (2 * qt + pp)
                    for k in range(4):
                        src = ac + 8 * (2 * pp + (k >> 1)) + 4 * qt + 2 * (k & 1)
                        out.append("v_cvt_pk_bf16_f32 %s, %s, %s" % (v(pk + k), v(src), v(src + 1)))
                    out.append("buffer_store_dwordx4 %s, %s, %s, %s offen offset:%d sc1" % (v(pk, 4), v(vLn), s(sWS, 4), s(sT2 if qt else sD0), ((2 * ch + pp) & 3) * 1024))
            if ch & 1:
                out.append("s_add_u32 %s, %s, 0x1000" % (s(sD0), s(sD0)))
                out.append("s_add_u32 %s, %s, 0x1000" % (s(sT2), s(sT2)))
            return out

        put(c, setaddr(0))
        for f in range(16):
            c += rd(0, f)
        for ch in range(7):
            for hf in range(2):
                mains = []
                for f in range(16 * hf, 16 * hf + 16):
                    ks, nt = f >> 2, f & 3
                    for qt in range(2):
                        d = v(vAcc[ch & 1] + 8 * nt + 4 * qt, 4)
                        mains.append(M16 % (d, a(aF + 4 * (f & 15), 4), v(vB + 32 * qt + 4 * ks, 4), d if ks else "0"))
                streams, fixed = [], {}
                if hf == 1 and ch < 6:
                    c.append(Ins("@need", {"need": [("O", ch + 1)]}))
                    c.I("s_barrier")
                    fixed[0] = setaddr(ch + 1)
                if hf == 0 or ch < 6:
                    src = (ch, 16) if hf == 0 else (ch + 1, 0)
                    streams.append([(x, 2 * f + 1 + k, 2 * f + 1, min(31, 2 * f + 3)) for f in range(16) for k, x in enumerate(rd(src[0], src[1] + f))])
                if hf == 0 and ch > 0:
                    dr = drain(ch - 1)
                    streams.append([(x, 5 + k * 26.0 / len(dr), 5, 31) for k, x in enumerate(dr)])
                if hf == 1 and ch in (1, 2):
                    dd = [x for x in dmaO(ch + 4) if x != "s_nop 0"]
                    streams.append([(x, 1 + 2 * k, 1 + 2 * k, 31) for k, x in enumerate(dd)])
                gaps, load = schedule(32, 8, streams, fixed=fixed)
                weave(c, mains, gaps)
        c.I("s_nop 7")
        put(c, drain(6))
        ST.mark(c, 'o1')
        if fused_next:
            c.I("v_mov_b32 %s, 1" % v(vT))
            c.I("v_mov_b32 %s, 0" % v(vT + 1))
            c.I("s_waitcnt vmcnt(0)")
            c.I("s_barrier")
            c.I("buffer_store_dword %s, %s, %s, %s offen sc1" % (v(vT), v(vT + 1), s(sWS, 4), s(sFl)))
            ST.mark(c, 'o2')
        pre = Code()
        for ch in (1, 2, 3, 4):
            put(pre, dmaO(ch))
        put(pre, code_load(vLn, a(aQ, 4), sCS, sCS + 4))
        w = autowait(Code(pre + c))
        return Code(w[len(pre):])

    def group(g, masked, entry):
        tag = "M" if masked else "U"
        code = Code()
        for k in range(4):
            x = 4 * g + k
            if not (k == 0 and entry):
                code += H2(x, masked)
            if k == 0:
                code.L("L2_%s_entry" % tag)
            code += H1(x, masked, tag)
            if masked and k == 1:
                code.I("s_cmp_eq_u32 %s, 2" % s(sHave))
                code.I("s_cbranch_scc1 L2_pub2")
                code.L("L2_pub2r")
        return code

    yield early
    OOL.L("L2_pub2")
    put(OOL, publish("L2_ps2"))
    OOL.I("s_branch L2_pub2r")
    ent, trA, trB = entry()
    out = Code(ent)
    out += first()
    out.I(".p2align 6")
    out.L("L2_U_top")
    out += group(1, False, False)
    out += loopend()
    out += group(1, True, False)
    out += cont(8)
    for tag in "UM":
        for k in range(4):
            out += rarecall(tag, k)
    out += rare(0)
    out += rare(1)
    out += fin1()
    out += fin_plain()
    out += fin_merge(False)
    op = oproj()
    out += op

    strip = lambda code: [x.t for x in code]
    for g in (2, 3):
        assert strip(group(g, False, False)) == strip(group(1, False, False))
        assert strip(group(g, True, False)) == strip(group(1, True, False))
    G = lambda g, m, e=False: list(group(g, m, e))
    t1 = trA + list(first()) + G(0, False, True) + list(loopend(2)) + G(1, False) + list(loopend(1)) + G(2, False) + list(loopend(0)) \
        + list(fin1()) + list(fin_merge(True)) + list(op)
    t2 = trB + list(first()) + G(0, False, True) + list(loopend(0)) + G(1, True) + list(cont(8)) + list(first()) + G(2, True, True) \
        + list(fin1()) + list(fin_plain()) + list(op)
    t3 = trA + list(first()) + G(0, True, True) + list(fin1()) + list(fin_merge(False)) + list(op)
    traces = [t1, t2, t3]
    for k in range(2):
        tr = trA + list(first())
        for x in group(0, False, True):
            tr.append(x)
            if x.t == "s_cbranch_vccnz L2_rc_U%d" % (k + 1):
                tr += list(rare((k + 1) & 1))
        tr += G(1, False)
        traces.append(tr)
    yield out, traces
```

```python
from asmlib import *
from layout import *
from common import *
import proj
from proj import put


def rbdecode(c, sRb, sMem):
    c.I("s_and_b32 %s, s2, 7" % s(sRb))
    c.I("s_lshr_b32 %s, s2, 7" % s(sMem))
    c.I("s_lshl_b32 %s, %s, 3" % (s(sMem), s(sMem)))
    c.I("s_add_u32 %s, %s, %s" % (s(sRb), s(sRb), s(sMem)))
    c.I("s_bfe_u32 %s, s2, 0x40003" % s(sMem))


def gen(ST, opt, fused_prev, fused_next, pre_next=()):
    LB = 98304
    V = Alloc(4, 216)
    vD = V(112, 4)
    vA = V(56, 4)
    vL, vPo, vXo, vWr, vSt = V(), V(), V(), V(), V()
    vXr = V(8, 4)
    vH = V(8, 4)
    vT = V(12, 4)
    sX = 12
    sRb, sMem, sP0, sX0, sH0, sFl, sCnt = range(32, 39)
    c = Code()
    c.I("s_load_dwordx2 %s, s[0:1], 0" % s(sX, 2))
    rbdecode(c, sRb, sMem)
    L = v(vL)
    c.I("v_and_b32 %s, 63, v0" % L)
    c.I("v_and_b32 %s, 7, %s" % (v(vT), L))
    c.I("v_bfe_u32 %s, %s, 3, 2" % (v(vT + 1), L))
    c.I("v_lshrrev_b32 %s, 5, %s" % (v(vT + 2), L))
    c.I("v_lshlrev_b32 %s, 4, %s" % (v(vPo), v(vT)))
    c.I("v_lshl_add_u32 %s, %s, 8, %s" % (v(vPo), v(vT + 1), v(vPo)))
    c.I("v_lshl_add_u32 %s, %s, 10, %s" % (v(vPo), v(vT + 2), v(vPo)))
    c.I("v_mul_u32_u24 %s, 896, %s" % (v(vXo), v(vT)))
    c.I("v_lshl_add_u32 %s, %s, 3, %s" % (v(vXo), v(vT + 1), v(vXo)))
    c.I("v_lshl_add_u32 %s, %s, 6, %s" % (v(vXo), v(vT + 2), v(vXo)))
    c.I("v_lshlrev_b32 %s, 3, %s" % (v(vSt), v(vT)))
    c.I("v_add_u32 %s, %d, %s" % (v(vSt), LB + 57344, v(vSt)))
    c.I("v_lshlrev_b32 %s, 4, %s" % (v(vWr), L))
    c.I("v_add_u32 %s, %d, %s" % (v(vWr), LB, v(vWr)))
    c.I("s_lshl_b32 %s, %s, 3" % (s(sT), s(sRb)))
    c.I("s_lshr_b32 %s, %s, 1" % (s(sT2), s(sMem)))
    c.I("s_add_u32 %s, %s, %s" % (s(sT), s(sT), s(sT2)))
    c.I("s_and_b32 %s, %s, 1" % (s(sT2), s(sMem)))
    c.I("s_lshl_b32 %s, %s, 7" % (s(sT2), s(sT2)))
    c.I("s_mul_i32 %s, %s, %d" % (s(sH0), s(sT), 14 * 1024))
    c.I("s_add_u32 %s, %s, %s" % (s(sH0), s(sH0), s(sT2)))
    c.I("s_lshl_b32 %s, %s, 2" % (s(sT), s(sT)))
    c.I("s_add_u32 %s, %s, %s" % (s(sT), s(sT), s(sW)))
    c.I("s_mul_i32 %s, %s, %d" % (s(sP0), s(sT), 4 * 14 * 1024))
    c.I("s_add_u32 %s, %s, %s" % (s(sP0), s(sP0), s(sT2)))
    c.I("s_add_u32 %s, %s, 0x%x" % (s(sP0), s(sP0), WS_PO))
    c.I("s_lshl_b32 %s, %s, 11" % (s(sT), s(sW)))
    c.I("s_add_u32 %s, %s, %s" % (s(sH0), s(sH0), s(sT)))
    c.I("s_add_u32 %s, %s, 0x%x" % (s(sH0), s(sH0), WS_HN))
    c.I("s_lshl_b32 %s, %s, 4" % (s(sT), s(sRb)))
    c.I("s_add_u32 %s, %s, %s" % (s(sT), s(sT), s(sMem)))
    c.I("s_mul_i32 %s, %s, %d" % (s(sX0), s(sT), 8 * 896))
    c.I("s_lshl_b32 %s, %s, 7" % (s(sT), s(sW)))
    c.I("s_add_u32 %s, %s, %s" % (s(sX0), s(sX0), s(sT)))
    c.I("s_waitcnt lgkmcnt(0)")
    srd_fin(c, sX, 2048 * 896)
    for r in range(2):
        for k in range(2):
            c.I("buffer_load_dwordx2 %s, %s, %s, %s offen offset:%d" % (v(vXr + 4 * r + 2 * k, 2), v(vXo), s(sX, 4), s(sX0), r * 512 + k * 32))
    if fused_prev:
        put(c, ["v_lshlrev_b32 %s, 4, %s" % (v(vT + 4), L)] + code_touch(vT + 4, a(0, 4), 16, 5))
    ST.mark(c, 'rs')
    put(c, pre_next)
    ST.mark(c, 'rp')
    if ST.on and opt.get("rw"):
        c.I("s_waitcnt vmcnt(0)")
        ST.mark(c, 'rw')
    if fused_prev:
        c.I("s_lshl_b32 %s, %s, 7" % (s(sFl), s(sRb)))
        c.I("s_add_u32 %s, %s, 0x%x" % (s(sFl), s(sFl), WS_FLAG + FG_PO * 128))
        c.I("v_min_u32 %s, 15, %s" % (v(vT + 3), L))
        c.I("v_lshlrev_b32 %s, 2, %s" % (v(vT + 3), v(vT + 3)))
        wg_wait(c, "L3_po", vT + 4, vT + 3, sFl, sCnt)
    ST.mark(c, 'r0')
    for hh in range(4):
        for i in range(7):
            c.I("buffer_load_dwordx4 %s, %s, %s, %s offen offset:%d sc1" % (v(vD + 4 * (hh * 7 + i), 4), v(vPo), s(sWS, 4), s(sP0), (i & 1) * 2048))
            if i & 1 or i == 6:
                c.I("s_add_u32 %s, %s, %d" % (s(sP0), s(sP0), 4096 if i < 6 else 2048))
    for hh in range(4):
        for i in range(7):
            for k in range(4):
                x = vD + 4 * (hh * 7 + i) + k
                d = vA + 8 * i + 2 * k
                if hh == 0:
                    c.I("v_lshlrev_b32 %s, 16, %s" % (v(d), v(x)))
                    c.I("v_and_b32 %s, 0xffff0000, %s" % (v(d + 1), v(x)))
                else:
                    t = vT + 4 + 2 * (k & 1)
                    c.I("v_lshlrev_b32 %s, 16, %s" % (v(t), v(x)))
                    c.I("v_and_b32 %s, 0xffff0000, %s" % (v(t + 1), v(x)))
                    c.I("v_pk_add_f32 %s, %s, %s" % (v(d, 2), v(d, 2), v(t, 2)))
    ST.mark(c, 'r1')
    c.I("s_mul_i32 %s, %s, 14336" % (s(sT), s(sW)))
    c.I("v_add_u32 %s, %s, %s" % (v(vT), s(sT), v(vWr)))
    for i in range(7):
        for hf in range(2):
            c.I("ds_write_b128 %s, %s offset:%d" % (v(vT), v(vA + 8 * i + 4 * hf, 4), i * 2048 + hf * 1024))
    c.I("s_lshl_b32 %s, %s, 11" % (s(sT), s(sW)))
    c.I("v_add_u32 %s, %s, %s" % (v(vWr), s(sT), v(vWr)))
    sm, sq, one = vT, vT + 2, vT + 8
    c.I("v_mov_b32 %s, 0x3f803f80" % v(one))
    c.I("v_mov_b32 %s, 0" % v(sm))
    c.I("v_mov_b32 %s, 0" % v(sq))
    c.I("s_waitcnt lgkmcnt(0)")
    c.I("s_barrier")

    def rnd(r):
        q = Code()
        for w in range(4):
            for hf in range(2):
                q.I("ds_read_b128 %s, %s offset:%d" % (v(vD + 8 * w + 4 * hf, 4), v(vWr), w * 14336 + r * 8192 + hf * 1024))
        for k in range(4):
            q.I("v_pk_add_f32 %s, %s, %s" % (v(vD + 2 * k, 2), v(vD + 2 * k, 2), v(vD + 8 + 2 * k, 2)))
            q.I("v_pk_add_f32 %s, %s, %s" % (v(vD + 16 + 2 * k, 2), v(vD + 16 + 2 * k, 2), v(vD + 24 + 2 * k, 2)))
        for k in range(4):
            q.I("v_pk_add_f32 %s, %s, %s" % (v(vD + 2 * k, 2), v(vD + 2 * k, 2), v(vD + 16 + 2 * k, 2)))
        for k in range(4):
            t = vD + 32
            q.I("v_cvt_pk_bf16_f32 %s, %s, %s" % (v(t), v(vD + 2 * k), v(vD + 2 * k + 1)))
            q.I("v_lshlrev_b32 %s, 16, %s" % (v(t + 2), v(t)))
            q.I("v_and_b32 %s, 0xffff0000, %s" % (v(t + 3), v(t)))
            q.I("v_lshlrev_b32 %s, 16, %s" % (v(t + 4), v(vXr + 4 * r + k)))
            q.I("v_and_b32 %s, 0xffff0000, %s" % (v(t + 5), v(vXr + 4 * r + k)))
            q.I("v_pk_add_f32 %s, %s, %s" % (v(t + 2, 2), v(t + 2, 2), v(t + 4, 2)))
            q.I("v_cvt_pk_bf16_f32 %s, %s, %s" % (v(vH + 4 * r + k), v(t + 2), v(t + 3)))
        for k in range(4):
            q.I("v_dot2c_f32_bf16 %s, %s, %s" % (v(sm), v(vH + 4 * r + k), v(one)))
            q.I("v_dot2c_f32_bf16 %s, %s, %s" % (v(sq), v(vH + 4 * r + k), v(vH + 4 * r + k)))
        for k in range(2):
            q.I("buffer_store_dwordx2 %s, %s, %s, %s offen offset:%d sc1" % (v(vH + 4 * r + 2 * k, 2), v(vXo), s(sWS, 4), s(sX0), r * 512 + k * 32))
        return q

    c.I("s_add_u32 %s, %s, 0x%x" % (s(sX0), s(sX0), WS_H))
    c += rnd(0)
    c = autowait(c)
    c.I("s_cmp_eq_u32 %s, 3" % s(sW))
    c.I("s_cbranch_scc1 L3_one")
    r1 = autowait(rnd(1))
    d = Code()
    d.L("L3_one")
    d.I("s_nop 2")
    for x in (sm, sq):
        d.I("v_add_f32_dpp %s, %s, %s row_ror:8 row_mask:0xf bank_mask:0xf" % (v(x), v(x), v(x)))
    for sw in ("v_permlane16_swap_b32", "v_permlane32_swap_b32"):
        for x in (sm, sq):
            d.I("v_mov_b32 %s, %s" % (v(x + 1), v(x)))
        d.I("s_nop 1")
        for x in (sm, sq):
            d.I("%s %s, %s" % (sw, v(x), v(x + 1)))
        for x in (sm, sq):
            d.I("v_add_f32 %s, %s, %s" % (v(x), v(x), v(x + 1)))
    d.I("v_mov_b32 %s, %s" % (v(sm + 1), v(sq)))
    d.I("s_lshl_b32 %s, %s, 6" % (s(sT), s(sW)))
    d.I("v_add_u32 %s, %s, %s" % (v(vT + 4), s(sT), v(vSt)))
    d.I("ds_write_b64 %s, %s" % (v(vT + 4), v(sm, 2)))
    d.I("s_waitcnt lgkmcnt(0)")
    d.I("s_barrier")
    for w in range(4):
        d.I("ds_read_b64 %s, %s offset:%d" % (v(vD + 2 * w, 2), v(vSt), 64 * w))
    d.I("s_waitcnt lgkmcnt(0)")
    d.I("v_pk_add_f32 %s, %s, %s" % (v(vD, 2), v(vD, 2), v(vD + 2, 2)))
    d.I("v_pk_add_f32 %s, %s, %s" % (v(vD + 4, 2), v(vD + 4, 2), v(vD + 6, 2)))
    d.I("v_add_f32 %s, %s, %s" % (v(sm), v(vD), v(vD + 4)))
    d.I("v_add_f32 %s, %s, %s" % (v(sq), v(vD + 1), v(vD + 5)))
    proj.ln_scalars(d, sm, sq, sT)
    proj.ln_apply(d, [vH + k for k in range(8)], sm, sq, vT + 4)
    d.I("buffer_store_dwordx4 %s, %s, %s, %s offen sc1" % (v(vH, 4), v(vPo), s(sWS, 4), s(sH0)))
    d.I("s_cmp_eq_u32 %s, 3" % s(sW))
    d.I("s_cselect_b32 %s, 0x40000000, 0" % s(sT))
    d.I("s_add_u32 %s, %s, %s" % (s(sH0), s(sH0), s(sT)))
    d.I("s_add_u32 %s, %s, 0x2000" % (s(sH0), s(sH0)))
    d.I("buffer_store_dwordx4 %s, %s, %s, %s offen sc1" % (v(vH + 4, 4), v(vPo), s(sWS, 4), s(sH0)))
    if fused_next:
        d.I("s_lshl_b32 %s, %s, 7" % (s(sFl), s(sRb)))
        d.I("s_lshl_b32 %s, %s, 2" % (s(sT), s(sMem)))
        d.I("s_add_u32 %s, %s, %s" % (s(sFl), s(sFl), s(sT)))
        d.I("s_add_u32 %s, %s, 0x%x" % (s(sFl), s(sFl), WS_FLAG + FG_HN * 128))
        d.I("v_mov_b32 %s, 1" % v(vT + 8))
        d.I("v_mov_b32 %s, 0" % v(vT + 9))
        d.I("s_waitcnt vmcnt(0)")
        d.I("s_barrier")
        put(d, signal("L3_s", vT + 8, vT + 9, sFl))
    ST.mark(d, 'r2')
    return Code(c + r1 + d), [list(c + r1 + d), list(c + d)]
```

```python
from asmlib import *
from layout import *
from common import *
import proj
from proj import put
from ph3 import rbdecode


def gen(ST, opt, fused_prev, fused_next):
    V = Alloc(4, 256)
    vAcc = V(128, 4)
    V.p = 216
    vOB = V(4)
    vL, vST = V(), V()
    vT = V(8, 4)
    vQB, vQA = V(2), V(4)
    vP = V(12, 4)
    aX, aF = 0, 128
    sG, sU = 40, 44
    sRb, sSl, sOff, sXo, sXo1, sD, sFl, sCnt = range(48, 56)
    sD1 = 61
    slot_of = [0, 1, 2, 3, 4, 5, 6, 7, 8, 9, 0, 1, 2, 3]
    LA = 5

    def dmaW(t):
        return ["s_add_u32 m0, %s, 0x%x" % (s(sW4k), slot_of[t] * 16384)] + \
            [Ins("buffer_load_dwordx4 %s, %s, %s offen offset:%d lds" % (v(vOB + j), s(sU if j & 1 else sG, 4), s(sOff), 1024 * j),
                 {"w": (("S", slot_of[t]), ("G", t), 4)}) for j in range(4)] + \
            ["s_add_u32 %s, %s, %d" % (s(sOff), s(sOff), 32 * 3584)]

    def xload(t):
        out = ["buffer_load_dwordx4 %s, %s, %s, %s offen offset:%d" % (a(aX + 8 * t + 4 * qt, 4), v(vST), s(sWS, 4), s(sXo + qt), (t & 3) * 1024)
               for qt in range(2)]
        if t & 3 == 3:
            out += ["s_add_u32 %s, %s, 0x1000" % (s(sXo + qt), s(sXo + qt)) for qt in range(2)]
        return out

    p = Code()
    p.I("s_load_dwordx2 %s, s[0:1], 56" % s(sG, 2))
    p.I("s_load_dwordx2 %s, s[0:1], 64" % s(sU, 2))
    rbdecode(p, sRb, sSl)
    L = v(vL)
    t0, t1, t2, t3 = vT, vT + 1, vT + 2, vT + 3
    p.I("v_and_b32 %s, 63, v0" % L)
    p.I("v_lshrrev_b32 %s, 4, %s" % (v(t2), L))
    p.I("v_bfe_u32 %s, %s, 2, 2" % (v(t0), L))
    p.I("s_lshl_b32 %s, %s, 3" % (s(sT), s(sW)))
    p.I("v_add_u32 %s, %s, %s" % (v(t1), s(sT), v(t0)))
    p.I("v_mul_u32_u24 %s, 3584, %s" % (v(t1), v(t1)))
    p.I("v_lshl_add_u32 %s, %s, 6, %s" % (v(t1), v(t2), v(t1)))
    p.I("v_and_b32 %s, 3, %s" % (v(t3), L))
    p.I("v_lshl_add_u32 %s, %s, 4, %s" % (v(t1), v(t3), v(t1)))
    p.I("v_xor_b32 %s, 32, %s" % (v(vT + 4), v(t1)))
    for j in range(4):
        p.I("v_add_u32 %s, 0x%x, %s" % (v(vOB + j), 4 * (j >> 1) * 3584 + 4096 - j * 1024, v(vT + 4 if j >> 1 else t1)))
    p.I("v_lshlrev_b32 %s, 11, %s" % (v(t1), v(t2)))
    p.I("v_lshl_add_u32 %s, %s, 6, %s" % (v(t1), v(t0), v(t1)))
    p.I("v_bfe_u32 %s, %s, 4, 1" % (v(t0), L))
    p.I("v_lshl_add_u32 %s, %s, 5, %s" % (v(t1), v(t0), v(t1)))
    p.I("v_lshl_add_u32 %s, %s, 3, %s" % (v(vQB), v(t3), v(t1)))
    p.I("v_xor_b32 %s, 32, %s" % (v(vQB + 1), v(vQB)))
    p.I("v_lshlrev_b32 %s, 4, %s" % (v(vST), L))
    p.I("s_waitcnt lgkmcnt(0)")
    for d in (sG, sU):
        p.I("s_sub_u32 %s, %s, 4096" % (s(d), s(d)))
        p.I("s_subb_u32 %s, %s, 0" % (s(d + 1), s(d + 1)))
        srd_fin(p, d, 448 * 3584 + 4096)
    p.I("s_min_u32 %s, %s, 13" % (s(sT), s(sSl)))
    p.I("s_lshl_b32 %s, %s, 8" % (s(sOff), s(sT)))
    for t_ in range(LA):
        g = dmaW(t_)
        put(p, [g[0], "s_nop 0"] + g[1:])
    yield p, (vOB, vP + 16)

    c = Code()
    c.I("s_cmp_ge_u32 %s, 14" % s(sSl))
    c.I("s_cbranch_scc1 L_end")
    c.I("s_lshl_b32 %s, %s, 2" % (s(sT), s(sRb)))
    c.I("s_add_u32 %s, %s, %s" % (s(sT), s(sT), s(sW)))
    c.I("s_mul_i32 %s, %s, %d" % (s(sXo), s(sT), 28 * 1024))
    c.I("s_add_u32 %s, %s, 0x%x" % (s(sXo), s(sXo), WS_HN))
    c.I("s_add_u32 %s, %s, %d" % (s(sXo1), s(sXo), 14 * 1024))
    c.I("s_mul_i32 %s, %s, %d" % (s(sD), s(sT), 2 * MID_TS))
    c.I("s_lshl_b32 %s, %s, 12" % (s(sT), s(sSl)))
    c.I("s_add_u32 %s, %s, %s" % (s(sD), s(sD), s(sT)))
    c.I("s_add_u32 %s, %s, 0x%x" % (s(sD), s(sD), WS_MID))
    if fused_prev:
        c.I("s_lshl_b32 %s, %s, 7" % (s(sFl), s(sRb)))
        c.I("s_add_u32 %s, %s, 0x%x" % (s(sFl), s(sFl), WS_FLAG + FG_HN * 128))
        c.I("v_min_u32 %s, 15, %s" % (v(vT + 3), L))
        c.I("v_lshlrev_b32 %s, 2, %s" % (v(vT + 3), v(vT + 3)))
        wg_wait(c, "L4_hn", vT + 4, vT + 3, sFl, sCnt)
        put(c, acquire("L4_a"))
    ST.mark(c, 'g0')
    for t_ in range(4):
        put(c, xload(t_))
    sWd, sTo = 56, 60
    c.I("s_load_dwordx2 %s, s[0:1], 72" % s(sWd, 2))
    c.I("s_lshr_b32 %s, %s, 3" % (s(sTo), s(sRb)))
    c.I("s_mul_i32 %s, %s, 14" % (s(sTo), s(sTo)))
    c.I("s_add_u32 %s, %s, %s" % (s(sTo), s(sTo), s(sSl)))
    c.I("s_lshl_b32 %s, %s, 2" % (s(sTo), s(sTo)))
    c.I("s_add_u32 %s, %s, %s" % (s(sTo), s(sTo), s(sW)))
    c.I("s_mul_i32 %s, %s, %d" % (s(sTo), s(sTo), 14 * 1024))
    c.I("s_waitcnt lgkmcnt(0)")
    srd_fin(c, sWd, 1792 * 896)

    def tw(t):
        if not opt.get("wdl2", True):
            return []
        out = [Ins("buffer_load_dwordx4 %s, %s, %s, %s offen offset:%d" % (v(vP, 4), v(vST), s(sWd, 4), s(sTo), (t & 3) * 1024), {"nodst": True})]
        if t & 3 == 3:
            out.append("s_add_u32 %s, %s, 0x1000" % (s(sTo), s(sTo)))
        return out
    sx = {t_: tw(t_) + (xload(t_ + 4) if t_ + 4 < 14 else []) + (dmaW(t_ + LA) if t_ + LA < 14 else []) for t_ in range(14)}
    c.I("s_add_u32 %s, %s, %d" % (s(sD1), s(sD), MID_TS))

    def late(pair):
        if pair < 4:
            return []
        ks = pair - 4
        out = []
        for qt in range(2):
            pk = vP + 4 + 4 * qt
            for k in range(4):
                src = vAcc + 8 * (2 * ks + (k >> 1)) + 4 * qt + 2 * (k & 1)
                out.append("v_pk_mul_f32 %s, %s, %s" % (v(src, 2), v(src, 2), v(src + 64, 2)))
            for k in range(4):
                src = vAcc + 8 * (2 * ks + (k >> 1)) + 4 * qt + 2 * (k & 1)
                out.append("v_cvt_pk_bf16_f32 %s, %s, %s" % (v(pk + k), v(src), v(src + 1)))
            out.append("buffer_store_dwordx4 %s, %s, %s, %s offen offset:%d sc1" % (v(pk, 4), v(vST), s(sWS, 4), s(sD1 if qt else sD), ks * 1024))
        return out
    proj.proj_main(c, lambda qt, t: a(aX + 8 * t + 4 * qt, 4), vQB, vQA, lambda nt, qt: v(vAcc + 8 * nt + 4 * qt, 4),
                   lambda k, n: a(aF + k, n), 16, slot_of, {}, rstride=8192, step_extra=sx, tagname="G", late=late)
    ST.mark(c, 'g1')
    if fused_next:
        c.I("s_lshl_b32 %s, %s, 7" % (s(sFl), s(sRb)))
        c.I("s_lshl_b32 %s, %s, 2" % (s(sT), s(sSl)))
        c.I("s_add_u32 %s, %s, %s" % (s(sFl), s(sFl), s(sT)))
        c.I("s_add_u32 %s, %s, 0x%x" % (s(sFl), s(sFl), WS_FLAG + FG_MID * 128))
        c.I("v_mov_b32 %s, 1" % v(vT))
        c.I("v_mov_b32 %s, 0" % v(vT + 1))
        c.I("s_waitcnt vmcnt(0)")
        c.I("s_barrier")
        put(c, signal("L4_s", vT, vT + 1, sFl))
    ST.mark(c, 'g2')
    w = autowait(Code(p + fix_m0(c)))
    yield Code(w[len(p):])
```

```python
from asmlib import *

M16 = "v_mfma_f32_16x16x32_bf16 %s, %s, %s, %s"


def put(c, lst):
    for x in lst:
        c.append(x if isinstance(x, Ins) else Ins(x))


def rnd_bf16(code, t):
    code.I("v_cvt_pk_bf16_f32 %s, %s, %s" % (v(t), v(t), v(t)))
    code.I("v_and_b32 %s, 0xffff0000, %s" % (v(t), v(t)))


def ln_scalars(c, sm, sq, sTmp, scale=None):
    c.I("s_mov_b32 %s, 0x3b124925" % s(sTmp))
    c.I("v_mul_f32 %s, %s, %s" % (v(sm), s(sTmp), v(sm)))
    c.I("v_mul_f32 %s, %s, %s" % (v(sq), s(sTmp), v(sq)))
    c.I("v_fma_f32 %s, -%s, %s, %s" % (v(sq), v(sm), v(sm), v(sq)))
    c.I("v_max_f32 %s, 0, %s" % (v(sq), v(sq)))
    rnd_bf16(c, sm)
    rnd_bf16(c, sq)
    c.I("v_add_f32 %s, 0x3727c5ac, %s" % (v(sq), v(sq)))
    rnd_bf16(c, sq)
    c.I("v_sqrt_f32 %s, %s" % (v(sq), v(sq)))
    c.I("s_nop 0")
    rnd_bf16(c, sq)
    c.I("v_rcp_f32 %s, %s" % (v(sq), v(sq)))
    c.I("s_nop 0")
    if scale:
        c.I("v_mul_f32 %s, 0x%x, %s" % (v(sq), scale, v(sq)))
    c.I("v_mul_f32 %s, -%s, %s" % (v(sm), v(sm), v(sq)))
    c.I("v_mov_b32 %s, %s" % (v(sm + 1), v(sm)))
    c.I("v_mov_b32 %s, %s" % (v(sq + 1), v(sq)))


def ln_apply(c, regs, sm, sq, t4):
    for n, x in enumerate(regs):
        t = t4 + 2 * (n & 1)
        c.I("v_lshlrev_b32 %s, 16, %s" % (v(t), v(x)))
        c.I("v_and_b32 %s, 0xffff0000, %s" % (v(t + 1), v(x)))
        c.I("v_pk_fma_f32 %s, %s, %s, %s" % (v(t, 2), v(t, 2), v(sq, 2), v(sm, 2)))
        c.I("v_cvt_pk_bf16_f32 %s, %s, %s" % (v(x), v(t), v(t + 1)))


def frag_loads(c, vXf, vLn16, srd, sOff, flags=""):
    c.I("s_add_u32 %s, %s, %d" % (s(sOff + 1), s(sOff), 14 * 1024))
    for ks in range(14):
        for qt in range(2):
            c.I("buffer_load_dwordx4 %s, %s, %s, %s offen offset:%d%s" % (v(vXf + 4 * (qt * 14 + ks), 4), v(vLn16), s(srd, 4), s(sOff + qt), (ks & 3) * 1024, flags))
        if ks & 3 == 3:
            for qt in range(2):
                c.I("s_add_u32 %s, %s, 0x1000" % (s(sOff + qt), s(sOff + qt)))


def proj_main(c, xfrag, vQB, vQA, acc, ring, nring, slot_of, hooks, rstride=2048, fill=(), fill_steps=10, need_extra=None,
              after_bar=None, step_extra=None, tagname="W", first_need=True, marks=None, late=None, first_reads=True):
    need_extra = need_extra or {}
    after_bar = after_bar or {}
    step_extra = step_extra or {}
    FR = [(t, nt) for t in range(12) for nt in range(16)] + [(t, nt) for nt in range(16) for t in (12, 13)]

    def setaddr(t):
        return ["v_add_u32 %s, 0x%x, %s" % (v(vQA + 2 * (t & 1) + k), slot_of[t] * 16384, v(vQB + k)) for k in range(2)]

    def rd(F):
        t, nt = FR[F]
        pre = setaddr(t) if nt == 0 else []
        return pre + [Ins("ds_read_b64_tr_b16 %s, %s offset:%d" % (ring(4 * (F % nring) + 2 * r, 2), v(vQA + 2 * (t & 1) + (nt & 1)), r * rstride + (nt >> 1) * 256),
                          {"r": (("S", slot_of[t]), (tagname, t))}) for r in range(2)]

    first = [x for F in range(nring) for x in rd(F)]
    if first_need:
        c.append(Ins("@need", {"need": [(tagname, k) for k in range(3)]}))
        c.I("s_barrier")
    if first_reads:
        put(c, first)
    fill = list(fill)
    per = (len(fill) + fill_steps - 1) // fill_steps if fill else 0
    rest = []
    for b in range(14):
        if b and b % 2 == 0:
            nd = sorted(set(FR[F][0] for F in range(16 * b + nring, min(224, 16 * b + 32 + nring))))
            c.append(Ins("@need", {"need": [(tagname, k) for k in nd] + need_extra.get(b // 2, [])}))
            c.I("s_barrier")
            put(c, after_bar.get(b // 2, []))
            if marks:
                marks(c, b // 2)
        mains = []
        for F in range(16 * b, 16 * b + 16):
            t, nt = FR[F]
            for qt in range(2):
                d = acc(nt, qt)
                mains.append(M16 % (d, ring(4 * (F % nring), 4), xfrag(qt, t), d if t else "0"))
        rs = []
        for f in range(16):
            if 16 * b + f + nring < 224:
                g_ = rd(16 * b + f + nring)
                rs += [(x, 2 * f + 1 + max(0, k - len(g_) + 2), max(0, 2 * f + 1 - 2 * (k < len(g_) - 2)), min(31, 2 * f + 4)) for k, x in enumerate(g_)]
        streams = [rs]
        hk = hooks.get(b // 2, []) if b >= 2 else []
        hk = hk[:(len(hk) + 1) // 2] if b % 2 == 0 else hk[(len(hk) + 1) // 2:]
        flat = [x for grp in hk for x in grp] + list(step_extra.get(b, []))
        if flat:
            streams.append(spread(flat, 1, 30))
        mine, fill = fill[:per], fill[per:]
        if mine:
            streams.append([(x, (k * 31.0) / len(mine), 0, 31) for k, x in enumerate(mine)])
        if late and b >= 12:
            ls = []
            for pair in range(8):
                lo = 8 * pair + 11 - 32 * (b - 12)
                if (b == 12 and lo < 28) or (b == 13 and -4 <= lo < 28):
                    lo = max(lo, 0)
                    g = late(pair)
                    ls += [(x, lo + k * 8.0 / len(g), lo, 31) for k, x in enumerate(g)]
                elif b == 13 and lo >= 28:
                    rest += late(pair)
            streams.append(ls)
        gaps, load = schedule(32, 8, streams)
        weave(c, mains, gaps)
    if rest:
        c.I("s_nop 5")
        put(c, rest)
    return first
```

```python
import sys
from asmlib import *
from common import *
import gen as G
import ph1, ph2, ph3, ph4, ph5

MARKS = {"front": "start kv0 kv1 q1 qc qok a1 a2 fin op e0 e1",
         "tail": "start r0 r1 r2 g0 g1 g2 d0 d1 d2 e0 e1",
         "all": "start kv0 kv1 q1 a1 fin op r0 r2 g2 d2 e1"}


ALIGN = [0]


def wrap(name, parts, ST, region, init):
    c = Code()
    c.L("L_begin")
    pre = preamble(256, "L_end")
    c += pre
    if init:
        ST.init(c)
        ST.mark(c, 'start')
    for p in parts:
        c += p
    ST.mark(c, 'e0')
    if ST.on:
        c.I("s_waitcnt vmcnt(0)")
    ST.mark(c, 'e1')
    ST.dump(c, sW, 0, region)
    c.L("L_end")
    c.I("s_endpgm")
    c += OOL
    c.L("L_last")
    c.I("s_endpgm")
    del OOL[:]
    c = Code(Ins(x.t.replace("L_end", "L_end_" + name[:5]), x.ann) for x in c)
    if ALIGN[0]:
        c = align8(c)
    return dict(name=name, code=c, vgpr=512, accum=256, sgpr=102, grid=256, block=256, lds=163840)


def build(opt):
    stamp = opt.get("stamp", False)
    fuse = opt.get("fuse", 0)
    ALIGN[0] = opt.get("align", 0)
    CT[0] = opt.get('ct', 1)
    POLL1[0] = opt.get('poll1', 1)
    SLEEP[0] = opt.get("sleep", 2)
    mk = lambda k: Stamps(stamp, opt.get("marks", MARKS[k]).split())
    if fuse == 2:
        SF = STl = mk("all")
    else:
        SF, STl = mk("front"), mk("tail")
    pre = preamble(256, "L_end")
    g2 = ph2.gen(SF, opt, fuse == 2)
    c1, tr1 = ph1.gen(SF, opt, next(g2))
    vm = [x for x in c1 if x.t.startswith("buffer_")]
    last = lambda slab: max(k for k, x in enumerate(vm) if (x.ann or {}).get("w", (0, 0))[1] == slab)
    opt["nk0"] = len(vm) - 1 - last(("K", 0))
    opt["nv0"] = len(vm) - 1 - max(last(("V", 0)), last(("K", 1)))
    c2, tr2 = next(g2)
    for i, t in enumerate(tr1):
        assert opt.get('nocheck') or not check(list(pre) + t + (tr2[i % 2] if i < 2 else []), "ph1.%d" % i)
    for i, t in enumerate(tr2):
        assert opt.get('nocheck') or not check(list(pre) + tr1[0] + t, "ph2.%d" % i)
    ks = []
    if fuse < 2:
        ks.append(wrap("front_kernel", [c1, c2], SF, 0, False))
    if fuse < 0:
        return ks
    g4 = ph4.gen(STl, opt, fuse >= 1, fuse >= 1)
    p4, keep = next(g4)
    c3, tr3 = ph3.gen(STl, opt, fuse == 2, fuse >= 1, p4 if fuse >= 1 else ())
    if fuse == 0:
        ks.append(wrap("reduce_kernel", [c3], STl, 1, True))
    c4 = next(g4)
    if fuse == 0:
        ks.append(wrap("gateup_kernel", [p4, c4], STl, 2, True))
    c5 = ph5.gen(STl, opt, fuse >= 1)
    if fuse == 0:
        ks.append(wrap("down_kernel", [c5], STl, 3, True))
        for t, n in ((tr3[0], "ph3"), (tr3[1], "ph3b"), (list(p4 + c4), "ph4"), (list(c5), "ph5")):
            assert not check(list(pre) + t, n)
    else:
        assert opt.get('nocheck') or not check(list(pre) + tr3[0] + list(c4) + list(c5), "tail")
        assert opt.get('nocheck') or not check(list(pre) + tr3[1] + list(c4) + list(c5), "tail")
    if fuse == 2:
        assert opt.get('nocheck') or not check(list(pre) + tr1[0] + tr2[0] + tr3[0] + list(c4) + list(c5), "all")
        ks.append(wrap("sequential_preLN__compressed_kv_cla__glu_gated_bilinear__prompt_kernel" if opt.get("final") else "fused_kernel", [c1, c2, c3, c4, c5], SF, 0, False))
    return ks


if __name__ == "__main__":
    opt = {m.split("=")[0]: eval(m.split("=", 1)[1]) for m in sys.argv[2:]}
    open(sys.argv[1], "w").write(G.build(build(opt)))
    print("wrote", sys.argv[1])
```

```python
import re


class Ins:
    __slots__ = ("t", "ann")

    def __init__(self, t, ann=None):
        self.t = t
        self.ann = ann

    def __repr__(self):
        return self.t


def R(kind, base, n=1):
    return "%s%d" % (kind, base) if n == 1 else "%s[%d:%d]" % (kind, base, base + n - 1)


def v(b, n=1):
    return R("v", b, n)


def a(b, n=1):
    return R("a", b, n)


def s(b, n=1):
    return R("s", b, n)


class Alloc:
    def __init__(self, start, limit):
        self.p = start
        self.limit = limit
        self.names = {}

    def __call__(self, n=1, align=1, name=None):
        self.p = (self.p + align - 1) // align * align
        b = self.p
        self.p += n
        assert self.p <= self.limit, "out of registers"
        if name:
            self.names[name] = (b, n)
        return b


class Code(list):
    def I(self, t, ann=None):
        self.append(Ins(t, ann))
        return self

    def L(self, name):
        self.append(Ins(name + ":"))

    def C(self, text):
        self.append(Ins("; " + text))

    def text(self):
        out = []
        for i in self:
            if i.t.endswith(":") or i.t.startswith(";") or i.t.startswith("."):
                out.append(i.t)
            else:
                out.append(" " + i.t)
        return "\n".join(out)


def weave(code, mains, gaps, pre=None):
    for i, m in enumerate(mains):
        if pre and i in pre:
            for g in pre[i]:
                code.append(g if isinstance(g, Ins) else Ins(g))
        code.append(m if isinstance(m, Ins) else Ins(m))
        for g in gaps.get(i, []):
            code.append(g if isinstance(g, Ins) else Ins(g))


def mfma(d, A, B, c):
    return "v_mfma_f32_32x32x16_bf16 %s, %s, %s, %s" % (d, A, B, c)


_REG = re.compile(r"^(-|abs\(|\|)?([vas])(\d+)\)?\|?$|^(-)?([vas])\[(\d+):(\d+)\]$")
_TRANS = ("v_exp_f32", "v_log_f32", "v_rcp_f32", "v_rsq_f32", "v_sqrt_f32", "v_sin_f32", "v_cos_f32",
          "v_rcp_iflag_f32")


def regs_of(tok):
    tok = tok.strip()
    if tok in ("vcc",):
        return [("s", "vcc")]
    if tok in ("vcc_lo", "vcc_hi"):
        return [("s", "vcc")]
    if tok == "exec":
        return [("s", "exec")]
    if tok == "m0":
        return [("s", "m0")]
    m = _REG.match(tok)
    if not m:
        return []
    if m.group(2):
        return [(m.group(2), int(m.group(3)))]
    return [(m.group(5), i) for i in range(int(m.group(6)), int(m.group(7)) + 1)]


def split_ops(rest):
    ops, depth, cur = [], 0, ""
    for ch in rest:
        if ch in "[(":
            depth += 1
        if ch in "])":
            depth -= 1
        if ch == "," and depth == 0:
            ops.append(cur.strip())
            cur = ""
        else:
            cur += ch
    if cur.strip():
        ops.append(cur.strip())
    mods = []
    if ops:
        parts = ops[-1].split()
        ops[-1] = parts[0]
        mods = parts[1:]
    return ops, mods


class P:
    pass


def parse(t):
    p = P()
    t = t.split(";")[0].strip()
    sp = t.split(None, 1)
    p.op = sp[0]
    for suf in ("_e32", "_e64"):
        if p.op.endswith(suf):
            p.op = p.op[: -len(suf)]
    rest = sp[1] if len(sp) > 1 else ""
    p.ops, p.mods = split_ops(rest) if p.op not in ("s_waitcnt",) else ([], rest.split())
    op = p.op
    o = p.ops
    rg = lambda k: regs_of(o[k]) if k < len(o) else []
    p.d, p.s = [], []
    p.cls = "other"
    p.ab, p.c = [], []
    if op.startswith("v_mfma"):
        p.cls = "mfma"
        p.d = rg(0)
        p.ab = rg(1) + rg(2)
        p.c = rg(3)
        p.s = p.ab + p.c
        p.passes = 8 if "32x32" in op else 4
    elif op.startswith("ds_read") or op.startswith("ds_bpermute") or op.startswith("ds_swizzle"):
        p.cls = "ds"
        p.d = rg(0)
        p.s = sum((rg(k) for k in range(1, len(o))), [])
    elif op.startswith("ds_write"):
        p.cls = "ds"
        p.s = sum((rg(k) for k in range(len(o))), [])
    elif op.startswith("buffer_load") or op.startswith("global_load"):
        p.cls = "vmem"
        if "lds" in p.mods or "_lds_" in op:
            p.s = sum((rg(k) for k in range(len(o))), []) + [("s", "m0")]
            p.dma = True
        else:
            p.d = rg(0)
            p.s = sum((rg(k) for k in range(1, len(o))), [])
    elif op.startswith("buffer_store") or op.startswith("global_store"):
        p.cls = "vmem"
        p.s = sum((rg(k) for k in range(len(o))), [])
        p.store = rg(0) if op.startswith("buffer") else rg(1)
        p.wide = "x3" in op or "x4" in op
    elif op.startswith("buffer_atomic") or op.startswith("global_atomic"):
        p.cls = "vmem"
        p.s = sum((rg(k) for k in range(len(o))), [])
        if "sc0" in p.mods:
            p.d = rg(0)
    elif op in ("buffer_wbl2", "buffer_inv"):
        p.cls = "vmem"
    elif op.startswith("s_load") or op in ("s_memtime", "s_memrealtime"):
        p.cls = "smem"
        p.d = rg(0)
        p.s = rg(1) + rg(2)
    elif op.startswith("v_"):
        p.cls = "valu"
        p.d = rg(0)
        p.s = sum((rg(k) for k in range(1, len(o))), [])
        if op.startswith("v_cmpx"):
            p.d = p.d + [("s", "exec")]
        if op.startswith(("v_fmac", "v_dot2c", "v_mac", "v_pk_fmac")):
            p.s += p.d
        if op.startswith("v_permlane") and "swap" in op:
            p.d = rg(0) + rg(1)
            p.s = rg(0) + rg(1)
        if op.startswith(("v_add_co", "v_sub_co", "v_addc_co", "v_subb_co", "v_div_scale")):
            p.d = rg(0) + rg(1)
            p.s = sum((rg(k) for k in range(2, len(o))), [])
        if op.startswith("v_writelane") or "dpp" in op or "sdwa" in op:
            p.s += [r for r in p.d if r[0] == "v"]
    elif op.startswith("s_"):
        p.cls = "salu"
        if op.startswith(("s_cmp", "s_cbranch", "s_branch", "s_waitcnt", "s_barrier", "s_nop", "s_setprio",
                          "s_endpgm", "s_sleep", "s_bitcmp")):
            p.s = sum((rg(k) for k in range(len(o))), [])
            if op in ("s_cbranch_vccz", "s_cbranch_vccnz"):
                p.s = [("s", "vcc")]
        else:
            p.d = rg(0)
            p.s = sum((rg(k) for k in range(1, len(o))), [])
            if "saveexec" in op:
                p.d += [("s", "exec")]
                p.s += [("s", "exec")]
            if op.startswith(("s_addk", "s_mulk", "s_cmov")):
                p.s += p.d
    return p


def check(trace, name="", verbose=True):
    errs = []
    ws = 0
    last = {}
    vmq, lgq = [], []
    smem_pending = []
    pend = {}
    slot_owner = {}
    slab_landed_bar = {}
    slab_parts_out = {}
    slab_issued, slab_nparts = {}, {}
    slab_reads_out = {}
    slab_read_since_bar = set()

    def err(i, msg):
        errs.append("%s[%d] %s :: %s" % (name, i, trace[i].t, msg))

    def need(i, key, n, msg):
        if key in last and ws - last[key] - 1 < n:
            err(i, "%s: %d wait states, need %d" % (msg, ws - last[key] - 1, n))

    for i, ins in enumerate(trace):
        t = ins.t
        if t.endswith(":") or t.startswith(";") or t.startswith("."):
            continue
        p = parse(t)
        if (ins.ann or {}).get("nodst"):
            p.d = []
        for r in p.s + p.d:
            if r in pend:
                err(i, "touches %s%s with load pending (%s)" % (r[0], r[1], pend[r]))
        isv = p.cls == "valu"
        if p.cls == "mfma":
            for r in p.s:
                need(i, ("valu_w", r), 2, "VALU write -> MFMA read %s%s" % r)
            for r in p.ab:
                if ("mfma_w", r) in last:
                    need(i, ("mfma_w", r), last[("mfma_p", r)] + 4, "MFMA D -> MFMA A/B %s%s" % r)
            if p.c:
                for r in p.c:
                    if ("mfma_w", r) in last and last.get(("mfma_dset", r)) != tuple(p.c):
                        need(i, ("mfma_w", r), last[("mfma_p", r)] + 2, "MFMA D -> overlapping C %s%s" % r)
            if tuple(p.d) != tuple(p.c):
                for r in p.d:
                    if ("mfma_w", r) in last and last.get(("mfma_dset", r)) != tuple(p.d):
                        need(i, ("mfma_w", r), last[("mfma_p", r)] + 2, "MFMA D -> MFMA D WAW %s%s" % r)
            need(i, ("valu_w", ("s", "exec")), 4, "VALU exec write -> MFMA")
        if isv or p.cls in ("vmem", "ds"):
            for r in p.s + p.d:
                if ("mfma_w", r) in last:
                    need(i, ("mfma_w", r), last[("mfma_p", r)] + 4, "MFMA D -> VALU/mem %s%s" % r)
        if isv:
            for r in p.d:
                if ("mfma_c", r) in last:
                    need(i, ("mfma_c", r), last[("mfma_cp", r)] - 1, "MFMA C read -> VALU write %s%s" % r)
                need(i, ("store_d", r), 2, "wide store data -> VALU overwrite %s%s" % r)
            if p.op not in _TRANS:
                for r in p.s:
                    need(i, ("trans_w", r), 1, "trans -> VALU %s%s" % r)
            for r in p.s:
                if r[0] == "s":
                    n = 4 if p.op.startswith(("v_readlane", "v_writelane")) else 2
                    if p.op == "v_div_fmas_f32":
                        n = 4
                    need(i, ("valu_w", r), n, "VALU sgpr write -> VALU read %s" % (r[1],))
            if p.op.startswith("v_cndmask") and len(p.ops) == 4:
                pass
            if p.op.startswith(("v_readlane", "v_readfirstlane")):
                for r in p.s:
                    if r[0] == "v":
                        need(i, ("valu_w", r), 1, "VALU write -> readlane")
                need(i, ("valu_w", ("s", "exec")), 4, "exec write -> readlane")
            if p.op.startswith("v_permlane") or "dpp" in p.op:
                for r in p.s:
                    need(i, ("valu_w", r), 2, "VALU write -> permlane/dpp %s%s" % r)
        if p.cls in ("ds", "vmem") and p.d:
            for r in p.d:
                if ("mfma_c", r) in last:
                    need(i, ("mfma_c", r), last[("mfma_cp", r)] - 1, "MFMA C read -> load write")
                need(i, ("store_d", r), 1, "wide store data -> overwrite")
        if p.cls == "vmem":
            for r in p.s:
                if r[0] == "s":
                    need(i, ("valu_w", r), 5, "VALU sgpr write -> VMEM read")
            if getattr(p, "dma", False):
                need(i, ("salu_w", ("s", "m0")), 1, "m0 write -> LDS DMA")
        if p.cls == "salu":
            for r in p.s:
                if r == ("s", "vcc") and p.op.startswith("s_cbranch"):
                    need(i, ("valu_w", r), 0, "")
        ann = ins.ann or {}
        if "w" in ann:
            slot, slab = ann["w"][:2]
            slab_issued[slab] = slab_issued.get(slab, 0) + 1
            slab_nparts[slab] = ann["w"][2]
            old = slot_owner.get(slot)
            if old is not None and old != slab:
                if slab_reads_out.get(old, 0) > 0 or old in slab_read_since_bar:
                    err(i, "overwrites slot %s (slab %s) whose reads are not fenced by a barrier" % (slot, old))
                if slab_parts_out.get(old, 0) > 0:
                    err(i, "slot %s still has DMA of %s in flight" % (slot, old))
            slot_owner[slot] = slab
            slab_parts_out[slab] = slab_parts_out.get(slab, 0) + 1
            slab_landed_bar[slab] = False
        for slot in ann.get("alias", ()):
            old = slot_owner.get(slot)
            if old is not None:
                if slab_reads_out.get(old, 0) > 0 or old in slab_read_since_bar or slab_parts_out.get(old, 0) > 0:
                    err(i, "overwrites aliased slot %s (slab %s) still in use" % (slot, old))
                slot_owner[slot] = ("dead", slot)
        if "r" in ann:
            slot, slab = ann["r"]
            if slab is not None:
                if slot_owner.get(slot) != slab:
                    err(i, "reads slot %s expecting %s but owner is %s" % (slot, slab, slot_owner.get(slot)))
                elif slab_issued.get(slab) != slab_nparts.get(slab):
                    err(i, "reads slab %s with %s/%s parts issued" % (slab, slab_issued.get(slab), slab_nparts.get(slab)))
                elif not slab_landed_bar.get(slab) and not ann.get("private"):
                    err(i, "reads slab %s not landed+barrier" % (slab,))
                elif ann.get("private") and slab_parts_out.get(slab, 0) > 0:
                    err(i, "reads private slab %s with DMA in flight" % (slab,))
                slab_reads_out[slab] = slab_reads_out.get(slab, 0) + 1
                if not ann.get("private"):
                    slab_read_since_bar.add(slab)
        if p.cls == "mfma":
            for r in p.d:
                last[("mfma_w", r)] = ws
                last[("mfma_p", r)] = p.passes
                last[("mfma_dset", r)] = tuple(p.d)
            for r in p.c:
                last[("mfma_c", r)] = ws
                last[("mfma_cp", r)] = p.passes
        elif isv:
            for r in p.d:
                last[("valu_w", r)] = ws
                last.pop(("mfma_w", r), None)
                if p.op in _TRANS:
                    last[("trans_w", r)] = ws
                else:
                    last.pop(("trans_w", r), None)
        elif p.cls == "salu":
            for r in p.d:
                last[("salu_w", r)] = ws
                last.pop(("valu_w", r), None)
        if p.cls == "vmem":
            vmq.append((p.d, ann))
            for r in p.d:
                pend[r] = "vm@%d" % i
                last.pop(("mfma_w", r), None)
            if getattr(p, "store", None) and p.wide:
                for r in p.store:
                    last[("store_d", r)] = ws
            if len(vmq) > 63:
                err(i, "more than 63 vmem ops outstanding")
        elif p.cls == "ds":
            lgq.append((p.d, ann))
            for r in p.d:
                pend[r] = "ds@%d" % i
                last.pop(("mfma_w", r), None)
        elif p.cls == "smem":
            smem_pending.append(p.d)
            for r in p.d:
                pend[r] = "sm@%d" % i
        if p.op == "s_waitcnt":
            txt = " ".join(p.mods)
            m = re.search(r"vmcnt\((\d+)\)", txt)
            if m:
                n = int(m.group(1))
                while len(vmq) > n:
                    d, an = vmq.pop(0)
                    for r in d:
                        pend.pop(r, None)
                    if "w" in an:
                        slab_parts_out[an["w"][1]] -= 1
            m = re.search(r"lgkmcnt\((\d+)\)", txt)
            if m:
                n = int(m.group(1))
                if n > 15:
                    err(i, "lgkmcnt > 15")
                if smem_pending and n > 0:
                    err(i, "counted lgkmcnt with SMEM outstanding")
                if n == 0:
                    for d in smem_pending:
                        for r in d:
                            pend.pop(r, None)
                    smem_pending = []
                while len(lgq) > n:
                    d, an = lgq.pop(0)
                    for r in d:
                        pend.pop(r, None)
                    if "r" in an and an["r"][1] is not None:
                        slab_reads_out[an["r"][1]] -= 1
                    if "w" in an:
                        slab_parts_out[an["w"][1]] -= 1
        if p.op == "s_barrier":
            for slab, n in slab_parts_out.items():
                if n == 0:
                    slab_landed_bar[slab] = True
            slab_read_since_bar = set(sl for sl in slab_read_since_bar if slab_reads_out.get(sl, 0) > 0)
        if p.op == "s_nop":
            ws += int(p.ops[0], 0) + 1
        else:
            ws += 1
    if verbose:
        for e in errs[:40]:
            print("CHECK:", e)
        print("check %s: %d instrs, %d errors" % (name, len(trace), len(errs)))
    return errs


STAMP_OFF = 200 << 20


class Stamps:
    def __init__(self, on, names=None):
        self.on, self.sb, self.st, self.n = on, 76, 72, 12
        self.names = names

    def init(self, c):
        if not self.on:
            return
        for k in range(2 * self.n):
            c.I("s_mov_b32 %s, 0" % s(self.sb + k))

    def mark(self, c, k):
        if not self.on:
            return
        if self.names is not None:
            if k not in self.names:
                return
            k = self.names.index(k)
        c.I("s_waitcnt lgkmcnt(0)")
        c.I("s_memtime s[100:101]")
        c.I("s_waitcnt lgkmcnt(0)")
        c.I("s_mov_b32 %s, s100" % s(self.sb + k))
        c.I("s_memrealtime s[100:101]")
        c.I("s_waitcnt lgkmcnt(0)")
        c.I("s_mov_b32 %s, s100" % s(self.sb + self.n + k))

    def dump(self, c, sW, vt, region=0, wg="s2"):
        if not self.on:
            return
        q = 72
        c.I("s_load_dwordx2 s[72:73], s[0:1], 96")
        c.I("s_waitcnt lgkmcnt(0)")
        c.I("s_add_u32 %s, s72, 0x%x" % (s(q), STAMP_OFF + region * (1 << 17)))
        c.I("s_addc_u32 %s, s73, 0" % s(q + 1))
        c.I("s_and_b32 %s, %s, 0xffff" % (s(q + 1), s(q + 1)))
        c.I("s_mov_b32 %s, 0x20000" % s(q + 2))
        c.I("s_mov_b32 %s, 0x20000" % s(q + 3))
        c.I("s_lshl_b32 s70, %s, 2" % wg)
        c.I("s_add_u32 s70, s70, %s" % s(sW))
        c.I("s_lshl_b32 s70, s70, 7")
        c.I("v_mov_b32 v7, 0")
        for k in range(2 * self.n):
            c.I("v_mov_b32 %s, %s" % (v(8 + k), s(self.sb + k)))
        for k in range(self.n // 2):
            c.I("buffer_store_dwordx4 %s, v7, %s, s70 offen offset:%d" % (v(8 + 4 * k, 4), s(q, 4), 16 * k))


def cost_of(t):
    op = t.split()[0]
    if op.endswith(":"):
        return 0
    if op in _TRANS:
        return 8
    if op.startswith("buffer_load") and " lds" in t:
        return COST_DMA
    return 4


COST_DMA = 8
ONE_DS = [1]


def schedule(n, budget, streams, fixed=None, reserve=None):
    gaps = {i: [] for i in range(n)}
    load = [0] * n
    for g, cst in (reserve or {}).items():
        load[g] += cst
    if fixed:
        for g, lst in fixed.items():
            for x in lst:
                gaps[g].append(x)
                load[g] += cost_of(x.t if isinstance(x, Ins) else x)
    items = []
    for si, st in enumerate(streams):
        run = -1
        for k, (ins, ideal, lo, hi) in enumerate(st):
            run = max(run, ideal)
            items.append((run, si, k, ins, lo, hi))
    items.sort(key=lambda z: (z[0], z[1], z[2]))
    lastg = [0] * len(streams)
    over = 0
    for ideal, si, k, ins, lo, hi in items:
        cst = cost_of(ins.t if isinstance(ins, Ins) else ins)
        lo2 = max(lo, lastg[si])
        hi2 = max(min(hi, n - 1), lo2)
        cand = sorted(range(lo2, hi2 + 1), key=lambda g: (abs(g - ideal), g))
        best = None
        txt = ins.t if isinstance(ins, Ins) else ins
        isds = txt.startswith("ds_") and ONE_DS[0]
        for g in cand:
            if load[g] + cst <= budget and not (isds and any((y.t if isinstance(y, Ins) else y).startswith("ds_") for y in gaps[g])):
                best = g
                break
        if best is None:
            for g in cand:
                if load[g] + cst <= budget:
                    best = g
                    break
        if best is None:
            best = min(cand, key=lambda g: (load[g], abs(g - ideal)))
            over += load[best] + cst - max(budget, load[best])
        gaps[best].append(ins)
        load[best] += cst
        lastg[si] = best
    return gaps, load


def autowait(code, vm0=0, age=20):
    out = Code()
    vmq, lgq = [], []
    n = 0
    for ins in code:
        t = ins.t
        if t.endswith(":") or t.startswith(";") or t.startswith("."):
            out.append(ins)
            continue
        if t == "@need":
            idx = -1
            for k, e in enumerate(vmq):
                if e[1] in ins.ann["need"]:
                    idx = k
            extra = " lgkmcnt(0)" if ins.ann.get("lgkm0") else ""
            if idx >= 0:
                N = len(vmq) - 1 - idx
                assert N <= 63
                out.I("s_waitcnt vmcnt(%d)%s" % (N, extra))
                vmq = vmq[idx + 1:]
            elif extra:
                out.I("s_waitcnt lgkmcnt(0)")
            if extra:
                lgq = []
            continue
        p = parse(t)
        touch = set(p.s + ([] if (ins.ann or {}).get("nodst") else p.d))
        parts = []
        for q, nm, cap in ((vmq, "vmcnt", 63), (lgq, "lgkmcnt", 15)):
            idx = -1
            for k, e in enumerate(q):
                if e[0] & touch:
                    idx = k
            if idx >= 0:
                if nm == "lgkmcnt":
                    while idx + 1 < len(q) and n - q[idx + 1][2] >= age:
                        idx += 1
                N = min(cap, len(q) - 1 - idx)
                parts.append("%s(%d)" % (nm, N))
                del q[:len(q) - N]
        if parts:
            out.I("s_waitcnt " + " ".join(parts))
        if p.op == "s_waitcnt":
            txt = " ".join(p.mods)
            m = re.search(r"vmcnt\((\d+)\)", txt)
            if m:
                k = int(m.group(1))
                del vmq[:max(0, len(vmq) - k)]
            m = re.search(r"lgkmcnt\((\d+)\)", txt)
            if m:
                k = int(m.group(1))
                del lgq[:max(0, len(lgq) - k)]
        if p.cls == "vmem" and len(vmq) >= 62:
            out.I("s_waitcnt vmcnt(61)")
            del vmq[:len(vmq) - 61]
        if p.cls == "vmem":
            an = ins.ann or {}
            vmq.append((set() if an.get("nodst") else set(p.d), an.get("tag") or an.get("w", (None, None))[1], n))
        elif p.cls == "ds":
            lgq.append((set(p.d), None, n))
        out.append(ins)
        n += 1
    return out


def fix_m0(code):
    out = Code()
    for x in code:
        if out and " lds" in x.t and x.t.startswith("buffer_load") and re.match(r"s_\w+ m0,", out[-1].t):
            out.I("s_nop 0")
        out.append(x)
    return out


def spread(lst, lo, hi, wv=6):
    isv = lambda x: (x.t if isinstance(x, Ins) else x).startswith("buffer_")
    tot = sum(wv if isv(x) else 1 for x in lst) or 1
    out, acc = [], 0.0
    for x in lst:
        out.append((x, lo + acc * (hi - lo) / tot, 0, hi + 1))
        acc += wv if isv(x) else 1
    return out


_SZ = {}


def sizes(code):
    import subprocess, tempfile, os
    isins = lambda x: not (x.t.endswith(":") or x.t.startswith(";") or x.t.startswith("."))
    key = lambda t: re.sub(r"\bL\w+", "0", t) if t.startswith(("s_cbranch", "s_branch", "s_call")) else t
    todo = sorted(set(key(x.t) for x in code if isins(x)) - set(_SZ))
    if todo:
        with tempfile.TemporaryDirectory() as d:
            open(d + "/a.s", "w").write('.amdgcn_target "amdgcn-amd-amdhsa--gfx950"\n.text\n' + "\n".join(todo) + "\n")
            subprocess.check_call(["clang", "-x", "assembler", "-target", "amdgcn-amd-amdhsa", "-mcpu=gfx950", "-c", d + "/a.s", "-o", d + "/a.o"])
            out = subprocess.check_output(["llvm-objdump", "-d", "--mcpu=gfx950", d + "/a.o"]).decode()
        ls = [l.split("//")[1].split(":")[1].split() for l in out.splitlines() if "//" in l]
        assert len(ls) == len(todo)
        for t, w in zip(todo, ls):
            _SZ[t] = 4 * len(w)
    return [(_SZ[key(x.t)] if isins(x) else 0) for x in code]


_E64 = ("v_add_u32", "v_exp_f32", "v_mov_b32", "v_add_f32", "v_mul_f32", "v_sub_f32", "v_lshlrev_b32", "v_cmp_nge_f32", "v_xor_b32", "v_and_b32",
        "v_subrev_u32", "v_max_f32", "v_rcp_f32", "v_min_u32", "v_cmp_ne_u32")


def align8(code, only_mfma=True):
    sz = sizes(code)
    out, osz = Code(), []
    off = 0
    for x, n in zip(code, sz):
        if x.t.startswith(".p2align"):
            off = 0
        want = x.t.startswith("v_mfma") if only_mfma else n == 8
        if want and off % 8 == 4:
            fixed = False
            k = len(out) - 1
            while k >= 0 and not out[k].t.startswith(("v_mfma", ".p2align")) and not out[k].t.endswith(":"):
                op = out[k].t.split()[0]
                if osz[k] == 4 and op in _E64:
                    out[k] = Ins(out[k].t.replace(op, op + "_e64", 1), out[k].ann)
                    osz[k] = 8
                    fixed = True
                    break
                k -= 1
            if not fixed:
                out.I("s_nop 0")
                osz.append(4)
            off += 4
        out.append(x)
        osz.append(n)
        off += n
    return out
```

```python
from asmlib import *
from layout import *

sW, sWS, sW4k, sT, sT2, sT3 = 3, 4, 8, 9, 10, 11
SPIN = 0x20000
SLEEP = [0]
CT = [1]


def srd_fin(c, d, size):
    c.I("s_and_b32 %s, %s, 0xffff" % (s(d + 1), s(d + 1)))
    c.I("s_mov_b32 %s, 0x%x" % (s(d + 2), size))
    c.I("s_mov_b32 %s, 0x20000" % s(d + 3))


def preamble(nwg, endlabel, more=None):
    c = Code()
    c.I("s_cmp_ge_u32 s2, %d" % nwg)
    c.I("s_cbranch_scc1 %s" % endlabel)
    c.I("s_load_dwordx2 %s, s[0:1], 96" % s(sWS, 2))
    c += more or []
    c.I("v_lshrrev_b32 v1, 6, v0")
    c.I("s_nop 0")
    c.I("v_readfirstlane_b32 %s, v1" % s(sW))
    c.I("s_nop 0")
    if CT[0]:
        c.I("v_and_b32 v2, 63, v0")
        c.I("v_lshlrev_b32 v2, 4, v2")
        for x in code_touch(2, v(8, 4), 16, 0):
            c.append(x if isinstance(x, Ins) else Ins(x))
    if not more:
        c.I("s_waitcnt lgkmcnt(0)")
        srd_fin(c, sWS, WS_END)
    c.I("s_lshl_b32 %s, %s, 12" % (s(sW4k), s(sW)))
    return c


def poll_loop(c, lab, vVal, vOff, sOff, sCnt):
    c.I("s_mov_b32 %s, 0x%x" % (s(sCnt), SPIN))
    c.L(lab + "_poll")
    c.I("buffer_load_dword %s, %s, %s, %s offen sc1" % (v(vVal), v(vOff), s(sWS, 4), s(sOff)))
    c.I("s_waitcnt vmcnt(0)")
    c.I("v_cmp_ne_u32 vcc, 1, %s" % v(vVal))
    c.I("s_cbranch_vccz %s_done" % lab)
    if SLEEP[0]:
        c.I("s_sleep %d" % SLEEP[0])
    c.I("s_sub_u32 %s, %s, 1" % (s(sCnt), s(sCnt)))
    c.I("s_cbranch_scc0 %s_poll" % lab)
    c.L(lab + "_done")


sFast = 71
OOL = Code()


def signal(lab, vOne, vZero, sOff):
    st = "buffer_store_dword %s, %s, %s, %s offen" % (v(vOne), v(vZero), s(sWS, 4), s(sOff))
    if not any(x.t == lab + "_slow:" for x in OOL):
        blk = Code()
        blk.L(lab + "_slow")
        blk.I(st + " sc1")
        blk.I("s_branch %s_back" % lab)
        OOL[0:0] = blk
    return ["s_cmp_eq_u32 %s, 0" % s(sFast), "s_cbranch_scc1 %s_slow" % lab, st, lab + "_back:"]


def acquire(lab):
    if not any(x.t == lab + "_acq:" for x in OOL):
        OOL.L(lab + "_acq")
        OOL.I("buffer_inv sc1")
        OOL.I("s_waitcnt vmcnt(0)")
        OOL.I("s_branch %s_acqb" % lab)
    return ["s_cmp_eq_u32 %s, 0" % s(sFast), "s_cbranch_scc1 %s_acq" % lab, lab + "_acqb:"]


POLL1 = [1]


def wg_wait(c, lab, vVal, vOff, sOff, sCnt):
    if POLL1[0]:
        c.I("s_cmp_lg_u32 %s, 0" % s(sW))
        c.I("s_cbranch_scc1 %s_done" % lab)
    poll_loop(c, lab, vVal, vOff, sOff, sCnt)
    if POLL1[0]:
        c.I("s_barrier")


def code_srd(q, so, n):
    return ["s_getpc_b64 %s" % s(q, 2), "L_ct%d:" % n,
            "s_sub_u32 %s, %s, L_ct%d-L_begin" % (s(q), s(q), n), "s_subb_u32 %s, %s, 0" % (s(q + 1), s(q + 1)),
            "s_and_b32 %s, %s, 0xffff" % (s(q + 1), s(q + 1)), "s_mov_b32 %s, L_last-L_begin" % s(q + 2), "s_mov_b32 %s, 0x20000" % s(q + 3),
            "s_lshr_b32 %s, s2, 3" % s(so), "s_lshl_b32 %s, %s, 2" % (s(so), s(so)), "s_add_u32 %s, %s, %s" % (s(so), s(so), s(sW)),
            "s_lshl_b32 %s, %s, 10" % (s(so), s(so))]


def code_load(vLane16, dst, q, so):
    if not CT[0]:
        return []
    return [Ins("buffer_load_dwordx4 %s, %s, %s, %s offen" % (dst, v(vLane16), s(q, 4), s(so)), {"nodst": True})]


def code_touch(vLane16, dst, q, n):
    if not CT[0]:
        return []
    return code_srd(q, sT, n) + code_load(vLane16, dst, q, sT)
```

```python
from asmlib import *
from layout import *
from common import *
import proj
from proj import put, M16


def first_loads():
    c = Code()
    for d, off in ((12, 8), (72, 24), (74, 32), (24, 0), (28, 88), (48, 16), (52, 40)):
        c.I("s_load_dwordx2 %s, s[0:1], %d" % (s(d, 2), off))
    return c


class R1:
    V = Alloc(1, 256)
    vL = V(1)
    vST = V(1)
    vPoll = V(1)
    vX = V(64, 4)
    vY = V(64, 4)
    vOA = V(8, 4)
    vOB = V(4)
    vRA = V(2)
    vRB = V(2)
    vT = V(8, 4)
    vDum = V(4, 4)
    vC2 = V(8, 4)
    vXr = V(48, 4)
    vE = V(8, 4)
    vP = V(8, 4)
    vQ2 = 192


def gen(ST, opt, att):
    r = R1
    vL, vST, vX, vY, vOA, vOB, vRA, vRB, vT, vDum, vQ2, vPoll = r.vL, r.vST, r.vX, r.vY, r.vOA, r.vOB, r.vRA, r.vRB, r.vT, r.vDum, r.vQ2, r.vPoll
    vE, vXr, vP, vQA = r.vE, r.vXr, r.vP, r.vDum
    sA, sB, sWq, sX, sDbg = 12, 16, 20, 24, 28
    sOffB, sCnt, sFlag, sSt, sInc0, sInc1, sQo, sXo = range(32, 40)
    sOffA, sAw, sBw, sRd, sHead, sTyp, sMt = range(41, 48)
    sWid, sDelta, sOob = 68, 69, 70
    sPf = 48

    pro = Code()
    c = pro
    c.I("v_and_b32 %s, 63, v0" % v(vL))
    c.I("s_and_b32 %s, s2, 7" % s(sT))
    c.I("s_lshr_b32 %s, s2, 3" % s(sT2))
    c.I("s_lshl_b32 %s, %s, 1" % (s(sHead), s(sT)))
    c.I("s_and_b32 %s, %s, 1" % (s(sT), s(sT2)))
    if opt.get("hswap"):
        c.I("s_xor_b32 %s, %s, 1" % (s(sT), s(sT)))
    c.I("s_add_u32 %s, %s, %s" % (s(sHead), s(sHead), s(sT)))
    c.I("s_bfe_u32 %s, %s, 0x10001" % (s(sTyp), s(sT2)))
    c.I("s_lshr_b32 %s, %s, 2" % (s(sMt), s(sT2)))
    t0, t1, t2, t3 = vT, vT + 1, vT + 2, vT + 3
    L = v(vL)
    c.I("v_lshrrev_b32 %s, 3, %s" % (v(t0), L))
    c.I("v_and_b32 %s, 7, %s" % (v(t1), L))
    c.I("v_mul_u32_u24 %s, 896, %s" % (v(vT + 4), v(t1)))
    c.I("v_lshl_add_u32 %s, %s, 4, %s" % (v(vT + 4), v(t0), v(vT + 4)))
    c.I("v_lshlrev_b32 %s, 4, %s" % (v(vT + 5), v(t1)))
    c.I("v_bfe_u32 %s, %s, 3, 2" % (v(t3), L))
    c.I("v_lshl_add_u32 %s, %s, 8, %s" % (v(vT + 5), v(t3), v(vT + 5)))
    c.I("v_lshrrev_b32 %s, 5, %s" % (v(t3), L))
    c.I("v_lshl_add_u32 %s, %s, 10, %s" % (v(vT + 5), v(t3), v(vT + 5)))
    c.I("s_lshl_b32 %s, %s, 6" % (s(sT), s(sW)))
    c.I("v_add_u32 %s, %s, %s" % (v(t0), s(sT), v(t0)))
    c.I("v_lshlrev_b32 %s, 11, %s" % (v(t0), v(t0)))
    c.I("v_lshrrev_b32 %s, 4, %s" % (v(t2), L))
    c.I("v_xor_b32 %s, %s, %s" % (v(t1), v(t1), v(t2)))
    c.I("v_lshl_add_u32 %s, %s, 4, %s" % (v(t0), v(t1), v(t0)))
    c.I("v_xor_b32 %s, 64, %s" % (v(t1), v(t0)))
    for i in range(8):
        c.I("v_add_u32 %s, 0x%x, %s" % (v(vOA + i), i * 16384 - (i & 3) * 1024, v(t1 if i & 1 else t0)))
    c.I("v_bfe_u32 %s, %s, 2, 2" % (v(t0), L))
    c.I("s_lshl_b32 %s, %s, 3" % (s(sT), s(sW)))
    c.I("v_add_u32 %s, %s, %s" % (v(t0), s(sT), v(t0)))
    c.I("v_lshlrev_b32 %s, 13, %s" % (v(t0), v(t0)))
    c.I("v_lshl_add_u32 %s, %s, 6, %s" % (v(t0), v(t2), v(t0)))
    c.I("v_and_b32 %s, 3, %s" % (v(t1), L))
    c.I("s_and_b32 %s, %s, 1" % (s(sT), s(sW)))
    c.I("s_lshl_b32 %s, %s, 1" % (s(sT), s(sT)))
    c.I("v_xor_b32 %s, %s, %s" % (v(t1), s(sT), v(t1)))
    c.I("v_lshl_add_u32 %s, %s, 4, %s" % (v(t0), v(t1), v(t0)))
    for j in range(4):
        g, q = j >> 1, j & 1
        c.I("v_add_u32 %s, 0x%x, %s" % (v(vOB + j), 4 * g * 8192 + 4 * q * 64 + 4096 - j * 1024, v(t0)))
    c.I("v_and_b32 %s, 15, %s" % (v(t0), L))
    c.I("v_lshlrev_b32 %s, 7, %s" % (v(t0), v(t0)))
    c.I("v_bfe_u32 %s, %s, 1, 3" % (v(t3), L))
    c.I("v_xor_b32 %s, %s, %s" % (v(t3), v(t3), v(t2)))
    c.I("v_lshl_add_u32 %s, %s, 4, %s" % (v(t0), v(t3), v(t0)))
    c.I("s_lshr_b32 %s, %s, 1" % (s(sT), s(sW)))
    c.I("s_lshl_b32 %s, %s, 14" % (s(sT), s(sT)))
    c.I("s_add_u32 %s, %s, 0x10000" % (s(sT), s(sT)))
    c.I("v_add_u32 %s, %s, %s" % (v(vRA), s(sT), v(t0)))
    c.I("v_xor_b32 %s, 64, %s" % (v(vRA + 1), v(vRA)))
    c.I("v_lshlrev_b32 %s, 12, %s" % (v(t0), v(t2)))
    c.I("v_bfe_u32 %s, %s, 2, 2" % (v(t3), L))
    c.I("v_lshl_add_u32 %s, %s, 6, %s" % (v(t0), v(t3), v(t0)))
    c.I("v_bfe_u32 %s, %s, 4, 1" % (v(t3), L))
    c.I("v_lshl_add_u32 %s, %s, 5, %s" % (v(t0), v(t3), v(t0)))
    c.I("v_and_b32 %s, 3, %s" % (v(t3), L))
    c.I("v_lshl_add_u32 %s, %s, 3, %s" % (v(t0), v(t3), v(t0)))
    c.I("s_and_b32 %s, %s, 1" % (s(sT), s(sW)))
    c.I("s_lshl_b32 %s, %s, 10" % (s(sT), s(sT)))
    c.I("v_add_u32 %s, %s, %s" % (v(vRB), s(sT), v(t0)))
    c.I("v_xor_b32 %s, 32, %s" % (v(vRB + 1), v(vRB)))
    c.I("v_lshlrev_b32 %s, 4, %s" % (v(vST), L))
    c.I("s_waitcnt lgkmcnt(0)")
    srd_fin(c, sWS, WS_END)
    ST.init(c)
    ST.mark(c, 'start')
    srd_fin(c, sA, 2048 * 1024 * 2)
    c.I("s_cmp_eq_u32 %s, 0" % s(sTyp))
    c.I("s_cselect_b32 %s, s72, s74" % s(sB))
    c.I("s_cselect_b32 %s, s73, s75" % s(sB + 1))
    c.I("s_cselect_b32 %s, 0x2000, 0x1000" % s(sInc0) if False else "s_cselect_b32 %s, 2, 1" % s(sInc0))
    c.I("s_cselect_b32 %s, 2, 3" % s(sInc1))
    c.I("s_lshl_b32 %s, %s, 12" % (s(sInc0), s(sInc0)))
    c.I("s_lshl_b32 %s, %s, 12" % (s(sInc1), s(sInc1)))
    c.I("s_add_u32 %s, %s, %d" % (s(sInc1), s(sInc1), US - 16384))
    c.I("s_sub_u32 %s, %s, 4096" % (s(sB), s(sB)))
    c.I("s_subb_u32 %s, %s, 0" % (s(sB + 1), s(sB + 1)))
    srd_fin(c, sB, 1024 * 4096 * 2 + 4096)
    srd_fin(c, sX, 2048 * 896)
    c.I("s_sub_u32 %s, %s, 4096" % (s(sWq), s(sPf)))
    c.I("s_subb_u32 %s, %s, 0" % (s(sWq + 1), s(sPf + 1)))
    srd_fin(c, sWq, 448 * 8192 + 4096)
    srd_fin(c, sDbg, 256)
    c.I("s_lshl_b32 %s, %s, 19" % (s(sOffA), s(sMt)))
    c.I("s_lshl_b32 %s, %s, 9" % (s(sOffB), s(sHead)))
    c.I("s_mov_b32 %s, %s" % (s(sQo), s(sOffB)))
    c.I("s_lshl_b32 %s, %s, 13" % (s(sAw), s(sW)))
    c.I("s_add_u32 %s, %s, 0x10000" % (s(sAw), s(sAw)))
    c.I("s_mov_b32 %s, %s" % (s(sBw), s(sW4k)))

    def dmaA(n, half):
        return [Ins("buffer_load_dwordx4 %s, %s, %s offen offset:%d%s lds" % (v(vOA + 4 * half + i), s(sA, 4), s(sOffA), 1024 * i, opt.get("afl", "")),
                    {"w": (("A", n % 3), ("A", n), 8)}) for i in range(4)]

    def dmaB(n):
        return [Ins("buffer_load_dwordx4 %s, %s, %s offen offset:%d%s lds" % (v(vOB + j), s(sB, 4), s(sOffB), 1024 * j, opt.get("bfl", " nt")),
                    {"w": (("B", n % 4), ("B", n), 4)}) for j in range(4)]

    advB = ["s_add_u32 %s, %s, 0x4000" % (s(sBw), s(sBw)),
            "s_and_b32 %s, %s, 0xffff" % (s(sBw), s(sBw)),
            "s_add_u32 %s, %s, 0x40000" % (s(sOffB), s(sOffB))]
    advA = ["s_add_u32 %s, %s, 0x8000" % (s(sAw), s(sAw)),
            "s_cmp_ge_u32 %s, 0x28000" % s(sAw),
            "s_cselect_b32 %s, 0x18000, 0" % s(sT),
            "s_sub_u32 %s, %s, %s" % (s(sAw), s(sAw), s(sT)),
            "s_add_u32 %s, %s, 128" % (s(sOffA), s(sOffA))]
    gA = lambda n, half: [("s_add_u32 m0, %s, 0x1000" % s(sAw)) if half else ("s_mov_b32 m0, %s" % s(sAw))] + dmaA(n, half) + (advA if half else [])
    gB = lambda n: ["s_mov_b32 m0, %s" % s(sBw)] + dmaB(n) + advB

    slot_of = [0, 1, 2, 3, 6, 7, 8, 9, 4, 5, 2, 3, 6, 7]
    worder = []

    def gW(t):
        sl = slot_of[t]
        al = [("A", (sl - 4) // 2)] if sl >= 4 else [("B", sl)]
        return ["s_add_u32 m0, %s, 0x%x" % (s(sW4k), sl * 16384), "s_add_u32 %s, %s, 0x%x" % (s(sT3), s(sQo), t * 0x40000)] + \
            [Ins("buffer_load_dwordx4 %s, %s, %s offen offset:%d lds" % (v(vOB + j), s(sWq, 4), s(sT3), 1024 * j),
                 {"w": (("S", sl), ("W", t), 4), "alias": al}) for j in range(4)]

    sTA, sTB, sToA, sToB = 48, 64, 56, 57
    sTW, sToW = 72, 58

    WT = opt.get("wt", 0)

    def touch_l(t):
        if t % 2 == 0:
            return [Ins("buffer_load_dwordx4 %s, %s, %s, %s offen" % (v(vDum, 4), v(vST), s(sTA, 4), s(sToA)), {"nodst": True}),
                    "s_add_u32 %s, %s, 1024" % (s(sToA), s(sToA))]
        if WT:
            return [Ins("buffer_load_dwordx4 %s, %s, %s, %s offen" % (v(vDum, 4), v(vST), s(sTW, 4), s(sToW)), {"nodst": True}),
                    "s_add_u32 %s, %s, 0x80000" % (s(sToW), s(sToW))]
        return []

    vLN = vXr
    c.I("s_mul_i32 %s, s2, %d" % (s(sXo), 8 * 896))
    c.I("s_cmp_eq_u32 %s, 0" % s(sW))
    c.I("s_cselect_b32 %s, 0, 0x40000000" % s(sOob))
    c.I("s_cbranch_scc0 L1_noln1")
    ln1 = Code()
    for i in range(7):
        ln1.I("buffer_load_dwordx4 %s, %s, %s, %s offen offset:%d" % (v(vLN + 4 * i, 4), v(vT + 4), s(sX, 4), s(sXo), 128 * i))
    pro2 = Code()
    c = pro2
    c.L("L1_noln1")
    put(c, gA(0, 0) + gB(0) + gA(0, 1) + gB(1))
    NPRE = 16
    if opt.get("bigpro", True):
        put(c, gA(1, 0) + gA(1, 1) + gB(2) + gB(3))
        NPRE = 32
    c.I("s_cmp_lt_u32 %s, 2" % s(sW))
    c.I("s_cselect_b32 %s, %s, %s" % (s(sTA), s(sPf), s(sPf + 4)))
    c.I("s_cselect_b32 %s, %s, %s" % (s(sTA + 1), s(sPf + 1), s(sPf + 5)))
    srd_fin(c, sTA, 448 * 8192)
    c.I("s_and_b32 %s, %s, 1" % (s(sT), s(sW)))
    c.I("s_lshl_b32 %s, s2, 1" % s(sToA))
    c.I("s_add_u32 %s, %s, %s" % (s(sToA), s(sToA), s(sT)))
    c.I("s_mul_i32 %s, %s, 7168" % (s(sToA), s(sToA)))
    c.I("s_add_u32 %s, %s, 7168" % (s(sTA + 2), s(sToA)))
    put(c, code_srd(sTB, sToB, 4))
    c.I("s_cmp_lt_u32 s2, 128")
    c.I("s_cselect_b32 s72, s72, s74")
    c.I("s_cselect_b32 s73, s73, s75")
    srd_fin(c, sTW, 1024 * 8192)
    c.I("s_and_b32 %s, s2, 127" % s(sToW))
    c.I("s_lshl_b32 %s, %s, 2" % (s(sToW), s(sToW)))
    c.I("s_add_u32 %s, %s, %s" % (s(sToW), s(sToW), s(sW)))
    c.I("s_lshl_b32 %s, %s, 10" % (s(sToW), s(sToW)))
    c.I("s_add_u32 %s, %s, 0x%x" % (s(sToW), s(sToW), WT * 0x80000))
    c.I("s_mov_b32 %s, 0" % s(sRd))
    c.I("s_lshr_b32 %s, s2, 1" % s(sT))
    c.I("s_mul_i32 %s, %s, %d" % (s(sXo), s(sT), 14 * 1024))
    c.I("s_and_b32 %s, s2, 1" % s(sT))
    c.I("s_lshl_b32 %s, %s, 7" % (s(sT), s(sT)))
    c.I("s_add_u32 %s, %s, %s" % (s(sXo), s(sXo), s(sT)))
    c.I("s_add_u32 %s, %s, 0x%x" % (s(sXo), s(sXo), WS_XN))
    c.I("s_add_u32 %s, %s, %s" % (s(sXo), s(sXo), s(sOob)))
    c.I("s_min_u32 %s, s2, %d" % (s(sFlag), FG_N // 2 - 1))
    c.I("s_lshl_b32 %s, %s, 8" % (s(sFlag), s(sFlag)))
    c.I("s_add_u32 %s, %s, 0x%x" % (s(sFlag), s(sFlag), WS_FLAG))
    c.I("s_add_u32 %s, %s, %s" % (s(sFlag), s(sFlag), s(sOob)))
    c.I("s_getreg_b32 %s, hwreg(HW_REG_XCC_ID, 0, 4)" % s(sT))
    c.I("s_lshl_b32 %s, 1, %s" % (s(sT), s(sT)))
    c.I("v_mov_b32 %s, %s" % (v(vT + 7), s(sT)))
    c.I("s_and_b32 %s, s2, 7" % s(sSt))
    c.I("s_lshl_b32 %s, %s, 2" % (s(sSt), s(sSt)))
    c.I("s_add_u32 %s, %s, 4" % (s(sSt), s(sSt)))
    c.I("v_min_u32 %s, 1, %s" % (v(vT + 3), L))
    c.I("v_lshlrev_b32 %s, 12, %s" % (v(vT + 6), v(vT + 3)))
    c.I("v_mul_lo_u32 %s, %s, %s" % (v(vT + 3), v(vT + 3), s(sSt)))
    c.I("s_add_u32 %s, %s, %s" % (s(sSt), s(sSt), s(sOob)))
    c.I("v_lshlrev_b32 %s, 2, %s" % (v(vT + 2), L))
    c.I("v_mov_b32 %s, 0" % v(vT + 1))
    c.I("v_mov_b32 %s, 1" % v(vT))
    c.I("s_cmp_eq_u32 %s, 0" % s(sW))
    c.I("s_cbranch_scc0 L1_noln2")
    pro2 = fix_m0(pro2)
    ln2 = Code()
    c = ln2
    sm, sq, one, t4 = vLN + 32, vLN + 34, vLN + 36, vLN + 40
    c.I("v_mov_b32 %s, 0x3f803f80" % v(one))
    for k in range(4):
        c.I("v_mov_b32 %s, 0" % v(sm + k))
    c.I("s_waitcnt vmcnt(%d)" % NPRE)
    for k in range(28):
        c.I("v_dot2c_f32_bf16 %s, %s, %s" % (v(sm + (k & 1)), v(vLN + k), v(one)))
        c.I("v_dot2c_f32_bf16 %s, %s, %s" % (v(sq + (k & 1)), v(vLN + k), v(vLN + k)))
    c.I("s_nop 2")
    c.I("v_add_f32 %s, %s, %s" % (v(sm), v(sm), v(sm + 1)))
    c.I("v_add_f32 %s, %s, %s" % (v(sq), v(sq), v(sq + 1)))
    c.I("s_nop 0")
    for x in (sm, sq):
        c.I("v_add_f32_dpp %s, %s, %s row_ror:8 row_mask:0xf bank_mask:0xf" % (v(x), v(x), v(x)))
    for sw in ("v_permlane16_swap_b32", "v_permlane32_swap_b32"):
        for x in (sm, sq):
            c.I("v_mov_b32 %s, %s" % (v(x + 1), v(x)))
        c.I("s_nop 1")
        for x in (sm, sq):
            c.I("%s %s, %s" % (sw, v(x), v(x + 1)))
        for x in (sm, sq):
            c.I("v_add_f32 %s, %s, %s" % (v(x), v(x), v(x + 1)))
    proj.ln_scalars(c, sm, sq, sT, scale=0x3db8aa3b)
    proj.ln_apply(c, [vLN + k for k in range(28)], sm, sq, t4)
    pro3 = Code()
    c = pro3
    c.L("L1_noln2")

    def reads(dst, n):
        An, ks = n >> 1, n & 1
        boff = 16384 * (n & 1)
        ra = [Ins("ds_read_b128 %s, %s offset:%d" % (v(dst + 4 * mt, 4), v(vRA + ks), mt * 2048),
                  {"r": (("A", An % 3), ("A", An))}) for mt in range(8)]
        rb = []
        for nt in range(8):
            for rr in range(2):
                rb.append(Ins("ds_read_b64_tr_b16 %s, %s offset:%d" % (v(dst + 32 + 4 * nt + 2 * rr, 2), v(vRB + (nt & 1)),
                                                                       boff + rr * 2048 + (nt >> 1) * 256),
                              {"r": (("B", n % 4), ("B", n))}))
        return [ra[0]] + rb + ra[1:]

    c.I("s_waitcnt vmcnt(%d)" % (NPRE - 12))
    c.I("s_barrier")
    ST.mark(c, 'kv0')
    put(c, reads(vX, 0))
    c.I("s_cmp_eq_u32 %s, 0" % s(sTyp))
    c.I("s_cbranch_scc0 L1_V_start")

    def mf(src, typ, czero, byacc=False):
        out = []
        order = [(mt, nt) for mt in range(8) for nt in range(8)]
        if typ == "K":
            order = [(mt, nt) for nt in range(8) for mt in range(8)]
        if byacc:
            idx = (lambda mt, nt: mt * 8 + nt) if typ == "K" else (lambda mt, nt: ((mt >> 1) * 8 + nt) * 2 + (mt & 1))
            order.sort(key=lambda z: (idx(*z) + 16) % 64)
        for mt, nt in order:
            cf, wf = v(src + 4 * mt, 4), v(src + 32 + 4 * nt, 4)
            if typ == "K":
                acc = a((mt * 8 + nt) * 4, 4)
                out.append(M16 % (acc, wf, cf, "0" if czero else acc))
            else:
                acc = a(((mt >> 1) * 8 + nt) * 8 + (mt & 1) * 4, 4)
                out.append(M16 % (acc, cf, wf, "0" if czero else acc))
        return out

    rot = ["s_add_u32 %s, %s, 0x8000" % (s(sT2), s(sRd)),
           "s_cmp_eq_u32 %s, 0x18000" % s(sT2),
           "s_cselect_b32 %s, 0, %s" % (s(sT2), s(sT2)),
           "s_sub_u32 %s, %s, %s" % (s(sDelta), s(sT2), s(sRd)),
           "s_mov_b32 %s, %s" % (s(sRd), s(sT2))]
    rotv = ["v_add_u32 %s, %s, %s" % (v(vRA), s(sDelta), v(vRA)),
            "v_add_u32 %s, %s, %s" % (v(vRA + 1), s(sDelta), v(vRA + 1)),
            "v_xor_b32 %s, 0x8000, %s" % (v(vRB), v(vRB)),
            "v_xor_b32 %s, 0x8000, %s" % (v(vRB + 1), v(vRB + 1))]

    def step(code, t, typ, main, auto, after=(), tailres=4, extra=None):
        if auto:
            code.append(Ins("@need", {"need": [("B", t + 1), ("A", (t + 1) >> 1)] + list(auto), "lgkm0": True}))
        else:
            code.I("s_waitcnt vmcnt(%d) lgkmcnt(0)" % (19 if WT else 17 + t % 2))
        code.I("s_barrier")
        put(code, after)
        src, dst = (vX, vY) if t % 2 == 0 else (vY, vX)
        rds = reads(dst, t + 1) if t < 31 else []
        main = list(main)
        if t % 2 == 0:
            main = rot + main
        n = len(main)
        ms = spread(main, 1, 61, opt.get("wv", 8))
        streams = [[(x, 2 * i, 0, 48) for i, x in enumerate(rds)] + ([(x, 50 + k, 49, 63) for k, x in enumerate(rotv)] if t % 2 == 0 else []), ms]
        if extra:
            streams.append(extra)
        gaps, load = schedule(64, 8, streams, reserve={63: tailres})
        weave(code, mf(src, typ, t == 0, bool(extra)), gaps)

    stdA = lambda t: gA(t // 2 + 2, 1) if t % 2 == 0 else gA((t + 5) // 2, 0)
    std = lambda t: (gB(t + 4) + stdA(t)) if opt.get("bfirst", True) else (stdA(t) + gB(t + 4))

    lnst = []
    for i in range(7):
        lnst.append(Ins("buffer_store_dwordx4 %s, %s, %s, %s offen offset:%d sc1" % (v(vLN + 4 * i, 4), v(vT + 5), s(sWS, 4), s(sXo), (i & 1) * 2048), {"tag": "LN"}))
        if i & 1:
            lnst.append("s_add_u32 %s, %s, 0x1000" % (s(sXo), s(sXo)))
    lnst.append(Ins("buffer_store_dword %s, %s, %s, %s offen sc1" % (v(vT + 1), v(vT + 2), s(sWS, 4), s(sFlag)), {"tag": "LN"}))
    lnst.append(Ins("buffer_atomic_or %s, %s, %s, %s offen sc1" % (v(vT + 7), v(vT + 6), s(sDbg, 4), s(sSt)), {"tag": "LN"}))
    arrive = ["buffer_atomic_add %s, %s, %s, %s offen sc1" % (v(vT), v(vT + 6), s(sDbg, 4), s(sOob))]
    NH = opt.get("nh", 2)

    def headpart(typ):
        code = Code()
        if opt.get("bigpro", True):
            m = {0: gA(2, 0) + std(0), 1: std(1)}
        else:
            m = {0: gA(1, 0) + gA(1, 1) + gB(2) + gB(3), 1: gA(2, 0) + std(0) + std(1)}
        for t in range(2 * NH):
            main = m.get(t, std(t))
            if True:
                main = main + touch_l(t)
            if t == 2 * NH - 1:
                main = code_load(vST, v(vDum, 4), sTB, sToB) + main
            if t == opt.get("lnat", 0):
                main = lnst + main
            last = t == 2 * NH - 1
            ST.mark(code, 's%d' % t)
            step(code, t, typ, main, ["x"] + (["LN"] if last else []), after=arrive if last else ())
        ST.mark(code, 'h1')
        code.I("s_mov_b32 %s, %d" % (s(sCnt), opt.get("nloop", 13 - NH)))
        pre = Code(pro2)
        w = autowait(Code(list(pro2) + [Ins("s_waitcnt vmcnt(%d)" % (NPRE - 12))] + list(fix_m0(code))))
        return Code(w[len(pro2) + 1:])

    def body(it, typ):
        code = Code()
        mid = lambda t: std(t) + touch_l(t)
        step(code, 2 * it, typ, mid(2 * it), None)
        step(code, 2 * it + 1, typ, mid(2 * it + 1) + ["s_sub_u32 %s, %s, 1" % (s(sCnt), s(sCnt)), "s_cmp_lg_u32 %s, 0" % s(sCnt)], None, tailres=8)
        code.I("s_cbranch_scc1 L1_%s_top" % typ)
        return fix_m0(code)

    XR = 10
    xreg = lambda qt, t: v(vXr + 8 * t + 4 * qt, 4) if t < 6 else (v(232 + 8 * (t - 6) + 4 * qt, 4) if t < 9 else a(128 + 8 * (t - 6) + 4 * qt, 4))

    def xload(t):
        out = ["buffer_load_dwordx4 %s, %s, %s, %s offen offset:%d%s" % (xreg(qt, t), v(vST), s(sWS, 4), s(sXo + qt), (t & 3) * 1024, opt.get("xfl", ""))
               for qt in range(2)]
        if t & 3 == 3:
            out += ["s_add_u32 %s, %s, 0x1000" % (s(sXo + qt), s(sXo + qt)) for qt in range(2)]
        return out

    sGo = 60

    def drain(n):
        pk = vP + 4 * (n & 1)
        out = ["v_accvgpr_read_b32 %s, %s" % (v(vE + k), a(8 * n + k)) for k in range(8)]
        out += ["v_cvt_pk_bf16_f32 %s, %s, %s" % (v(pk + k), v(vE + 2 * k), v(vE + 2 * k + 1)) for k in range(4)]
        o = n >> 2
        if n & 3 == 0 or n in RESTART:
            out.append("s_add_u32 %s, %s, %d" % (s(sCnt), s(sInc0 if o & 1 else sSt), (o >> 1) * US))
        out.append(Ins("buffer_store_dwordx4 %s, %s, %s, %s offen offset:%d sc1" % (v(pk, 4), v(vST), s(sWS, 4), s(sCnt), (n & 3) * 1024), {"tag": "KV"}))
        return out
    RESTART = (19,)

    def endpart(typ):
        code = Code()
        lab = "L1_%s_" % typ
        if not any(x.t == lab + "poll:" for x in OOL):
            OOL.L(lab + "cw")
            OOL.I("s_mov_b32 %s, 0x%x" % (s(sT3), SPIN))
            OOL.L(lab + "poll")
            OOL.I("buffer_load_dword %s, %s, %s, 0 offen sc1" % (v(vPoll), v(vT + 3), s(sDbg, 4)))
            OOL.I("s_waitcnt vmcnt(0)")
            OOL.I("v_readfirstlane_b32 %s, %s" % (s(sT), v(vPoll)))
            OOL.I("s_sub_u32 %s, %s, 1" % (s(sT3), s(sT3)))
            OOL.I("s_cbranch_scc1 %sgot" % lab)
            OOL.I("s_cmp_lg_u32 %s, 256" % s(sT))
            OOL.I("s_cbranch_scc1 %spoll" % lab)
            OOL.I("s_branch %sgot" % lab)
        chk = ["v_readfirstlane_b32 %s, %s" % (s(sT), v(vPoll)), "s_cmp_lg_u32 %s, 256" % s(sT), "s_cbranch_scc1 %scw" % lab, lab + "got:"]
        setup = ["v_readlane_b32 %s, %s, 1" % (s(sT2), v(vPoll)),
                 "s_bfe_u32 %s, s2, 0x30004" % s(sT),
                 "s_sub_u32 %s, 15, %s" % (s(sT3), s(sT)),
                 "s_bitcmp1_b32 s2, 7",
                 "s_cselect_b32 %s, %s, %s" % (s(sT), s(sT3), s(sT)),
                 "s_lshl_b32 %s, %s, 2" % (s(sT), s(sT)),
                 "s_add_u32 %s, %s, %s" % (s(sT), s(sT), s(sW)),
                 "s_mul_i32 %s, %s, %d" % (s(sXo), s(sT), 28 * 1024),
                 "s_add_u32 %s, %s, 0x%x" % (s(sXo), s(sXo), WS_XN),
                 "s_add_u32 %s, %s, %d" % (s(sXo + 1), s(sXo), 14 * 1024),
                 "s_bcnt1_i32_b32 %s, %s" % (s(sT2), s(sT2)),
                 "s_cmp_eq_u32 %s, %d" % (s(sT2), 99 if opt.get("slow") else 1),
                 "s_cselect_b32 %s, 1, 0" % s(sFast)]
        kvb = ["s_lshl_b32 %s, %s, 6" % (s(sT), s(sHead)),
               "s_lshl_b32 %s, %s, 3" % (s(sT2), s(sMt)),
               "s_add_u32 %s, %s, %s" % (s(sT), s(sT), s(sT2)),
               "s_lshr_b32 %s, %s, 1" % (s(sT2), s(sW)),
               "s_lshl_b32 %s, %s, 2" % (s(sT2), s(sT2)),
               "s_add_u32 %s, %s, %s" % (s(sT), s(sT), s(sT2)),
               "s_mul_i32 %s, %s, %d" % (s(sSt), s(sT), US),
               "s_and_b32 %s, %s, 1" % (s(sT2), s(sW)),
               "s_lshl_b32 %s, %s, 10" % (s(sWid), s(sT2)),
               "s_add_u32 %s, %s, 12" % (s(sT), s(sTyp)),
               "s_lshl_b32 %s, %s, %s" % (s(sT2), s(sT2), s(sT)),
               "s_add_u32 %s, %s, %s" % (s(sSt), s(sSt), s(sT2)),
               "s_mul_i32 %s, %s, 0x%x" % (s(sT2), s(sTyp), WS_VF),
               "s_add_u32 %s, %s, %s" % (s(sSt), s(sSt), s(sT2)),
               "s_lshl_b32 %s, %s, 7" % (s(sOffB), s(sHead)),
               "s_lshl_b32 %s, %s, 3" % (s(sT), s(sTyp)),
               "s_add_u32 %s, %s, %s" % (s(sT), s(sT), s(sMt)),
               "s_lshl_b32 %s, %s, 2" % (s(sT), s(sT)),
               "s_add_u32 %s, %s, 0x%x" % (s(sOffB), s(sOffB), WS_FLAG + FG_KV * 128),
               "s_add_u32 %s, %s, %s" % (s(sFlag), s(sOffB), s(sT)),
               "v_subrev_u32 %s, %s, %s" % (v(vRB), s(sWid), v(vRB)),
               "v_subrev_u32 %s, %s, %s" % (v(vRB + 1), s(sWid), v(vRB + 1)),
               "v_min_u32 %s, 15, %s" % (v(vT + 2), L),
               "v_lshlrev_b32 %s, 2, %s" % (v(vT + 2), v(vT + 2))]
        cl = [Ins("buffer_load_dword %s, %s, %s, 0 offen sc1" % (v(vPoll), v(vT + 3), s(sDbg, 4)), {"tag": "C"})]
        xs = [xload(t_) for t_ in range(XR - 1)]
        def xt(k0, k1):
            if not opt.get("xl2", False):
                return []
            return ["s_add_u32 %s, %s, %d" % (s(sT3), s(sOob), k0 * 1024)] + \
                [Ins("buffer_load_dwordx4 %s, %s, %s, %s offen offset:%d sc1" % (v(vDum, 4), v(vST), s(sWS, 4), s(sT3), i * 1024), {"nodst": True}) for i in range(k1 - k0)]
        setup += ["s_bitcmp1_b32 s2, 3", "s_cselect_b32 %s, %s, %s" % (s(sOob), s(sXo + 1), s(sXo))]
        NE = 8
        kvb.insert(-4, "s_add_u32 %s, %s, %s" % (s(sInc0), s(sInc0), s(sSt)))
        m = {26: cl + std(26) + code_load(vST, v(vDum, 4), sTB, sToB), 27: gW(4) + gB(31),
             28: setup + gW(0) + xs[0] + xs[1] + gW(5) + xs[2], 29: gW(1) + xs[3] + xs[4] + gW(6) + xs[5] + kvb[:-4],
             30: gW(2) + xs[6] + xs[7] + gW(7) + xs[8], 31: kvb[-4:] + gW(3) + gW(8) + list(att['decode'])}
        ex = []
        for n in range(24, 32):
            g = drain(n)
            lo = 2 * (n - 24) + 6
            ex += [(x, max(lo, 6 + (13.5 * (n - 24) + k) * 57.0 / (13.5 * NE)), lo, 63) for k, x in enumerate(g)]
        m["ex"] = [x[0] for x in ex]
        ST.mark(code, 'l1')
        for t in range(26, 32):
            if t % 2 == 0:
                ST.mark(code, 's%d' % t)
            step(code, t, typ, m[t], ["x"] + (["C"] if t == 28 else []), after=chk if t == 28 else (), extra=ex if t == 31 else None)
        if typ == "K":
            code.I("s_branch L1_tail")
        pre = Code()
        for t in (23, 24, 25):
            put(pre, std(t) + touch_l(t))
        w = autowait(Code(pre + fix_m0(code)))
        m["code"] = w[len(pre):]
        return Code(w[len(pre):]), m

    def tail(m):
        c = Code()
        c.L("L1_tail")
        c.append(Ins("@need", {"need": [("W", k) for k in range(3)], "lgkm0": True}))
        c.I("s_barrier")
        ST.mark(c, 'kv1')
        put(c, gW(9))
        sb = opt.get("sb", 4)
        pl = ["buffer_load_dword %s, %s, %s, %s offen sc1" % (v(vPoll), v(vT + 2), s(sWS, 4), s(sOffB))]
        OOL.L("L1_kvw")
        poll_loop(OOL, "L1_kv", vPoll, vT + 2, sOffB, sInc1)
        OOL.I("s_branch L1_kvok")
        chk = ["v_cmp_ne_u32 vcc, 1, %s" % v(vPoll), "s_cbranch_vccnz L1_kvw", "L1_kvok:"] + acquire("L1_kva")
        ab = {sb: signal("L1_kvs", vT, vT + 1, sFlag)}
        sx = {8: att["dmaO"], 2 * sb + 1: pl}
        after = []
        if sb == 4:
            sx.update({10: att["dma0"], 11: att["dma1"], 12: att["dma2"]})
            ab[5] = chk
        elif sb == 5:
            sx.update({12: att["dma0"], 13: att["dma1"] + att["dma2"]})
            ab[6] = chk
        else:
            after = chk + att["dma0"] + att["dma1"] + att["dma2"]
        nb = opt.get("nb", 8)
        zq = ["v_accvgpr_write_b32 %s, 0" % a(128 + k) for k in range(4)]
        seq = [drain(n) for n in (19, 20, 21, 22, 23)] + [drain(16) + zq, drain(17), drain(18)] + \
            [drain(n) + ([mfma(a(8 * n - 8, 16), a(128, 4), a(128, 4), "0")] if n & 1 else []) for n in range(16)]
        for t_ in range(9, 14):
            sx[t_ - 6] = sx.get(t_ - 6, []) + xload(t_)
        q = Code()
        first = proj.proj_main(q, xreg, vRB, vQA, lambda nt, qt: v(vX + 8 * nt + 4 * qt, 4), lambda k, n: a(192 + k, n), 16, slot_of,
                               {2: [gW(10), gW(11)], 3: [gW(12), gW(13)]}, need_extra={sb: ["KV"]}, after_bar=ab, step_extra=sx,
                               first_need=False, first_reads=False, fill=[x for g in seq[nb:] for x in g], fill_steps=opt.get("fs", 7),
                               marks=lambda c, b: ST.mark(c, 'p%d' % b), late=att["qcvt"])
        put(q, after)
        put(c, list(att["consts"]) + first)
        put(c, [x for g in seq[:nb] for x in g])
        ST.mark(c, 'bu')
        c += q
        ST.mark(c, 'q1')
        pre = Code([x for x in m["code"] if x.t.startswith("buffer_")][-40:])
        w = autowait(Code(pre + fix_m0(c)))
        return Code(w[len(pre):])

    code = Code()
    code += pro + ln1 + pro2 + ln2 + pro3
    parts = {}
    for typ in "KV":
        hp = headpart(typ)
        ep, m = endpart(typ)
        parts[typ] = (hp, ep)
        code.L("L1_%s_start" % typ)
        code += hp
        code.I(".p2align 6")
        code.L("L1_%s_top" % typ)
        code += body(NH, typ)
        code += ep
    tc = tail(m)
    code += tc

    traces = []
    for typ in "KV":
        for ln in (False, True):
            tr = list(pro) + (list(ln1) if ln else []) + list(pro2) + (list(ln2) if ln else []) + list(pro3) + list(parts[typ][0])
            for it in range(NH, 13):
                pa = body(it, typ)
                assert [x.t for x in pa] == [x.t for x in body(NH, typ)]
                tr += pa
            tr += parts[typ][1] + tc
            traces.append(tr)
    return code, traces
```

```python
from asmlib import *
from layout import *
from common import *
from proj import put, M16
import ph1

BIG = 0x4e800000
HUGE = 0x40000000


def gen(ST, opt, fused_next, nxt=None):
    SP = opt.get("SP", 40)
    EV0 = opt.get("ev0", 5)
    V = Alloc(4, ph1.R1.vOA)
    vLn, vPoll = ph1.R1.vST, ph1.R1.vPoll
    vL = ph1.R1.vL
    vX = ph1.R1.vXr
    vS = [V(16, 4), V(16, 4)]
    vNM = V(8, 4)
    vP0 = [V(4, 4), V(4, 4)]
    vP1 = V(4, 4)
    vE = V(8, 4)
    vLL = [[V(4, 4), V(4, 4)], [V(4, 4), V(4, 4)]]
    vOnes, vOW = ph1.R1.vOA, ph1.R1.vOA + 4
    vThr, vRV, vNinf, vWB = ph1.R1.vC2, ph1.R1.vC2 + 4, ph1.R1.vC2 + 5, ph1.R1.vC2 + 6
    vDm = ph1.R1.vT + 6
    vRK = vLn
    vThrP = V()
    vC = V(12, 4)
    vWA = V(2)
    vPk = V(16, 4)
    vT = V(12, 4)
    vB = ph1.R1.vQ2
    vAcc = [vS[0], vS[0] + 32]
    assert vS[0] + 64 <= vLL[0][0] + 8
    aO, aQ, aF = 0, 128, 192
    sK, sV, sWo = 48, 52, 56
    (sOffK, sOffV, sQb, sU0, sU1, sMode, sDiag, sHead, sI, sNext, sPair,
     sNU, sBig, sD0, sD1, sEvt, sNxt, sHave, sFl, sCnt) = list(range(60, 71)) + list(range(41, 48)) + [30, 31]
    sRet = 28
    sCA, sTW, sTo = 24, 72, 18
    sCS = 32
    vCT = V(4, 4)
    sM = 12

    def S(p, qt, kt, r=0):
        return vS[p] + 8 * qt + 4 * kt + r

    def P(p, qt):
        return vP0[p] if qt == 0 else vP1

    def dmaK(x):
        return [Ins("buffer_load_dwordx4 %s, %s, %s offen offset:%d lds" % (v(vDm), s(sK, 4), s(sOffK), 1024 * i),
                    {"w": (("K", x & 3), ("K", x), 4), "alias": [("S", x & 3)]}) for i in range(4)]

    def dmaV(x):
        return [Ins("buffer_load_dwordx4 %s, %s, %s offen offset:%d lds" % (v(vDm), s(sV, 4), s(sOffV), 1024 * i),
                    {"w": (("V", x & 3), ("V", x), 4), "alias": [("S", 4 + (x & 3))]}) for i in range(4)]

    m0K = lambda x: "s_add_u32 m0, %s, 0x%x" % (s(sW4k), (x & 3) * 16384)
    m0V = lambda x: "s_add_u32 m0, %s, 0x%x" % (s(sW4k), 65536 + (x & 3) * 16384)
    advK = "s_add_u32 %s, %s, %d" % (s(sOffK), s(sOffK), 0 if opt.get("noadv") else US)
    advV = "s_add_u32 %s, %s, %d" % (s(sOffV), s(sOffV), 0 if opt.get("noadv") else US)

    CH = [4, 0, 1, 2, 3, 4, 0]
    CH_ALIAS = {0: [("K", 0), ("K", 1)], 1: [("K", 2), ("K", 3)], 2: [("V", 0), ("V", 1)], 3: [("V", 2), ("V", 3)], 4: [("S", 8), ("S", 9)]}

    def dmaO(ch):
        out = []
        for hf in range(2):
            out.append("s_lshl_b32 %s, %s, 1" % (s(sT3), s(sW4k)) if hf == 0 else "s_add_u32 %s, %s, %d" % (s(sD1), s(sD1), 32 * 896))
            out.append("s_add_u32 m0, %s, 0x%x" % (s(sT3), CH[ch] * 32768 + hf * 4096))
            out.append("s_nop 0")
            out += [Ins("buffer_load_dwordx4 %s, %s, %s offen offset:%d lds" % (v(vOW + j), s(sWo, 4), s(sD1), 1024 * j),
                        {"w": (("C", CH[ch]), ("O", ch), 8), "alias": CH_ALIAS[CH[ch]]}) for j in range(4)]
        out.append("s_sub_u32 %s, %s, %d" % (s(sD1), s(sD1), 32 * 896 - 128))
        return out

    def decode():
        c = Code()
        c.I("s_mov_b32 %s, s52" % s(sWo))
        c.I("s_mov_b32 %s, s53" % s(sWo + 1))
        c.I("s_and_b32 %s, s2, 7" % s(sT))
        c.I("s_lshl_b32 %s, %s, 1" % (s(sHead), s(sT)))
        c.I("s_bfe_u32 %s, s2, 0x10003" % s(sT))
        if opt.get("hswap"):
            c.I("s_xor_b32 %s, %s, 1" % (s(sT), s(sT)))
        c.I("s_add_u32 %s, %s, %s" % (s(sHead), s(sHead), s(sT)))
        c.I("s_bfe_u32 %s, s2, 0x30004" % s(sI))
        c.I("s_lshl_b32 %s, %s, 3" % (s(sPair), s(sHead)))
        c.I("s_add_u32 %s, %s, %s" % (s(sPair), s(sPair), s(sI)))
        c.I("s_lshl_b32 %s, %s, 2" % (s(sPair), s(sPair)))
        c.I("s_add_u32 %s, %s, %s" % (s(sPair), s(sPair), s(sW)))
        c.I("s_mul_i32 %s, %s, %d" % (s(sT), s(sHead), 64 * US))
        c.I("s_add_u32 %s, %s, %s" % (s(sK), s(sWS), s(sT)))
        c.I("s_addc_u32 %s, %s, 0" % (s(sK + 1), s(sWS + 1)))
        c.I("s_add_u32 %s, %s, 0x%x" % (s(sV), s(sK), WS_VF - WS_KF))
        c.I("s_addc_u32 %s, %s, 0" % (s(sV + 1), s(sK + 1)))
        c.I("s_mov_b32 %s, 0x20000" % s(sK + 3))
        c.I("s_mov_b32 %s, 0x20000" % s(sV + 3))
        c.I("v_add_u32 %s, %s, %s" % (v(vDm), s(sW4k), v(vLn)))
        c.I("s_lshl_b32 %s, %s, 2" % (s(sT), s(sI)))
        c.I("s_sub_u32 %s, 64, %s" % (s(sT2), s(sT)))
        c.I("s_add_u32 %s, %s, 4" % (s(sT3), s(sT)))
        c.I("s_sub_u32 %s, 15, %s" % (s(sQb), s(sI)))
        c.I("s_cmp_gt_u32 %s, %d" % (s(sT2), SP))
        c.I("s_cselect_b32 %s, 1, 0" % s(sNext))
        c.I("s_cselect_b32 %s, %d, 0" % (s(sU0), SP))
        c.I("s_cselect_b32 %s, %s, %s" % (s(sT3), s(sT2), s(sT3)))
        c.I("s_cselect_b32 %s, %d, %s" % (s(sT2), SP, s(sT2)))
        c.I("s_cselect_b32 %s, %s, %s" % (s(sT), s(sQb), s(sI)))
        c.I("s_xor_b32 %s, %s, 1" % (s(sDiag), s(sNext)))
        c.I("s_lshl_b32 %s, %s, 1" % (s(sMode), s(sNext)))
        c.I("s_bitcmp1_b32 s2, 7")
        c.I("s_cselect_b32 %s, %s, %s" % (s(sU1), s(sT2), s(sT3)))
        c.I("s_cselect_b32 %s, 0, %s" % (s(sU0), s(sU0)))
        c.I("s_cselect_b32 %s, %s, %s" % (s(sQb), s(sQb), s(sT)))
        c.I("s_cselect_b32 %s, %s, 1" % (s(sDiag), s(sDiag)))
        c.I("s_cselect_b32 %s, %s, %s" % (s(sMode), s(sMode), s(sNext)))
        c.I("s_cselect_b32 %s, 0, %s" % (s(sNext), s(sNext)))
        c.I("s_mul_i32 %s, %s, %d" % (s(sK + 2), s(sU1), US))
        c.I("s_mov_b32 %s, %s" % (s(sV + 2), s(sK + 2)))
        c.I("s_mul_i32 %s, %s, %d" % (s(sOffK), s(sU0), US))
        c.I("s_mov_b32 %s, %s" % (s(sOffV), s(sOffK)))
        return c

    def consts():
        e = Code()
        L = v(vL)
        t0, t1, t2, t3 = [ph1.R1.vDum + k for k in range(4)]
        t4, t5 = ph1.R1.vT + 4, ph1.R1.vT + 5
        for k, arg in enumerate((56, 64, 72)):
            e.I("s_load_dwordx2 %s, s[0:1], %d" % (s(12 + 2 * k, 2), arg))
        put(e, code_srd(sCA, sCA + 4, 3))
        e.I("s_waitcnt lgkmcnt(0)")
        e.I("s_cmp_eq_u32 %s, 1" % s(sW))
        e.I("s_cselect_b32 s12, s14, s12")
        e.I("s_cselect_b32 s13, s15, s13")
        e.I("s_cmp_eq_u32 %s, 2" % s(sW))
        e.I("s_cselect_b32 s12, s16, s12")
        e.I("s_cselect_b32 s13, s17, s13")
        e.I("s_and_b32 s13, s13, 0xffff")
        e.I("s_mul_i32 %s, s2, 12544" % s(sT))
        e.I("s_add_u32 %s, %s, 12544" % (s(sT2), s(sT)))
        e.I("s_lshr_b32 %s, s2, 7" % s(sT3))
        e.I("s_lshl_b32 %s, %s, 2" % (s(sT3), s(sT3)))
        e.I("s_add_u32 %s, %s, %s" % (s(sT3), s(sT3), s(sW)))
        e.I("s_cmp_lt_u32 %s, 3" % s(sT3))
        e.I("s_cselect_b32 %s, s12, %s" % (s(sCA), s(sCA)))
        e.I("s_cselect_b32 %s, s13, %s" % (s(sCA + 1), s(sCA + 1)))
        e.I("s_cselect_b32 %s, %s, %s" % (s(sCA + 2), s(sT2), s(sCA + 2)))
        e.I("s_cselect_b32 %s, %s, %s" % (s(sCA + 4), s(sT), s(sCA + 4)))
        e.I("s_cselect_b32 %s, 1, 64" % s(sCA + 5))
        e.I("s_cselect_b32 %s, -1, 0x1ffff" % s(sTo))
        e.I("s_lshl_b32 %s, %s, 10" % (s(sCA + 5), s(sCA + 5)))
        e.I("s_mov_b32 %s, 0" % s(sHave))
        e.I("s_lshl_b32 %s, %s, 14" % (s(sD0), s(sPair)))
        e.I("s_add_u32 %s, %s, 0x%x" % (s(sD0), s(sD0), WS_QF))
        e.I("s_lshr_b32 %s, %s, 2" % (s(sFl), s(sPair)))
        e.I("s_lshl_b32 %s, %s, 7" % (s(sFl), s(sFl)))
        e.I("s_lshl_b32 %s, %s, 2" % (s(sT), s(sW)))
        e.I("s_add_u32 %s, %s, %s" % (s(sFl), s(sFl), s(sT)))
        e.I("s_add_u32 %s, %s, 0x%x" % (s(sFl), s(sFl), WS_FLAG + FG_QX * 128))
        e.I("s_cmp_eq_u32 %s, 2" % s(sMode))
        e.I("s_cselect_b32 %s, %s, 0x%x" % (s(sNU), s(sD0), HUGE))
        e.I("s_cselect_b32 %s, 3, 0" % s(sHave))
        e.I("s_add_u32 %s, %s, 0x1000" % (s(sEvt), s(sNU)))
        e.I("s_add_u32 %s, %s, 0x2000" % (s(sNxt), s(sNU)))
        e.I("s_add_u32 %s, %s, 0x3000" % (s(sCnt), s(sNU)))
        e.I("v_add_u32 %s, 0x10000, %s" % (v(vRV), v(vLn)))
        e.I("v_and_b32 %s, 15, %s" % (v(t2), L))
        e.I("v_lshrrev_b32 %s, 4, %s" % (v(t4), L))
        e.I("v_lshlrev_b32 %s, 2, %s" % (v(t3), v(t4)))
        e.I("v_sub_u32 %s, %s, %s" % (v(t2), v(t2), v(t3)))
        e.I("s_lshl_b32 %s, %s, 5" % (s(sT), s(sW)))
        e.I("v_add_u32 %s, %s, %s" % (v(vThr), s(sT), v(t2)))
        for j in range(1, 4):
            e.I("v_subrev_u32 %s, %d, %s" % (v(vThr + j), 32 * j, v(vThr)))
        e.I("v_mov_b32 %s, 0xff800000" % v(vNinf))
        for r in range(4):
            e.I("v_mov_b32 %s, 0x3f803f80" % v(vOnes + r))
        e.I("s_mov_b32 %s, 0x%x" % (s(sBig), opt.get('BIG', BIG)))
        e.I("v_lshrrev_b32 %s, 5, %s" % (v(t0), L))
        e.I("v_bfe_u32 %s, %s, 2, 2" % (v(t1), L))
        e.I("v_lshl_add_u32 %s, %s, 2, %s" % (v(t2), v(t0), v(t1)))
        e.I("v_mul_u32_u24 %s, 896, %s" % (v(t2), v(t2)))
        e.I("v_bfe_u32 %s, %s, 4, 1" % (v(t5), L))
        e.I("v_lshl_add_u32 %s, %s, 6, %s" % (v(t2), v(t5), v(t2)))
        e.I("v_lshlrev_b32 %s, 1, %s" % (v(t0), v(t0)))
        e.I("v_and_b32 %s, 3, %s" % (v(t3), L))
        e.I("v_xor_b32 %s, %s, %s" % (v(t0), v(t0), v(t3)))
        e.I("v_lshl_add_u32 %s, %s, 4, %s" % (v(vOW), v(t0), v(t2)))
        for j in range(1, 4):
            e.I("v_add_u32 %s, %d, %s" % (v(vOW + j), j * (8 * 896 - 1024), v(vOW)))
        e.I("v_lshlrev_b32 %s, 9, %s" % (v(t0), v(t4)))
        e.I("v_lshl_add_u32 %s, %s, 6, %s" % (v(t0), v(t1), v(t0)))
        e.I("v_lshl_add_u32 %s, %s, 5, %s" % (v(t0), v(t5), v(t0)))
        e.I("v_lshl_add_u32 %s, %s, 3, %s" % (v(vWB), v(t3), v(t0)))
        e.I("v_xor_b32 %s, 32, %s" % (v(vWB + 1), v(vWB)))
        srd_fin(e, sWo, 4096 * 896)
        e.I("s_lshl_b32 %s, %s, 2" % (s(sT), s(sHead)))
        e.I("s_add_u32 %s, %s, %s" % (s(sT), s(sT), s(sW)))
        e.I("s_mul_i32 %s, %s, %d" % (s(sD1), s(sT), 64 * 896))
        return e

    def qcvt(ks):
        out = []
        for qt in range(2):
            n = 8 * qt + ks
            for k in range(4):
                src = ph1.R1.vX + 8 * (2 * ks + (k >> 1)) + 4 * qt + 2 * (k & 1)
                out.append("v_cvt_pk_bf16_f32 %s, %s, %s" % (v(vB + 4 * n + k), v(src), v(src + 1)))
            out.append("buffer_store_dwordx4 %s, %s, %s, %s offen offset:%d sc1" % (v(vB + 4 * n, 4), v(vLn), s(sWS, 4), s((sNU, sEvt, sNxt, sCnt)[n >> 2]), (n & 3) * 1024))
            if n < 12:
                out += ["v_accvgpr_write_b32 %s, %s" % (a(aQ + 4 * n + k), v(vB + 4 * n + k)) for k in range(4)]
        return out

    early = dict(decode=list(decode()), consts=list(consts()), qcvt=qcvt, dmaO=[x for x in dmaO(0) if x != "s_nop 0"],
                 dma0=[m0K(0)] + dmaK(0) + [advK, m0K(1)] + dmaK(1) + [advK],
                 dma1=[m0V(0)] + dmaV(0) + [advV, m0V(1)] + dmaV(1) + [advV], dma2=[m0K(2)] + dmaK(2) + [advK])

    def mix(c, base, extra, every):
        extra = list(extra)
        for k, x in enumerate(base):
            put(c, [x])
            if k % every == every - 1 and extra:
                put(c, [extra.pop(0)])
        put(c, extra)

    def entry():
        more = [m0K(3)] + dmaK(3) + [advK, m0V(2)] + dmaV(2) + [advV]
        c = Code()
        for k in range(6):
            c.I("s_mov_b32 %s, %s" % (s(sCS + k), s(sCA + k)))
        c.I("s_mov_b32 %s, %s" % (s(sCS + 6), s(sTo)))
        for k in range(48, 64):
            c.I("v_accvgpr_write_b32 %s, %s" % (a(aQ + k), v(vB + k)))
        c.I("s_waitcnt vmcnt(%d) lgkmcnt(0)" % opt["nk0"])
        c.I("s_barrier")
        for f_ in range(16):
            c.append(rdK(0, f_))
        c.I("s_cmp_eq_u32 %s, 1" % s(sMode))
        c.I("s_cbranch_scc1 L2_qld")
        f = Code()
        f.I("s_waitcnt lgkmcnt(8)")
        qq = qk(0, czero=True)
        mix(f, qq[:16] + ["s_waitcnt lgkmcnt(0)"] + qq[16:], more, 3)
        f.I("s_waitcnt vmcnt(%d)" % (opt["nv0"] + 8))
        f.I("s_branch L2_qok")
        g = Code()
        g.L("L2_qld")
        put(g, more)
        g.I("v_mov_b32 %s, 0" % v(vT + 1))
        poll_loop(g, "L2_qx", vPoll, vT + 1, sFl, sCnt)
        put(g, acquire("L2_qa"))
        for n in range(16):
            g.I("buffer_load_dwordx4 %s, %s, %s, %s offen offset:%d" % (a(aQ + 4 * n, 4), v(vLn), s(sWS, 4), s(sD0), (n & 3) * 1024))
            if n & 3 == 3:
                g.I("s_add_u32 %s, %s, 0x1000" % (s(sD0), s(sD0)))
        g.I("s_add_u32 %s, %s, %d" % (s(sFl), s(sFl), (FG_PT - FG_QX) * 128))
        g.I("s_waitcnt vmcnt(0) lgkmcnt(0)")
        put(g, qq)
        h = Code()
        h.L("L2_qok")
        h.I("s_barrier")
        for f_ in range(15):
            h.append(rdK(1, f_))
        ST.mark(h, 'a1')
        f, g = fix_m0(f), fix_m0(g)
        OOL.L("L2_pubq")
        OOL.I("s_waitcnt vmcnt(8)")
        put(OOL, publish("L2_qs"))
        OOL.I("s_add_u32 %s, %s, %d" % (s(sFl), s(sFl), (FG_PT - FG_QX) * 128))
        OOL.I("s_branch L2_pubqr")
        return Code(c + f + g + h), list(c + f + h), list(c + g + h)

    def rdK(x, f):
        return Ins("ds_read_b128 %s, %s offset:%d" % (a(aF + 4 * f, 4), v(vRK), (x & 3) * 16384 + 1024 * f), {"r": (("K", x & 3), ("K", x))})

    def rdV(x, f):
        return Ins("ds_read_b128 %s, %s offset:%d" % (a(aF + 4 * f, 4), v(vRV), (x & 3) * 16384 + 1024 * f), {"r": (("V", x & 3), ("V", x))})

    def qk(p, czero=False, q2=False):
        out = []
        for f in range(16):
            kt, ks = f >> 3, f & 7
            for qt in range(2):
                d = v(S(p, qt, kt), 4)
                c0 = "0" if czero else v(vNM + 4 * qt, 4)
                qr = v(vB + 32 * qt + 4 * ks, 4) if q2 else a(aQ + 32 * qt + 4 * ks, 4)
                out.append(M16 % (d, a(aF + 4 * f, 4), qr, c0 if ks == 0 else d))
        return out

    def pv(p):
        out = []
        for f in range(16):
            for qt in range(2):
                d = a(aO + 8 * f + 4 * qt, 4)
                out.append(M16 % (d, a(aF + 4 * f, 4), v(P(p, qt), 4), d))
        return out

    def ones(p, qt):
        return M16 % (v(vLL[p][qt], 4), v(vOnes, 4), v(P(p, qt), 4), v(vLL[1 - p][qt], 4))

    def maskops(p, qt, thr):
        cm, se = [], []
        for e in range(8):
            kt, r = e >> 2, e & 3
            cm.append("v_cmp_gt_i32 %s, %d, %s" % (s(sM + 2 * e, 2), 16 * kt + r - 16 * qt, v(thr)))
            se.append("v_cndmask_b32 %s, %s, %s, %s" % (v(S(p, qt, kt, r)), v(S(p, qt, kt, r)), v(vNinf), s(sM + 2 * e, 2)))
        return cm, se

    def softmax(p, qt, thr=None):
        out = []
        cm, se = maskops(p, qt, thr) if thr is not None else ([], [])
        out += cm + se
        for e in range(8):
            out.append("v_exp_f32 %s, %s" % (v(vE + e), v(S(p, qt, e >> 2, e & 3))))
            if e & 1 and e >= 3:
                k = (e - 3) // 2
                out.append("v_cvt_pk_bf16_f32 %s, %s, %s" % (v(P(p, qt) + k), v(vE + 2 * k), v(vE + 2 * k + 1)))
        out.append("v_cvt_pk_bf16_f32 %s, %s, %s" % (v(P(p, qt) + 3), v(vE + 6), v(vE + 7)))
        return out

    def nreads(gaps, upto):
        return sum(1 for g in range(upto) for y in gaps[g] if isinstance(y, Ins) and y.t.startswith("ds_read"))

    def H2(x, masked, nosm=False):
        p = x & 1
        code = Code()
        mains = pv(1 - p)
        rd = [(rdV(x - 1, 15), 0, 0, 1)] + [(rdK(x + 1, f), 2 * f + 1, 2 * f + 1, 2 * f + 3) for f in range(15)]
        sm = [] if nosm else softmax(p, 0, (vThr + (x & 3)) if masked else None)
        if masked:
            smi = [(t, 1 + 29.0 * k / len(sm), 8 if k >= 12 else 0, 31) for k, t in enumerate(sm)]
        else:
            smi = [(t, 2 + 27.0 * k / len(sm), 6 if k >= 5 else 0, 31) for k, t in enumerate(sm)]
        dm = [(d, 2 + 6.5 * i, 1, 30) for i, d in enumerate(dmaV(x + 2))] + [(advV, 23, 0, 31)]
        fx = [m0V(x + 2)]
        if not masked and not nosm and opt.get("atouch", 1):
            dm += [(y, 27, 25, 29) for y in code_load(vLn, v(vCT, 4), sCS, sCS + 4)]
            dm += [("s_add_u32 %s, %s, %s" % (s(sCS + 4), s(sCS + 4), s(sCS + 5)), 29, 0, 31), ("s_and_b32 %s, %s, %s" % (s(sCS + 4), s(sCS + 4), s(sCS + 6)), 30, 0, 31)]
        if masked and (x & 3) == 2:
            fx.append("s_mov_b32 %s, %s" % (s(sOffV), s(sNxt)))
        gaps, load = schedule(32, 8, [rd, smi, dm], fixed={0: fx}, reserve={15: 4, 31: 4})
        pre = {16: ["s_waitcnt lgkmcnt(%d)" % (nreads(gaps, 16) - 1)]}
        weave(code, mains, gaps, pre)
        return code

    def H1(x, masked, tag):
        p = x & 1
        code = Code()
        last = masked and (x & 3) == 3
        q = qk(1 - p, czero=last, q2=last)
        o0, o1 = 4, 23 if not masked else 27
        mains = q[:o0] + [ones(p, 0)] + q[o0:o1 - 1] + [ones(p, 1)] + q[o1 - 1:]
        pos = [i for i in range(34) if i not in (o0, o1)]
        rd = [(rdK(x + 1, 15), 0, 0, 1)] + [(rdV(x, f), pos[2 * f + 1], pos[2 * f + 1], min(33, pos[2 * f + 1] + 2)) for f in range(15)]
        sm = softmax(p, 1, (vThr + (x & 3)) if masked else None)
        smi = [(t, 1 + (o1 - 4.0) * k / len(sm), 0, o1 - 2) for k, t in enumerate(sm)]
        dm = [(d, 3 + 8 * i, 2, 32) for i, d in enumerate(dmaK(x + 4))] + [(advK, 30, 0, 33)]
        ck = [("v_add_f32 %s, %s, %s" % (v(vT), v(vLL[p][0]), v(vLL[p][1])), o1 + 5, o1 + 5, 32),
              ("v_cmp_nge_f32 vcc, %s, %s" % (s(sBig), v(vT)), o1 + 6, o1 + 5, 32),
              ("s_cbranch_vccnz L2_rc_%s%d" % (tag, x & 3), o1 + 7, o1 + 5, 33), ("L2_rr_%s%d:" % (tag, x & 3), o1 + 7, o1 + 5, 33)]
        fx = [m0K(x + 4)]
        if masked and (x & 3) == 0:
            fx.append("s_mov_b32 %s, %s" % (s(sOffK), s(sNxt)))
        gaps, load = schedule(34, 8, [rd, smi, dm, ck], fixed={1: fx}, reserve={pos[16] - 1: 4, 33: 8})
        pre = {0: ["s_waitcnt lgkmcnt(7)"], pos[16]: ["s_waitcnt lgkmcnt(%d)" % (nreads(gaps, pos[16]) - 1)]}
        weave(code, mains, gaps, pre)
        code.I("s_waitcnt vmcnt(%d) lgkmcnt(7)" % (12 if masked or not opt.get("atouch", 1) else opt.get("bv", 13)))
        code.I("s_barrier")
        return code

    def rowmax(code, p, qt, t, tmp):
        b = S(p, qt, 0)
        code.I("v_max3_f32 %s, %s, %s, %s" % (v(t), v(b), v(b + 1), v(b + 2)))
        code.I("v_max3_f32 %s, %s, %s, %s" % (v(t), v(t), v(b + 3), v(b + 4)))
        code.I("v_max3_f32 %s, %s, %s, %s" % (v(t), v(t), v(b + 5), v(b + 6)))
        code.I("v_max_f32 %s, %s, %s" % (v(t), v(t), v(b + 7)))
        for sw in ("v_permlane16_swap_b32", "v_permlane32_swap_b32"):
            code.I("v_mov_b32 %s, %s" % (v(tmp), v(t)))
            code.I("s_nop 1")
            code.I("%s %s, %s" % (sw, v(t), v(tmp)))
            code.I("v_max_f32 %s, %s, %s" % (v(t), v(t), v(tmp)))

    def first():
        c = Code()
        c.L("L2_first")
        for qt in range(2):
            for r in range(4):
                c.I("v_mov_b32 %s, 0" % v(vLL[1][qt] + r))
        c.I("s_sub_u32 %s, %s, %s" % (s(sNU), s(sU1), s(sU0)))
        c.I("s_lshr_b32 %s, %s, 2" % (s(sNU), s(sNU)))
        c.I("s_sub_u32 %s, %s, %s" % (s(sNU), s(sNU), s(sDiag)))
        c.I("s_cmp_eq_u32 %s, 0" % s(sNext))
        c.I("s_cselect_b32 %s, 0x%x, 0" % (s(sNxt), HUGE))
        c.I("s_cmp_eq_u32 %s, 2" % s(sMode))
        c.I("s_cselect_b32 %s, %d, 0" % (s(sEvt), EV0))
        c.I("s_mul_i32 %s, %s, %s" % (s(sEvt), s(sEvt), "0" if opt.get("noev") else s(sFast)))
        c.I("s_cmp_eq_u32 %s, 2" % s(sHave))
        c.I("s_cselect_b32 %s, 99, %s" % (s(sEvt), s(sEvt)))
        c.I("s_cmp_eq_u32 %s, 0" % s(sNU))
        c.I("s_cselect_b32 %s, 0, 0x1000" % s(sT))
        c.I("v_add_u32 %s, %s, %s" % (v(vThrP), s(sT), v(vThr)))
        for qt in range(2):
            cm, se = maskops(0, qt, vThrP)
            put(c, cm + se)
        for qt in range(2):
            rowmax(c, 0, qt, vT + 2 + qt, vT + 4)
        for qt in range(2):
            for r in range(4):
                c.I("v_sub_f32 %s, 0, %s" % (v(vNM + 4 * qt + r), v(vT + 2 + qt)))
            for e in range(8):
                c.I("v_sub_f32 %s, %s, %s" % (v(S(0, qt, 0, e)), v(S(0, qt, 0, e)), v(vT + 2 + qt)))
        put(c, softmax(0, 0))
        c.I("s_cmp_eq_u32 %s, 3" % s(sHave))
        c.I("s_cbranch_scc1 L2_pubq")
        c.L("L2_pubqr")
        ST.mark(c, 'a2')
        c.I("s_cmp_eq_u32 %s, 0" % s(sNU))
        c.I("s_cbranch_scc1 L2_M_entry")
        c.I("s_branch L2_U_entry")
        return c

    def rare(p):
        c = Code()
        c.L("L2_rare%d" % p)
        c.I("s_nop 7")
        c.I("s_nop 7")
        for qt in range(2):
            d, f, tmp = vT + 2 + 2 * qt, vT + 3 + 2 * qt, vT + 6
            rowmax(c, p, qt, d, tmp)
            c.I("v_log_f32 %s, %s" % (v(tmp), v(vLL[1 - p][qt])))
            c.I("s_nop 0")
            c.I("v_max_f32 %s, %s, %s" % (v(d), v(d), v(tmp)))
            c.I("v_exp_f32 %s, -%s" % (v(f), v(d)))
            for r in range(4):
                c.I("v_sub_f32 %s, %s, %s" % (v(vNM + 4 * qt + r), v(vNM + 4 * qt + r), v(d)))
            for r in range(4):
                c.I("v_mul_f32 %s, %s, %s" % (v(vLL[1 - p][qt] + r), v(vLL[1 - p][qt] + r), v(f)))
            for e in range(8):
                c.I("v_sub_f32 %s, %s, %s" % (v(S(p, qt, 0, e)), v(S(p, qt, 0, e)), v(d)))
            c.I("v_mul_f32 %s, %s, %s" % (v(tmp), s(sT), v(d)))
            for e in range(8):
                c.I("v_sub_f32 %s, %s, %s" % (v(S(1 - p, qt, 0, e)), v(S(1 - p, qt, 0, e)), v(tmp)))
            put(c, softmax(p, qt))
        for dt in range(16):
            for qt in range(2):
                for r in range(4):
                    c.I("v_accvgpr_read_b32 %s, %s" % (v(vX + 4 * qt + r), a(aO + 8 * dt + 4 * qt + r)))
            for qt in range(2):
                for r in range(4):
                    c.I("v_mul_f32 %s, %s, %s" % (v(vX + 4 * qt + r), v(vX + 4 * qt + r), v(vT + 3 + 2 * qt)))
            for qt in range(2):
                for r in range(4):
                    c.I("v_accvgpr_write_b32 %s, %s" % (a(aO + 8 * dt + 4 * qt + r), v(vX + 4 * qt + r)))
        c.I("s_nop 1")
        c.I(ones(p, 0))
        c.I(ones(p, 1))
        c.I("s_nop 7")
        c.I("s_setpc_b64 %s" % s(sRet, 2))
        return c

    def rarecall(tag, k):
        c = Code()
        c.L("L2_rc_%s%d" % (tag, k))
        c.I("s_mov_b32 %s, %s" % (s(sT), "0" if (tag == "M" and k == 3) else "1.0"))
        c.I("s_call_b64 %s, L2_rare%d" % (s(sRet, 2), k & 1))
        c.I("s_branch L2_rr_%s%d" % (tag, k))
        return c

    def partner_loads(c):
        c.I("s_lshl_b32 %s, %s, 10" % (s(sT2), s(sPair)))
        c.I("s_add_u32 %s, %s, 0x%x" % (s(sT2), s(sT2), WS_STAT))
        c.I("buffer_load_dwordx4 %s, %s, %s, %s offen" % (v(vC + 8, 4), v(vLn), s(sWS, 4), s(sT2)))
        c.I("s_lshl_b32 %s, %s, 14" % (s(sT2), s(sPair)))
        c.I("s_add_u32 %s, %s, 0x%x" % (s(sT2), s(sT2), WS_PART))
        for i in range(16):
            c.I("buffer_load_dwordx4 %s, %s, %s, %s offen offset:%d" % (v(vB + 4 * i, 4), v(vLn), s(sWS, 4), s(sT2), (i & 3) * 1024))
            if i & 3 == 3 and i < 15:
                c.I("s_add_u32 %s, %s, 0x1000" % (s(sT2), s(sT2)))

    def publish(lab):
        return ["v_mov_b32 %s, 1" % v(vT + 10), "v_mov_b32 %s, 0" % v(vT + 11), "s_mov_b32 %s, 0" % s(sHave)] + signal(lab, vT + 10, vT + 11, sFl)

    def loopend(which=None):
        c = Code()
        c.I("s_sub_u32 %s, %s, 1" % (s(sNU), s(sNU)))
        c.I("s_cmp_gt_u32 %s, %s" % (s(sNU), s(sEvt)))
        c.I("s_cbranch_scc1 L2_U_top")
        c.I("s_cmp_eq_u32 %s, 2" % s(sHave))
        c.I("s_cbranch_scc0 L2_nopub")
        if which in (None, 3):
            put(c, publish("L2_ps"))
            c.I("s_mov_b32 %s, 0" % s(sEvt))
            c.I("s_cmp_lg_u32 %s, 0" % s(sNU))
            c.I("s_cbranch_scc1 L2_U_top")
        c.L("L2_nopub")
        c.I("s_cmp_eq_u32 %s, 0" % s(sNU))
        c.I("s_cbranch_scc1 L2_U_exit")
        c.I("s_cmp_eq_u32 %s, %d" % (s(sNU), EV0))
        c.I("s_cbranch_scc1 L2_ev2")
        if which in (None, 1):
            c.I("v_cmp_ne_u32 vcc, 1, %s" % v(vPoll))
            c.I("s_cbranch_vccnz L2_ev2")
            partner_loads(c)
            c.I("s_mov_b32 %s, 1" % s(sHave))
            c.I("s_mov_b32 %s, 0" % s(sEvt))
            c.I("s_branch L2_U_top")
        c.L("L2_ev2")
        if which in (None, 2):
            c.I("v_mov_b32 %s, 0" % v(vT + 1))
            c.I("s_nop 0")
            c.I("buffer_load_dword %s, %s, %s, %s offen sc1" % (v(vPoll), v(vT + 1), s(sWS, 4), s(sFl)))
            c.I("s_branch L2_U_top")
        c.L("L2_U_exit")
        c.I("s_cmp_lg_u32 %s, 0" % s(sEvt))
        c.I("s_cbranch_scc1 L2_ev3")
        c.L("L2_ev3r")
        c.I("s_cmp_eq_u32 %s, 0" % s(sDiag))
        c.I("s_cbranch_scc1 L2_fin")
        return c

    def norm_groups(dst, merge, store):
        out = []
        for n in range(16):
            qt, ks = n >> 3, n & 7
            e = vX + 8 * (n & 1)
            g = ["v_accvgpr_read_b32 %s, %s" % (v(e + k), a(aO + 8 * (2 * ks + (k >> 2)) + 4 * qt + (k & 3))) for k in range(8)]
            g += ["v_pk_mul_f32 %s, %s, %s" % (v(e + 2 * k, 2), v(e + 2 * k, 2), v(vC + 2 * qt, 2)) for k in range(4)]
            if merge:
                for k in range(4):
                    t = vT + 6 + 2 * (k & 1)
                    g.append("v_lshlrev_b32 %s, 16, %s" % (v(t), v(vB + 4 * n + k)))
                    g.append("v_and_b32 %s, 0xffff0000, %s" % (v(t + 1), v(vB + 4 * n + k)))
                    g.append("v_pk_fma_f32 %s, %s, %s, %s" % (v(e + 2 * k, 2), v(t, 2), v(vC + 4 + 2 * qt, 2), v(e + 2 * k, 2)))
            d = dst(n)
            g += ["v_cvt_pk_bf16_f32 %s, %s, %s" % (v(d + k), v(e + 2 * k), v(e + 2 * k + 1)) for k in range(4)]
            if store:
                g.append("buffer_store_dwordx4 %s, %s, %s, %s offen offset:%d sc1" % (v(d, 4), v(vLn), s(sWS, 4), s(sD0), (n & 3) * 1024))
                if n & 3 == 3:
                    g.append("s_add_u32 %s, %s, 0x1000" % (s(sD0), s(sD0)))
            out.append(g)
        return out

    def rcp_l(c):
        for qt in range(2):
            c.I("v_rcp_f32 %s, %s" % (v(vC + 2 * qt), v(vLL[1][qt])))
        c.I("s_nop 0")
        for qt in range(2):
            c.I("v_mov_b32 %s, %s" % (v(vC + 2 * qt + 1), v(vC + 2 * qt)))

    def cont(x):
        c = Code()
        c.I("s_cmp_eq_u32 %s, 0" % s(sNext))
        c.I("s_cbranch_scc1 L2_fin")
        c += H2(x, False, nosm=True)
        rcp_l(c)
        c.I("s_lshl_b32 %s, %s, 14" % (s(sD0), s(sPair)))
        c.I("s_add_u32 %s, %s, 0x%x" % (s(sD0), s(sD0), WS_PART))
        c.I("v_mov_b32 %s, %s" % (v(vC + 8), v(vNM)))
        c.I("v_mov_b32 %s, %s" % (v(vC + 9), v(vNM + 4)))
        c.I("v_mov_b32 %s, %s" % (v(vC + 10), v(vLL[1][0])))
        c.I("v_mov_b32 %s, %s" % (v(vC + 11), v(vLL[1][1])))
        c.I("s_lshl_b32 %s, %s, 10" % (s(sT2), s(sPair)))
        c.I("s_add_u32 %s, %s, 0x%x" % (s(sT2), s(sT2), WS_STAT))
        c.I("buffer_store_dwordx4 %s, %s, %s, %s offen sc1" % (v(vC + 8, 4), v(vLn), s(sWS, 4), s(sT2)))
        for g in norm_groups(lambda n: vPk + 4 * (n & 3), False, True):
            put(c, g)
        for i in range(128):
            c.I("v_accvgpr_write_b32 %s, 0" % a(aO + i))
        for k in range(64):
            c.I("v_accvgpr_write_b32 %s, %s" % (a(aQ + k), v(vB + k)))
        c.I("s_mov_b32 %s, %s" % (s(sQb), s(sI)))
        c.I("s_mov_b32 %s, 0" % s(sU0))
        c.I("s_lshl_b32 %s, %s, 2" % (s(sU1), s(sI)))
        c.I("s_add_u32 %s, %s, 4" % (s(sU1), s(sU1)))
        c.I("s_mov_b32 %s, 0" % s(sMode))
        c.I("s_mov_b32 %s, 0" % s(sNext))
        c.I("s_mov_b32 %s, 2" % s(sHave))
        c.I("s_branch L2_first")
        return c

    def fin1(xl=3):
        c = Code()
        c.L("L2_fin")
        ST.mark(c, 'fin')
        q = pv(1)
        d1 = dmaO(1)
        gaps = {i: [] for i in range(32)}
        for k, x in enumerate(d1):
            gaps[1 + 2 * k].append(x)
        gaps[0].insert(0, rdV(xl, 15))
        weave(c, q, gaps, {16: ["s_waitcnt lgkmcnt(0)"]})
        c.I("s_waitcnt vmcnt(8)")
        c.I("s_barrier")
        c.I("s_cmp_eq_u32 %s, 2" % s(sMode))
        c.I("s_cbranch_scc1 L2_merge")
        return c

    def later(n):
        return [x for ch in (2, 3, 4) for x in dmaO(ch) if x != "s_nop 0"] + code_touch(vLn, a(aQ, 4), 12, n)

    def fin_plain():
        c = Code()
        rcp_l(c)
        mix(c, [x for g in norm_groups(lambda n: vB + 4 * n, False, False) for x in g], later(6), 5)
        c.I("s_branch L2_oproj")
        return c

    def fin_merge(have):
        c = Code()
        c.L("L2_merge")
        c.I("s_cmp_eq_u32 %s, 1" % s(sHave))
        c.I("s_cbranch_scc1 L2_have")
        if not have:
            c.I("v_mov_b32 %s, 0" % v(vT + 1))
            poll_loop(c, "L2_pt", vPoll, vT + 1, sFl, sCnt)
            put(c, acquire("L2_pa"))
            partner_loads(c)
            c.I("s_waitcnt vmcnt(0)")
        c.L("L2_have")
        for qt in range(2):
            nA, nB, lA, lB = vNM + 4 * qt, vC + 8 + qt, vLL[1][qt], vC + 10 + qt
            t0, t1, t2 = vT + 2, vT + 3, vT + 4
            c.I("v_min_f32 %s, %s, %s" % (v(t0), v(nA), v(nB)))
            c.I("v_sub_f32 %s, %s, %s" % (v(t1), v(t0), v(nA)))
            c.I("v_sub_f32 %s, %s, %s" % (v(t2), v(t0), v(nB)))
            c.I("v_exp_f32 %s, %s" % (v(t1), v(t1)))
            c.I("v_exp_f32 %s, %s" % (v(t2), v(t2)))
            c.I("s_nop 0")
            c.I("v_mul_f32 %s, %s, %s" % (v(t2), v(t2), v(lB)))
            c.I("v_fma_f32 %s, %s, %s, %s" % (v(t0), v(t1), v(lA), v(t2)))
            c.I("v_rcp_f32 %s, %s" % (v(t0), v(t0)))
            c.I("s_nop 0")
            for k in range(2):
                c.I("v_mul_f32 %s, %s, %s" % (v(vC + 2 * qt + k), v(t1), v(t0)))
                c.I("v_mul_f32 %s, %s, %s" % (v(vC + 4 + 2 * qt + k), v(t2), v(t0)))
        mix(c, [x for g in norm_groups(lambda n: vB + 4 * n, True, False) for x in g], later(7), 9)
        return c

    def oproj():
        c = Code()
        c.L("L2_oproj")
        ST.mark(c, 'op')
        c.I("s_lshl_b32 %s, %s, 2" % (s(sT), s(sQb)))
        c.I("s_add_u32 %s, %s, %s" % (s(sT), s(sT), s(sW)))
        c.I("s_lshl_b32 %s, %s, 5" % (s(sT), s(sT)))
        c.I("s_add_u32 %s, %s, %s" % (s(sT), s(sT), s(sHead)))
        c.I("s_mul_i32 %s, %s, %d" % (s(sD0), s(sT), 14 * 1024))
        c.I("s_add_u32 %s, %s, 0x%x" % (s(sD0), s(sD0), WS_PO))
        c.I("s_add_u32 %s, %s, %d" % (s(sT2), s(sD0), 16 * 14 * 1024))
        c.I("s_lshl_b32 %s, %s, 7" % (s(sFl), s(sQb)))
        c.I("s_lshl_b32 %s, %s, 2" % (s(sT), s(sHead)))
        c.I("s_add_u32 %s, %s, %s" % (s(sFl), s(sFl), s(sT)))
        c.I("s_add_u32 %s, %s, 0x%x" % (s(sFl), s(sFl), WS_FLAG + FG_PO * 128))

        if nxt:
            put(c, nxt[0])

        def setaddr(ch):
            return ["v_add_u32 %s, 0x%x, %s" % (v(vWA + k), CH[ch] * 32768, v(vWB + k)) for k in range(2)]

        def rd(ch, f):
            ks, nt = f >> 2, f & 3
            return [Ins("ds_read_b64_tr_b16 %s, %s offset:%d" % (a(aF + 4 * (f & 15) + 2 * r, 2), v(vWA + (nt & 1)), ks * 4096 + r * 2048 + (nt >> 1) * 256),
                        {"r": (("C", CH[ch]), ("O", ch))}) for r in range(2)]

        def drain(ch):
            out = []
            ac = vAcc[ch & 1]
            for qt in range(2):
                for pp in range(2):
                    pk = vPk + 4 * (2 * qt + pp)
                    for k in range(4):
                        src = ac + 8 * (2 * pp + (k >> 1)) + 4 * qt + 2 * (k & 1)
                        out.append("v_cvt_pk_bf16_f32 %s, %s, %s" % (v(pk + k), v(src), v(src + 1)))
                    out.append("buffer_store_dwordx4 %s, %s, %s, %s offen offset:%d sc1" % (v(pk, 4), v(vLn), s(sWS, 4), s(sT2 if qt else sD0), ((2 * ch + pp) & 3) * 1024))
            if ch & 1:
                out.append("s_add_u32 %s, %s, 0x1000" % (s(sD0), s(sD0)))
                out.append("s_add_u32 %s, %s, 0x1000" % (s(sT2), s(sT2)))
            return out

        put(c, setaddr(0))
        for f in range(16):
            c += rd(0, f)
        for ch in range(7):
            for hf in range(2):
                mains = []
                for f in range(16 * hf, 16 * hf + 16):
                    ks, nt = f >> 2, f & 3
                    for qt in range(2):
                        d = v(vAcc[ch & 1] + 8 * nt + 4 * qt, 4)
                        mains.append(M16 % (d, a(aF + 4 * (f & 15), 4), v(vB + 32 * qt + 4 * ks, 4), d if ks else "0"))
                streams, fixed = [], {}
                if hf == 1 and ch < 6:
                    c.append(Ins("@need", {"need": [("O", ch + 1)]}))
                    c.I("s_barrier")
                    ST.mark(c, 'ob%d' % ch)
                    fixed[0] = setaddr(ch + 1)
                if hf == 0 or ch < 6:
                    src = (ch, 16) if hf == 0 else (ch + 1, 0)
                    streams.append([(x, 2 * f + 1 + k, 2 * f + 1, min(31, 2 * f + 4)) for f in range(16) for k, x in enumerate(rd(src[0], src[1] + f))])
                if hf == 0 and ch > 0:
                    dr = drain(ch - 1)
                    streams.append([(x, 5 + k * 26.0 / len(dr), 5, 31) for k, x in enumerate(dr)])
                if hf == 1 and ch in (1, 2):
                    dd = [x for x in dmaO(ch + 4) if x != "s_nop 0"]
                    streams.append([(x, 1 + 2 * k, 1 + 2 * k, 31) for k, x in enumerate(dd)])
                k = 2 * ch + hf - 7
                if nxt and 0 <= k < 6:
                    streams.append(spread(nxt[1][k], 2, 29))
                gaps, load = schedule(32, 8, streams, fixed=fixed)
                weave(c, mains, gaps)
        c.I("s_nop 7")
        put(c, drain(6))
        ST.mark(c, 'o1')
        if fused_next:
            import ph3
            c += ph3.early(sT, sT3)
            c.I("v_mov_b32 %s, 1" % v(vT))
            c.I("v_mov_b32 %s, 0" % v(vT + 1))
            c.I("s_waitcnt vmcnt(0)")
            c.I("s_barrier")
            c.I("buffer_store_dword %s, %s, %s, %s offen sc1" % (v(vT), v(vT + 1), s(sWS, 4), s(sFl)))
            ST.mark(c, 'o2')
        pre = Code()
        for ch in (1, 2, 3, 4):
            put(pre, dmaO(ch))
        put(pre, code_touch(vLn, a(aQ, 4), 12, 6))
        w = autowait(Code(pre + fix_m0(c)))
        return Code(w[len(pre):])

    def group(g, masked, entry):
        tag = "M" if masked else "U"
        code = Code()
        for k in range(4):
            x = 4 * g + k
            if not (k == 0 and entry):
                code += H2(x, masked)
            if k == 0:
                code.L("L2_%s_entry" % tag)
            code += H1(x, masked, tag)
            if masked and k == 1:
                code.I("s_cmp_eq_u32 %s, 2" % s(sHave))
                code.I("s_cbranch_scc1 L2_pub2")
                code.L("L2_pub2r")
        return code

    yield early
    OOL.L("L2_ev3")
    OOL.I("v_cmp_ne_u32 vcc, 1, %s" % v(vPoll))
    OOL.I("s_cbranch_vccnz L2_ev3r")
    partner_loads(OOL)
    OOL.I("s_mov_b32 %s, 1" % s(sHave))
    OOL.I("s_branch L2_ev3r")
    OOL.L("L2_pub2")
    put(OOL, publish("L2_ps2"))
    OOL.I("s_branch L2_pub2r")
    ent, trA, trB = entry()
    out = Code(ent)
    out += first()
    out.I(".p2align 6")
    out.L("L2_U_top")
    out += group(1, False, False)
    out += loopend()
    out += group(1, True, False)
    out += cont(8)
    for tag in "UM":
        for k in range(4):
            out += rarecall(tag, k)
    out += rare(0)
    out += rare(1)
    out += fin1()
    out += fin_plain()
    out += fin_merge(False)
    op = oproj()
    out += op

    strip = lambda code: [x.t for x in code]
    for g in (2, 3):
        assert strip(group(g, False, False)) == strip(group(1, False, False))
        assert strip(group(g, True, False)) == strip(group(1, True, False))
    G = lambda g, m, e=False: list(group(g, m, e))
    t1 = trA + list(first()) + G(0, False, True) + list(loopend(2)) + G(1, False) + list(loopend(1)) + G(2, False) + list(loopend(0)) \
        + list(fin1(11)) + list(fin_merge(True)) + list(op)
    t2 = trB + list(first()) + G(0, False, True) + list(loopend(0)) + G(1, True) + list(cont(8)) + list(first()) + G(2, True, True) \
        + list(fin1(11)) + list(fin_plain()) + list(op)
    t3 = trA + list(first()) + G(0, True, True) + list(fin1()) + list(fin_merge(False)) + list(op)
    traces = [t1, t2, t3]
    for k in range(2):
        tr = trA + list(first())
        for x in group(0, False, True):
            tr.append(x)
            if x.t == "s_cbranch_vccnz L2_rc_U%d" % (k + 1):
                tr += list(rare((k + 1) & 1))
        tr += G(1, False)
        traces.append(tr)
    yield out, traces
```

```python
from asmlib import *
from layout import *
from common import *
import proj
from proj import put


def rbdecode(c, sRb, sMem):
    c.I("s_and_b32 %s, s2, 7" % s(sRb))
    c.I("s_lshr_b32 %s, s2, 7" % s(sMem))
    c.I("s_lshl_b32 %s, %s, 3" % (s(sMem), s(sMem)))
    c.I("s_add_u32 %s, %s, %s" % (s(sRb), s(sRb), s(sMem)))
    c.I("s_bfe_u32 %s, s2, 0x40003" % s(sMem))


def gen(ST, opt, fused_prev, fused_next):
    LB = 163840 - 256
    vD = 4
    V = Alloc(148, 256)
    vA = V(32, 4)
    V.p = 192
    vPo, vHo, vXo, vSt = V(), V(), V(), V()
    vXr = V(8, 4)
    vH = V(8, 4)
    vT = V(16, 4)
    vL = 1
    sX = 12
    sRb, sMem, sP0, sX0, sH0, sFl, sCnt, sP1 = range(32, 40)
    c = Code()
    c.I("s_load_dwordx2 %s, s[0:1], 0" % s(sX, 2))
    rbdecode(c, sRb, sMem)
    L = v(vL)
    if not fused_prev:
        c.I("v_and_b32 %s, 63, v0" % L)
    c.I("v_and_b32 %s, 7, %s" % (v(vT), L))
    c.I("v_bfe_u32 %s, %s, 3, 2" % (v(vT + 1), L))
    c.I("v_lshrrev_b32 %s, 5, %s" % (v(vT + 2), L))
    c.I("v_lshlrev_b32 %s, 4, %s" % (v(vPo), v(vT)))
    c.I("v_lshl_add_u32 %s, %s, 8, %s" % (v(vPo), v(vT + 1), v(vPo)))
    c.I("v_lshl_add_u32 %s, %s, 10, %s" % (v(vHo), v(vT + 2), v(vPo)))
    c.I("v_mul_u32_u24 %s, %d, %s" % (v(vT + 3), 8 * 14 * 1024, v(vT + 2)))
    c.I("v_add_u32 %s, %s, %s" % (v(vPo), v(vPo), v(vT + 3)))
    c.I("v_mul_u32_u24 %s, 896, %s" % (v(vXo), v(vT)))
    c.I("v_lshl_add_u32 %s, %s, 3, %s" % (v(vXo), v(vT + 1), v(vXo)))
    c.I("v_lshl_add_u32 %s, %s, 6, %s" % (v(vXo), v(vT + 2), v(vXo)))
    c.I("v_lshlrev_b32 %s, 3, %s" % (v(vSt), v(vT)))
    c.I("v_add_u32 %s, %d, %s" % (v(vSt), LB, v(vSt)))
    c.I("s_lshl_b32 %s, %s, 3" % (s(sT), s(sRb)))
    c.I("s_lshr_b32 %s, %s, 1" % (s(sT2), s(sMem)))
    c.I("s_add_u32 %s, %s, %s" % (s(sT), s(sT), s(sT2)))
    c.I("s_and_b32 %s, %s, 1" % (s(sT2), s(sMem)))
    c.I("s_lshl_b32 %s, %s, 7" % (s(sT2), s(sT2)))
    c.I("s_lshl_b32 %s, %s, 11" % (s(sT3), s(sW)))
    c.I("s_add_u32 %s, %s, %s" % (s(sT2), s(sT2), s(sT3)))
    c.I("s_mul_i32 %s, %s, %d" % (s(sH0), s(sT), 14 * 1024))
    c.I("s_add_u32 %s, %s, %s" % (s(sH0), s(sH0), s(sT2)))
    c.I("s_add_u32 %s, %s, 0x%x" % (s(sH0), s(sH0), WS_HN))
    c.I("s_mul_i32 %s, %s, %d" % (s(sP0), s(sT), 16 * 14 * 1024))
    c.I("s_add_u32 %s, %s, %s" % (s(sP0), s(sP0), s(sT2)))
    c.I("s_add_u32 %s, %s, 0x%x" % (s(sP0), s(sP0), WS_PO))
    c.I("s_cmp_eq_u32 %s, 3" % s(sW))
    c.I("s_cselect_b32 %s, 0x40000000, 0" % s(sT3))
    c.I("s_add_u32 %s, %s, %s" % (s(sP1), s(sP0), s(sT3)))
    c.I("s_add_u32 %s, %s, 0x2000" % (s(sP1), s(sP1)))
    c.I("s_lshl_b32 %s, %s, 4" % (s(sT), s(sRb)))
    c.I("s_add_u32 %s, %s, %s" % (s(sT), s(sT), s(sMem)))
    c.I("s_mul_i32 %s, %s, %d" % (s(sX0), s(sT), 8 * 896))
    c.I("s_lshl_b32 %s, %s, 7" % (s(sT), s(sW)))
    c.I("s_add_u32 %s, %s, %s" % (s(sX0), s(sX0), s(sT)))
    c.I("s_add_u32 %s, %s, %s" % (s(sT), s(sX0), s(sT3)))
    c.I("s_waitcnt lgkmcnt(0)")
    srd_fin(c, sX, 2048 * 896)
    for r in range(2):
        for k in range(2):
            c.I("buffer_load_dwordx2 %s, %s, %s, %s offen offset:%d" % (v(vXr + 4 * r + 2 * k, 2), v(vXo), s(sX, 4), s(sT if r else sX0), r * 512 + k * 32))
    c.I("s_add_u32 %s, %s, 0x%x" % (s(sX0), s(sX0), WS_H))
    ST.mark(c, 'rp')
    if fused_prev:
        c.I("s_lshl_b32 %s, %s, 7" % (s(sFl), s(sRb)))
        c.I("s_add_u32 %s, %s, 0x%x" % (s(sFl), s(sFl), WS_FLAG + FG_PO * 128))
        c.I("v_min_u32 %s, 15, %s" % (v(vT + 3), L))
        c.I("v_lshlrev_b32 %s, 2, %s" % (v(vT + 3), v(vT + 3)))
        wg_wait(c, "L3_po", vT + 4, vT + 3, sFl, sCnt)
    ST.mark(c, 'r0')
    dreg = lambda j, r, pq: vD + 4 * (4 * j + 2 * r + pq)
    for j in range(8):
        for r in range(2):
            for pq in range(2):
                c.I("buffer_load_dwordx4 %s, %s, %s, %s offen offset:%d sc1" % (v(dreg(j, r, pq), 4), v(vPo), s(sWS, 4), s(sP1 if r else sP0), pq * 1024))
        if j < 7:
            c.I("s_add_u32 %s, %s, %d" % (s(sP0), s(sP0), 14 * 1024))
            c.I("s_add_u32 %s, %s, %d" % (s(sP1), s(sP1), 14 * 1024))
    sm, sq, one = vT, vT + 2, vT + 8
    c.I("v_mov_b32 %s, 0x3f803f80" % v(one))
    c.I("v_mov_b32 %s, 0" % v(sm))
    c.I("v_mov_b32 %s, 0" % v(sq))
    for j in range(8):
        for i in range(4):
            for k in range(4):
                x = dreg(j, i >> 1, i & 1) + k
                d = vA + 8 * i + 2 * k
                if j == 0:
                    c.I("v_lshlrev_b32 %s, 16, %s" % (v(d), v(x)))
                    c.I("v_and_b32 %s, 0xffff0000, %s" % (v(d + 1), v(x)))
                else:
                    t = vT + 4 + 2 * (k & 1)
                    c.I("v_lshlrev_b32 %s, 16, %s" % (v(t), v(x)))
                    c.I("v_and_b32 %s, 0xffff0000, %s" % (v(t + 1), v(x)))
                    c.I("v_pk_add_f32 %s, %s, %s" % (v(d, 2), v(d, 2), v(t, 2)))
    ST.mark(c, 'r1')
    c.I("s_nop 0")
    for r in range(2):
        for k in range(8):
            c.I("v_permlane32_swap_b32 %s, %s" % (v(vA + 16 * r + k), v(vA + 16 * r + 8 + k)))
        for k in range(4):
            c.I("v_pk_add_f32 %s, %s, %s" % (v(vA + 16 * r + 2 * k, 2), v(vA + 16 * r + 2 * k, 2), v(vA + 16 * r + 8 + 2 * k, 2)))
    for r in range(2):
        for k in range(4):
            t = vT + 10
            s0 = vA + 16 * r + 2 * k
            c.I("v_cvt_pk_bf16_f32 %s, %s, %s" % (v(t), v(s0), v(s0 + 1)))
            c.I("v_lshlrev_b32 %s, 16, %s" % (v(t + 2), v(t)))
            c.I("v_and_b32 %s, 0xffff0000, %s" % (v(t + 3), v(t)))
            c.I("v_lshlrev_b32 %s, 16, %s" % (v(t + 4), v(vXr + 4 * r + k)))
            c.I("v_and_b32 %s, 0xffff0000, %s" % (v(t + 5), v(vXr + 4 * r + k)))
            c.I("v_pk_add_f32 %s, %s, %s" % (v(t + 2, 2), v(t + 2, 2), v(t + 4, 2)))
            c.I("v_cvt_pk_bf16_f32 %s, %s, %s" % (v(vH + 4 * r + k), v(t + 2), v(t + 3)))
    c.I("s_add_u32 %s, %s, %s" % (s(sT2), s(sX0), s(sT3)))
    for r in range(2):
        for k in range(2):
            c.I("buffer_store_dwordx2 %s, %s, %s, %s offen offset:%d sc1" % (v(vH + 4 * r + 2 * k, 2), v(vXo), s(sWS, 4), s(sT2 if r else sX0), r * 512 + k * 32))
    for k in range(8):
        c.I("v_dot2c_f32_bf16 %s, %s, %s" % (v(sm), v(vH + k), v(one)))
        c.I("v_dot2c_f32_bf16 %s, %s, %s" % (v(sq), v(vH + k), v(vH + k)))
    c.I("s_nop 2")
    for x in (sm, sq):
        c.I("v_add_f32_dpp %s, %s, %s row_ror:8 row_mask:0xf bank_mask:0xf" % (v(x), v(x), v(x)))
    for sw in ("v_permlane16_swap_b32", "v_permlane32_swap_b32"):
        for x in (sm, sq):
            c.I("v_mov_b32 %s, %s" % (v(x + 1), v(x)))
        c.I("s_nop 1")
        for x in (sm, sq):
            c.I("%s %s, %s" % (sw, v(x), v(x + 1)))
        for x in (sm, sq):
            c.I("v_add_f32 %s, %s, %s" % (v(x), v(x), v(x + 1)))
    c.I("v_mov_b32 %s, %s" % (v(sm + 1), v(sq)))
    c.I("s_lshl_b32 %s, %s, 6" % (s(sT), s(sW)))
    c.I("v_add_u32 %s, %s, %s" % (v(vT + 4), s(sT), v(vSt)))
    c.I("ds_write_b64 %s, %s" % (v(vT + 4), v(sm, 2)))
    c.I("s_add_u32 %s, %s, %s" % (s(sT3), s(sH0), s(sT3)))
    c.I("s_add_u32 %s, %s, 0x2000" % (s(sT3), s(sT3)))
    c.I("s_waitcnt lgkmcnt(0)")
    c.I("s_barrier")
    for w in range(4):
        c.I("ds_read_b64 %s, %s offset:%d" % (v(vD + 2 * w, 2), v(vSt), 64 * w))
    c.I("s_waitcnt lgkmcnt(0)")
    c.I("v_pk_add_f32 %s, %s, %s" % (v(vD, 2), v(vD, 2), v(vD + 2, 2)))
    c.I("v_pk_add_f32 %s, %s, %s" % (v(vD + 4, 2), v(vD + 4, 2), v(vD + 6, 2)))
    c.I("v_add_f32 %s, %s, %s" % (v(sm), v(vD), v(vD + 4)))
    c.I("v_add_f32 %s, %s, %s" % (v(sq), v(vD + 1), v(vD + 5)))
    proj.ln_scalars(c, sm, sq, sT)
    proj.ln_apply(c, [vH + k for k in range(8)], sm, sq, vT + 4)
    c.I("buffer_store_dwordx4 %s, %s, %s, %s offen sc1" % (v(vH, 4), v(vHo), s(sWS, 4), s(sH0)))
    c.I("buffer_store_dwordx4 %s, %s, %s, %s offen sc1" % (v(vH + 4, 4), v(vHo), s(sWS, 4), s(sT3)))
    if fused_next:
        c.I("s_lshl_b32 %s, %s, 7" % (s(sFl), s(sRb)))
        c.I("s_lshl_b32 %s, %s, 2" % (s(sT), s(sMem)))
        c.I("s_add_u32 %s, %s, %s" % (s(sFl), s(sFl), s(sT)))
        c.I("s_add_u32 %s, %s, 0x%x" % (s(sFl), s(sFl), WS_FLAG + FG_HN * 128))
        c.I("v_mov_b32 %s, 1" % v(vT + 8))
        c.I("v_mov_b32 %s, 0" % v(vT + 9))
        c.I("s_waitcnt vmcnt(0)")
        c.I("s_barrier")
        put(c, signal("L3_s", vT + 8, vT + 9, sFl))
    ST.mark(c, 'r2')
    c = autowait(c)
    return c, [list(c), list(c)]
```

```python
from asmlib import *
from layout import *
from common import *
import proj
from proj import put
from ph3 import rbdecode


def gen(ST, opt, fused_prev, fused_next, nxt=None):
    vAcc = 4
    vOB, vQB = 140, 144
    vL, vST = 1, 2
    V = Alloc(184, 256)
    vT0 = V(8, 4)
    V.p = 216
    vT = V(8, 4)
    vQA = V(4)
    vP = V(12, 4)
    aX, aF = 0, 128
    sG, sU = 48, 52
    sRb, sSl, sOff = 64, 65, 66
    sXo, sXo1, sD, sFl, sCnt, sD1 = range(40, 46)
    slot_of = [2, 3, 4, 5, 6, 7, 0, 1, 8, 9, 2, 3, 4, 5]
    LA = 6

    def dmaW(t):
        return ["s_add_u32 m0, %s, 0x%x" % (s(sW4k), slot_of[t] * 16384)] + \
            [Ins("buffer_load_dwordx4 %s, %s, %s offen offset:%d lds" % (v(vOB + j), s(sU if j & 1 else sG, 4), s(sOff), 1024 * j),
                 {"w": (("S", slot_of[t]), ("G", t), 4), "alias": [("C", (slot_of[t] // 2))]}) for j in range(4)] + \
            ["s_add_u32 %s, %s, %d" % (s(sOff), s(sOff), 32 * 3584)]

    def xload(t):
        out = ["buffer_load_dwordx4 %s, %s, %s, %s offen offset:%d" % (a(aX + 8 * t + 4 * qt, 4), v(vST), s(sWS, 4), s(sXo + qt), (t & 3) * 1024)
               for qt in range(2)]
        if t & 3 == 3:
            out += ["s_add_u32 %s, %s, 0x1000" % (s(sXo + qt), s(sXo + qt)) for qt in range(2)]
        return out

    p = Code()
    p.I("s_load_dwordx2 %s, s[0:1], 56" % s(sG, 2))
    p.I("s_load_dwordx2 %s, s[0:1], 64" % s(sU, 2))
    rbdecode(p, sRb, sSl)
    L = v(vL)
    t0, t1, t2, t3 = vT0, vT0 + 1, vT0 + 2, vT0 + 3
    if not fused_prev:
        p.I("v_and_b32 %s, 63, v0" % L)
        p.I("v_lshlrev_b32 %s, 4, %s" % (v(vST), L))
    p.I("v_lshrrev_b32 %s, 4, %s" % (v(t2), L))
    p.I("v_bfe_u32 %s, %s, 2, 2" % (v(t0), L))
    p.I("s_lshl_b32 %s, %s, 3" % (s(sT), s(sW)))
    p.I("v_add_u32 %s, %s, %s" % (v(t1), s(sT), v(t0)))
    p.I("v_mul_u32_u24 %s, 3584, %s" % (v(t1), v(t1)))
    p.I("v_lshl_add_u32 %s, %s, 6, %s" % (v(t1), v(t2), v(t1)))
    p.I("v_and_b32 %s, 3, %s" % (v(t3), L))
    p.I("v_lshl_add_u32 %s, %s, 4, %s" % (v(t1), v(t3), v(t1)))
    p.I("v_xor_b32 %s, 32, %s" % (v(vT0 + 4), v(t1)))
    for j in range(4):
        p.I("v_add_u32 %s, 0x%x, %s" % (v(vOB + j), 4 * (j >> 1) * 3584 + 4096 - j * 1024, v(vT0 + 4 if j >> 1 else t1)))
    p.I("v_lshlrev_b32 %s, 11, %s" % (v(t1), v(t2)))
    p.I("v_lshl_add_u32 %s, %s, 6, %s" % (v(t1), v(t0), v(t1)))
    p.I("v_bfe_u32 %s, %s, 4, 1" % (v(t0), L))
    p.I("v_lshl_add_u32 %s, %s, 5, %s" % (v(t1), v(t0), v(t1)))
    p.I("v_lshl_add_u32 %s, %s, 3, %s" % (v(vQB), v(t3), v(t1)))
    p.I("v_xor_b32 %s, 32, %s" % (v(vQB + 1), v(vQB)))
    p.I("s_waitcnt lgkmcnt(0)")
    for d in (sG, sU):
        p.I("s_sub_u32 %s, %s, 4096" % (s(d), s(d)))
        p.I("s_subb_u32 %s, %s, 0" % (s(d + 1), s(d + 1)))
        srd_fin(p, d, 448 * 3584 + 4096)
    p.I("s_min_u32 %s, %s, 13" % (s(sT), s(sSl)))
    p.I("s_lshl_b32 %s, %s, 8" % (s(sOff), s(sT)))
    pf = [dmaW(t_) for t_ in range(LA)]
    yield p, pf
    p = fix_m0(Code(list(p) + [x if isinstance(x, Ins) else Ins(x) for g in pf for x in g]))

    c = Code()
    c.I("s_cmp_ge_u32 %s, 14" % s(sSl))
    c.I("s_cbranch_scc1 L_end")
    c.I("s_lshl_b32 %s, %s, 2" % (s(sT), s(sRb)))
    c.I("s_add_u32 %s, %s, %s" % (s(sT), s(sT), s(sW)))
    c.I("s_mul_i32 %s, %s, %d" % (s(sXo), s(sT), 28 * 1024))
    c.I("s_add_u32 %s, %s, 0x%x" % (s(sXo), s(sXo), WS_HN))
    c.I("s_add_u32 %s, %s, %d" % (s(sXo1), s(sXo), 14 * 1024))
    c.I("s_mul_i32 %s, %s, %d" % (s(sD), s(sT), 2 * MID_TS))
    c.I("s_lshl_b32 %s, %s, 12" % (s(sT), s(sSl)))
    c.I("s_add_u32 %s, %s, %s" % (s(sD), s(sD), s(sT)))
    c.I("s_add_u32 %s, %s, 0x%x" % (s(sD), s(sD), WS_MID))
    sWd, sTo = 56, 60
    c.I("s_load_dwordx2 %s, s[0:1], 72" % s(sWd, 2))
    c.I("s_lshr_b32 %s, %s, 3" % (s(sTo), s(sRb)))
    c.I("s_mul_i32 %s, %s, 14" % (s(sTo), s(sTo)))
    c.I("s_add_u32 %s, %s, %s" % (s(sTo), s(sTo), s(sSl)))
    c.I("s_lshl_b32 %s, %s, 2" % (s(sTo), s(sTo)))
    c.I("s_add_u32 %s, %s, %s" % (s(sTo), s(sTo), s(sW)))
    c.I("s_mul_i32 %s, %s, %d" % (s(sTo), s(sTo), 14 * 1024))
    c.I("s_waitcnt lgkmcnt(0)")
    srd_fin(c, sWd, 1792 * 896)

    if nxt:
        put(c, nxt[0])
    if fused_prev:
        c.I("s_lshl_b32 %s, %s, 7" % (s(sFl), s(sRb)))
        c.I("s_add_u32 %s, %s, 0x%x" % (s(sFl), s(sFl), WS_FLAG + FG_HN * 128))
        c.I("v_min_u32 %s, 15, %s" % (v(vT + 3), L))
        c.I("v_lshlrev_b32 %s, 2, %s" % (v(vT + 3), v(vT + 3)))
        c.I("@first")
        wg_wait(c, "L4_hn", vT + 4, vT + 3, sFl, sCnt)
        put(c, acquire("L4_a"))
    ST.mark(c, 'g0')
    for t_ in range(4):
        put(c, xload(t_))
    def tw(t):
        if not opt.get("wdl2", True):
            return []
        out = [Ins("buffer_load_dwordx4 %s, %s, %s, %s offen offset:%d" % (v(vP, 4), v(vST), s(sWd, 4), s(sTo), (t & 3) * 1024), {"nodst": True})]
        if t & 3 == 3:
            out.append("s_add_u32 %s, %s, 0x1000" % (s(sTo), s(sTo)))
        return out
    sx = {t_: tw(t_) + (xload(t_ + 4) if t_ + 4 < 14 else []) + (dmaW(t_ + LA) if t_ + LA < 14 else []) for t_ in range(14)}
    NPF = opt.get("npf", 2)
    if nxt:
        sx[12] = sx[12] + [x for g in nxt[1][:NPF // 2] for x in g]
        sx[13] = sx[13] + [x for g in nxt[1][NPF // 2:NPF] for x in g]
    c.I("s_add_u32 %s, %s, %d" % (s(sD1), s(sD), MID_TS))

    def late(pair):
        if pair < 4:
            return []
        ks = pair - 4
        out = []
        for qt in range(2):
            pk = vP + 4 + 4 * qt
            for k in range(4):
                src = vAcc + 8 * (2 * ks + (k >> 1)) + 4 * qt + 2 * (k & 1)
                out.append("v_pk_mul_f32 %s, %s, %s" % (v(src, 2), v(src, 2), v(src + 64, 2)))
            for k in range(4):
                src = vAcc + 8 * (2 * ks + (k >> 1)) + 4 * qt + 2 * (k & 1)
                out.append("v_cvt_pk_bf16_f32 %s, %s, %s" % (v(pk + k), v(src), v(src + 1)))
            out.append("buffer_store_dwordx4 %s, %s, %s, %s offen offset:%d sc1" % (v(pk, 4), v(vST), s(sWS, 4), s(sD1 if qt else sD), ks * 1024))
            out[-1] = Ins(out[-1], {"tag": "MID"})
        return out
    q = Code()
    first = proj.proj_main(q, lambda qt, t: a(aX + 8 * t + 4 * qt, 4), vQB, vQA, lambda nt, qt: v(vAcc + 8 * nt + 4 * qt, 4),
                           lambda k, n: a(aF + k, n), 16, slot_of, {}, rstride=8192, step_extra=sx, tagname="G", late=late, marks=lambda c, b: ST.mark(c, 'gb%d' % b),
                           first_need=not fused_prev, first_reads=not fused_prev)
    if fused_prev:
        k = [x.t for x in c].index("@first")
        c[k:k + 1] = [x if isinstance(x, Ins) else Ins(x) for x in first]
    c += q
    ST.mark(c, 'g1')
    if fused_next:
        c.I("s_lshl_b32 %s, %s, 7" % (s(sFl), s(sRb)))
        c.I("s_lshl_b32 %s, %s, 2" % (s(sT), s(sSl)))
        c.I("s_add_u32 %s, %s, %s" % (s(sFl), s(sFl), s(sT)))
        c.I("s_add_u32 %s, %s, 0x%x" % (s(sFl), s(sFl), WS_FLAG + FG_MID * 128))
        c.I("v_mov_b32 %s, 1" % v(vT))
        c.I("v_mov_b32 %s, 0" % v(vT + 1))
        NP2 = opt.get("np2", 5)
        if nxt:
            put(c, [x for g in nxt[1][NPF:NP2] for x in g])
        c.append(Ins("@need", {"need": ["MID"]}))
        c.I("s_barrier")
        put(c, signal("L4_s", vT, vT + 1, sFl))
        if nxt:
            put(c, [x for g in nxt[1][NP2:] for x in g])
    ST.mark(c, 'g2')
    w = autowait(Code(p + fix_m0(c)))
    yield p, Code(w[len(p):])
```

```python
from asmlib import *
from layout import *
from common import *
from ph3 import rbdecode
from proj import put as put_

M16 = "v_mfma_f32_16x16x32_bf16 %s, %s, %s, %s"


def gen(ST, opt, fused_prev):
    D = opt.get("D", 8)
    NK = 56
    NS = NK // 4
    TS = MID_TS
    vAct = 4
    V = Alloc(148, 216)
    vOW = V(4)
    vLn, vL = 2, 1
    vRW = V(2)
    vT = V(8)
    vAo = V(4)
    vRo, vRd, vWr = V(2), V(), V()
    vRes = V(8, 4)
    vW = [V(16, 4), V(16, 4)]
    vSum = 132
    vIn = 216
    sWt, sR = 12, 16
    sWs = sWS
    sRb, sCt, sOffW, sOffA, sLw, sFl, sCnt, sBig = range(32, 40)

    c = Code()
    c.I("s_load_dwordx2 %s, s[0:1], 72" % s(sWt, 2))
    c.I("s_load_dwordx2 %s, s[0:1], 80" % s(sR, 2))
    if not fused_prev:
        c.I("v_and_b32 %s, 63, v0" % v(vL))
        c.I("v_lshlrev_b32 %s, 4, %s" % (v(vLn), v(vL)))
    L = v(vL)
    t0, t1, t2, t3 = vT, vT + 1, vT + 2, vT + 3
    rbdecode(c, sBig, sCt)
    if not fused_prev:
        c.I("s_cmp_ge_u32 %s, 14" % s(sCt))
        c.I("s_cbranch_scc1 L_end")
    c.I("s_cmp_ge_u32 %s, 7" % s(sCt))
    c.I("s_cselect_b32 %s, 1, 0" % s(sT))
    c.I("s_cselect_b32 %s, 7, 0" % s(sT2))
    c.I("s_sub_u32 %s, %s, %s" % (s(sCt), s(sCt), s(sT2)))
    c.I("s_lshl_b32 %s, %s, 1" % (s(sRb), s(sBig)))
    c.I("s_add_u32 %s, %s, %s" % (s(sRb), s(sRb), s(sT)))
    for q in range(4):
        c.I("v_add_u32 %s, 0x%x, %s" % (v(vAo + q), q * TS, v(vLn)))
    c.I("v_lshrrev_b32 %s, 5, %s" % (v(t0), L))
    c.I("v_bfe_u32 %s, %s, 2, 2" % (v(t1), L))
    c.I("v_lshl_add_u32 %s, %s, 2, %s" % (v(t1), v(t0), v(t1)))
    c.I("v_mul_u32_u24 %s, 896, %s" % (v(t1), v(t1)))
    c.I("v_bfe_u32 %s, %s, 4, 1" % (v(t2), L))
    c.I("v_lshl_add_u32 %s, %s, 6, %s" % (v(t1), v(t2), v(t1)))
    c.I("v_lshlrev_b32 %s, 1, %s" % (v(t0), v(t0)))
    c.I("v_and_b32 %s, 3, %s" % (v(t3), L))
    c.I("v_xor_b32 %s, %s, %s" % (v(t0), v(t0), v(t3)))
    c.I("v_lshl_add_u32 %s, %s, 4, %s" % (v(vOW), v(t0), v(t1)))
    for j in range(1, 4):
        c.I("v_add_u32 %s, %d, %s" % (v(vOW + j), j * (8 * 896 - 1024), v(vOW)))
    c.I("v_lshrrev_b32 %s, 4, %s" % (v(t0), L))
    c.I("v_lshlrev_b32 %s, 9, %s" % (v(t0), v(t0)))
    c.I("v_bfe_u32 %s, %s, 2, 2" % (v(t1), L))
    c.I("v_lshl_add_u32 %s, %s, 6, %s" % (v(t0), v(t1), v(t0)))
    c.I("v_lshl_add_u32 %s, %s, 5, %s" % (v(t0), v(t2), v(t0)))
    c.I("v_lshl_add_u32 %s, %s, 3, %s" % (v(t0), v(t3), v(t0)))
    c.I("s_lshr_b32 %s, %s, 1" % (s(sLw), s(sW)))
    c.I("s_add_u32 %s, %s, %s" % (s(sLw), s(sLw), s(sW)))
    c.I("s_lshl_b32 %s, %s, 15" % (s(sLw), s(sLw)))
    c.I("v_add_u32 %s, %s, %s" % (v(vRW), s(sLw), v(t0)))
    c.I("v_xor_b32 %s, 32, %s" % (v(vRW + 1), v(vRW)))
    c.I("v_and_b32 %s, 7, v0" % v(t0))
    c.I("v_lshrrev_b32 %s, 3, v0" % v(t1))
    c.I("s_lshl_b32 %s, %s, 6" % (s(sT), s(sRb)))
    c.I("v_add_u32 %s, %s, %s" % (v(t2), s(sT), v(t1)))
    c.I("v_mul_u32_u24 %s, 896, %s" % (v(t3), v(t2)))
    c.I("v_lshl_add_u32 %s, %s, 4, %s" % (v(t3), v(t0), v(t3)))
    c.I("s_lshl_b32 %s, %s, 7" % (s(sT), s(sCt)))
    c.I("v_add_u32 %s, %s, %s" % (v(vRo), s(sT), v(t3)))
    c.I("v_add_u32 %s, %d, %s" % (v(vRo + 1), 32 * 896, v(vRo)))
    c.I("v_and_b32 %s, 15, %s" % (v(vT + 4), v(t1)))
    c.I("v_lshrrev_b32 %s, 1, %s" % (v(t3), v(t0)))
    c.I("v_mul_u32_u24 %s, 4416, %s" % (v(t3), v(t3)))
    c.I("v_lshl_add_u32 %s, %s, 4, %s" % (v(t3), v(vT + 4), v(t3)))
    c.I("v_and_b32 %s, 1, %s" % (v(t0), v(t0)))
    c.I("v_mul_u32_u24 %s, 544, %s" % (v(t0), v(t0)))
    c.I("v_lshrrev_b32 %s, 4, %s" % (v(t1), v(t1)))
    c.I("v_mul_u32_u24 %s, 1088, %s" % (v(t1), v(t1)))
    c.I("v_add3_u32 %s, %s, %s, %s" % (v(vRd), v(t3), v(t0), v(t1)))
    c.I("v_lshrrev_b32 %s, 4, %s" % (v(t0), L))
    c.I("v_mul_u32_u24 %s, 272, %s" % (v(t0), v(t0)))
    c.I("v_and_b32 %s, 15, %s" % (v(t1), L))
    c.I("v_lshl_add_u32 %s, %s, 4, %s" % (v(t0), v(t1), v(t0)))
    c.I("s_mul_i32 %s, %s, 17664" % (s(sT), s(sW)))
    c.I("v_add_u32 %s, %s, %s" % (v(vWr), s(sT), v(t0)))
    c.I("s_waitcnt lgkmcnt(0)")
    srd_fin(c, sWt, NK * 32 * 896)
    srd_fin(c, sR, 2048 * 896)
    c.I("s_mul_i32 %s, %s, %d" % (s(sOffW), s(sW), NS * 32 * 896))
    c.I("s_lshl_b32 %s, %s, 7" % (s(sT), s(sCt)))
    c.I("s_add_u32 %s, %s, %s" % (s(sOffW), s(sOffW), s(sT)))
    c.I("s_mul_i32 %s, %s, %d" % (s(sOffA), s(sRb), 4 * TS))
    c.I("s_mul_i32 %s, %s, %d" % (s(sT), s(sW), NS * 1024))
    c.I("s_add_u32 %s, %s, %s" % (s(sOffA), s(sOffA), s(sT)))
    c.I("s_add_u32 %s, %s, 0x%x" % (s(sOffA), s(sOffA), WS_MID))

    def issueW(st):
        sl = st % D
        return ["s_add_u32 m0, %s, 0x%x" % (s(sLw), sl * 4096)] + \
            [Ins("buffer_load_dwordx4 %s, %s, %s offen offset:%d lds" % (v(vOW + j), s(sWt, 4), s(sOffW), j * 1024),
                 {"w": (sl, ("D", st), 4), "alias": [("S", k) for k in (0, 1, 2, 3, 6, 7, 8, 9)]}) for j in range(4)] + \
            ["s_add_u32 %s, %s, %d" % (s(sOffW), s(sOffW), 32 * 896)]

    def issueA(st):
        sl = st % D
        out = ["buffer_load_dwordx4 %s, %s, %s, %s offen offset:%d" % (v(vAct + 16 * sl + 4 * j, 4), v(vAo + j), s(sWs, 4), s(sOffA), (st & 3) * 1024) for j in range(4)]
        if st & 3 == 3:
            out.append("s_add_u32 %s, %s, 0x1000" % (s(sOffA), s(sOffA)))
        return out

    def rd(st):
        sl = st % D
        return [Ins("ds_read_b64_tr_b16 %s, %s offset:%d" % (v(vW[st & 1] + 4 * nt + 2 * r, 2), v(vRW + (nt & 1)), sl * 4096 + r * 2048 + (nt >> 1) * 256),
                    {"r": (sl, ("D", st)), "private": True}) for nt in range(4) for r in range(2)]

    def put(lst):
        for x in lst:
            c.append(x if isinstance(x, Ins) else Ins(x))

    early = c
    pf = [issueW(st) for st in range(D)]
    yield early, pf
    hist = fix_m0(Code(x if isinstance(x, Ins) else Ins(x) for g in pf for x in g))
    c = Code()
    if fused_prev:
        c.I("s_lshl_b32 %s, %s, 7" % (s(sFl), s(sBig)))
        c.I("s_add_u32 %s, %s, 0x%x" % (s(sFl), s(sFl), WS_FLAG + FG_MID * 128))
        c.I("v_min_u32 %s, 13, %s" % (v(vT + 3), L))
        c.I("v_lshlrev_b32 %s, 2, %s" % (v(vT + 3), v(vT + 3)))
        wg_wait(c, "L5_m", vT + 4, vT + 3, sFl, sCnt)
        put(acquire("L5_a"))
    ST.mark(c, 'd0')
    for st in range(D - 1):
        put(issueA(st))
    c.append(Ins("@need", {"need": [("D", 0)]}))
    put(rd(0))
    for st in range(NS):
        sl = st % D
        mains = []
        for nt in range(4):
            for qt in range(4):
                d = a((nt * 4 + qt) * 4, 4)
                mains.append(M16 % (d, v(vW[st & 1] + 4 * nt, 4), v(vAct + 16 * sl + 4 * qt, 4), d if st else "0"))
        gaps = {i: [] for i in range(16)}
        if st + D - 1 < NS:
            nx = issueA(st + D - 1) + (issueW(st + D - 1) if st else [])
            for k, x in enumerate(nx):
                gaps[(k * 3) // 2 if len(nx) < 8 else k].append(x)
        if st == NS - 3:
            gaps[0].append("s_mov_b32 %s, 0x%x" % (s(sT), WS_H))
            for i in range(2):
                gaps[1 + i].append("buffer_load_dwordx4 %s, %s, %s, %s offen" % (v(vRes + 4 * i, 4), v(vRo + i), s(sWs, 4), s(sT)))
        if st + 1 < NS:
            gaps[9].append(Ins("@need", {"need": [("D", st + 1)]}))
            for k, x in enumerate(rd(st + 1)):
                gaps[9 + k // 2].append(x)
        weave(c, mains, gaps)
    ST.mark(c, 'd1')
    c.I("s_barrier")
    c.I("s_nop 4")
    for nt in range(4):
        for qt in range(4):
            c.I("ds_write_b128 %s, %s offset:%d" % (v(vWr), a((nt * 4 + qt) * 4, 4), nt * 4416 + qt * 1088))
    c.I("s_waitcnt lgkmcnt(0)")
    c.I("s_barrier")
    for i in range(2):
        for w in range(4):
            for e in range(2):
                c.I("ds_read_b128 %s, %s offset:%d" % (v(vIn + 8 * w + 4 * e, 4), v(vRd), w * 17664 + i * 2 * 1088 + e * 272))
        sm = vSum + 8 * i
        for k in range(8):
            c.I("v_add_f32 %s, %s, %s" % (v(sm + k), v(vIn + k), v(vIn + 8 + k)))
        for k in range(8):
            c.I("v_add_f32 %s, %s, %s" % (v(vIn + 16 + k), v(vIn + 16 + k), v(vIn + 24 + k)))
        for k in range(8):
            c.I("v_add_f32 %s, %s, %s" % (v(sm + k), v(sm + k), v(vIn + 16 + k)))
        for k in range(4):
            c.I("v_cvt_pk_bf16_f32 %s, %s, %s" % (v(vT), v(sm + 2 * k), v(sm + 2 * k + 1)))
            c.I("v_lshlrev_b32 %s, 16, %s" % (v(vT + 1), v(vT)))
            c.I("v_and_b32 %s, 0xffff0000, %s" % (v(vT + 2), v(vT)))
            c.I("v_lshlrev_b32 %s, 16, %s" % (v(vT + 3), v(vRes + 4 * i + k)))
            c.I("v_and_b32 %s, 0xffff0000, %s" % (v(vT + 4), v(vRes + 4 * i + k)))
            c.I("v_add_f32 %s, %s, %s" % (v(vT + 1), v(vT + 1), v(vT + 3)))
            c.I("v_add_f32 %s, %s, %s" % (v(vT + 2), v(vT + 2), v(vT + 4)))
            c.I("v_cvt_pk_bf16_f32 %s, %s, %s" % (v(sm + k), v(vT + 1), v(vT + 2)))
        c.I("buffer_store_dwordx4 %s, %s, %s, 0 offen" % (v(sm, 4), v(vRo + i), s(sR, 4)))
    ST.mark(c, 'd2')
    w = autowait(Code(hist + fix_m0(c)))
    yield Code(early + hist), Code(w[len(hist):])
```

```python
import sys
from asmlib import *
from common import *
import gen as G
import ph1, ph2, ph3, ph4, ph5

MARKS = {"front": "start kv0 kv1 q1 qc qok a1 a2 fin op e0 e1",
         "tail": "start r0 r1 r2 g0 g1 g2 d0 d1 d2 e0 e1",
         "all": "start kv0 kv1 q1 a1 fin op r0 r2 g2 d2 e1"}


ALIGN = [0]


def wrap(name, parts, ST, region, init):
    c = Code()
    c.L("L_begin")
    pre = preamble(256, "L_end", None if init else ph1.first_loads())
    c += pre
    if init:
        ST.init(c)
        ST.mark(c, 'start')
    for p in parts:
        c += p
    ST.mark(c, 'e0')
    if ST.on:
        c.I("s_waitcnt vmcnt(0)")
    ST.mark(c, 'e1')
    ST.dump(c, sW, 0, region)
    c.L("L_end")
    c.I("s_endpgm")
    c += OOL
    c.L("L_last")
    c.I("s_endpgm")
    del OOL[:]
    c = Code(Ins(x.t.replace("L_end", "L_end_" + name[:5]), x.ann) for x in c)
    if ALIGN[0]:
        c = align8(c)
    return dict(name=name, code=c, vgpr=512, accum=256, sgpr=102, grid=256, block=256, lds=163840)


def build(opt):
    stamp = opt.get("stamp", False)
    fuse = opt.get("fuse", 0)
    ALIGN[0] = opt.get("align", 0)
    ONE_DS[0] = opt.get('oneds', 1)
    CT[0] = opt.get('ct', 1)
    POLL1[0] = opt.get('poll1', 1)
    SLEEP[0] = opt.get("sleep", 2)
    mk = lambda k: Stamps(stamp, opt.get("marks", MARKS[k]).split())
    if fuse == 2:
        SF = STl = mk("all")
    else:
        SF, STl = mk("front"), mk("tail")
    pre = preamble(256, "L_end", ph1.first_loads())
    g5 = ph5.gen(STl, opt, fuse >= 1)
    early5 = next(g5)
    g4 = ph4.gen(STl, opt, fuse >= 1, fuse >= 1, early5 if fuse >= 1 else None)
    early4 = next(g4)
    g2 = ph2.gen(SF, opt, fuse == 2, early4 if fuse == 2 else None)
    c1, tr1 = ph1.gen(SF, opt, next(g2))
    vm = [x for x in c1 if x.t.startswith("buffer_")]
    last = lambda slab: max(k for k, x in enumerate(vm) if (x.ann or {}).get("w", (0, 0))[1] == slab)
    opt["nk0"] = len(vm) - 1 - last(("K", 0))
    opt["nv0"] = len(vm) - 1 - max(last(("V", 0)), last(("K", 1)))
    c2, tr2 = next(g2)
    for i, t in enumerate(tr1):
        assert opt.get('nocheck') or not check(list(pre) + t + (tr2[i % 2] if i < 2 else []), "ph1.%d" % i)
    for i, t in enumerate(tr2):
        assert opt.get('nocheck') or not check(list(pre) + tr1[0] + t, "ph2.%d" % i)
    ks = []
    if fuse < 2:
        ks.append(wrap("front_kernel", [c1, c2], SF, 0, False))
    if fuse < 0:
        return ks
    c3, tr3 = ph3.gen(STl, opt, fuse == 2, fuse >= 1)
    if fuse == 0:
        ks.append(wrap("reduce_kernel", [c3], STl, 1, True))
    p4, c4 = next(g4)
    if fuse == 0:
        ks.append(wrap("gateup_kernel", [p4, c4], STl, 2, True))
    p5, c5 = next(g5)
    if fuse == 0:
        ks.append(wrap("down_kernel", [p5, c5], STl, 3, True))
        for t, n in ((tr3[0], "ph3"), (tr3[1], "ph3b"), (list(p4 + c4), "ph4"), (list(p5 + c5), "ph5")):
            assert not check(list(pre) + t, n)
    else:
        pass
    if fuse == 2:
        assert opt.get('nocheck') or not check(list(pre) + tr1[0] + tr2[0] + tr3[0] + list(c4) + list(c5), "all")
        ks.append(wrap("sequential_preLN__compressed_kv_cla__glu_gated_bilinear__prompt_kernel" if opt.get("final") else "fused_kernel", [c1, c2, c3, c4, c5], SF, 0, False))
    return ks


if __name__ == "__main__":
    opt = {m.split("=")[0]: eval(m.split("=", 1)[1]) for m in sys.argv[2:]}
    open(sys.argv[1], "w").write(G.build(build(opt)))
    print("wrote", sys.argv[1])
```

```python
import re


class Ins:
    __slots__ = ("t", "ann")

    def __init__(self, t, ann=None):
        self.t = t
        self.ann = ann

    def __repr__(self):
        return self.t


def R(kind, base, n=1):
    return "%s%d" % (kind, base) if n == 1 else "%s[%d:%d]" % (kind, base, base + n - 1)


def v(b, n=1):
    return R("v", b, n)


def a(b, n=1):
    return R("a", b, n)


def s(b, n=1):
    return R("s", b, n)


class Alloc:
    def __init__(self, start, limit):
        self.p = start
        self.limit = limit
        self.names = {}

    def __call__(self, n=1, align=1, name=None):
        self.p = (self.p + align - 1) // align * align
        b = self.p
        self.p += n
        assert self.p <= self.limit, "out of registers"
        if name:
            self.names[name] = (b, n)
        return b


class Code(list):
    def I(self, t, ann=None):
        self.append(Ins(t, ann))
        return self

    def L(self, name):
        self.append(Ins(name + ":"))

    def C(self, text):
        self.append(Ins("; " + text))

    def text(self):
        out = []
        for i in self:
            if i.t.endswith(":") or i.t.startswith(";") or i.t.startswith("."):
                out.append(i.t)
            else:
                out.append(" " + i.t)
        return "\n".join(out)


def weave(code, mains, gaps, pre=None):
    for i, m in enumerate(mains):
        if pre and i in pre:
            for g in pre[i]:
                code.append(g if isinstance(g, Ins) else Ins(g))
        code.append(m if isinstance(m, Ins) else Ins(m))
        for g in gaps.get(i, []):
            code.append(g if isinstance(g, Ins) else Ins(g))


def mfma(d, A, B, c):
    return "v_mfma_f32_32x32x16_bf16 %s, %s, %s, %s" % (d, A, B, c)


_REG = re.compile(r"^(-|abs\(|\|)?([vas])(\d+)\)?\|?$|^(-)?([vas])\[(\d+):(\d+)\]$")
_TRANS = ("v_exp_f32", "v_log_f32", "v_rcp_f32", "v_rsq_f32", "v_sqrt_f32", "v_sin_f32", "v_cos_f32",
          "v_rcp_iflag_f32")


def regs_of(tok):
    tok = tok.strip()
    if tok in ("vcc",):
        return [("s", "vcc")]
    if tok in ("vcc_lo", "vcc_hi"):
        return [("s", "vcc")]
    if tok == "exec":
        return [("s", "exec")]
    if tok == "m0":
        return [("s", "m0")]
    m = _REG.match(tok)
    if not m:
        return []
    if m.group(2):
        return [(m.group(2), int(m.group(3)))]
    return [(m.group(5), i) for i in range(int(m.group(6)), int(m.group(7)) + 1)]


def split_ops(rest):
    ops, depth, cur = [], 0, ""
    for ch in rest:
        if ch in "[(":
            depth += 1
        if ch in "])":
            depth -= 1
        if ch == "," and depth == 0:
            ops.append(cur.strip())
            cur = ""
        else:
            cur += ch
    if cur.strip():
        ops.append(cur.strip())
    mods = []
    if ops:
        parts = ops[-1].split()
        ops[-1] = parts[0]
        mods = parts[1:]
    return ops, mods


class P:
    pass


def parse(t):
    p = P()
    t = t.split(";")[0].strip()
    sp = t.split(None, 1)
    p.op = sp[0]
    for suf in ("_e32", "_e64"):
        if p.op.endswith(suf):
            p.op = p.op[: -len(suf)]
    rest = sp[1] if len(sp) > 1 else ""
    p.ops, p.mods = split_ops(rest) if p.op not in ("s_waitcnt",) else ([], rest.split())
    op = p.op
    o = p.ops
    rg = lambda k: regs_of(o[k]) if k < len(o) else []
    p.d, p.s = [], []
    p.cls = "other"
    p.ab, p.c = [], []
    if op.startswith("v_mfma"):
        p.cls = "mfma"
        p.d = rg(0)
        p.ab = rg(1) + rg(2)
        p.c = rg(3)
        p.s = p.ab + p.c
        p.passes = 8 if "32x32" in op else 4
    elif op.startswith("ds_read") or op.startswith("ds_bpermute") or op.startswith("ds_swizzle"):
        p.cls = "ds"
        p.d = rg(0)
        p.s = sum((rg(k) for k in range(1, len(o))), [])
    elif op.startswith("ds_write"):
        p.cls = "ds"
        p.s = sum((rg(k) for k in range(len(o))), [])
    elif op.startswith("buffer_load") or op.startswith("global_load"):
        p.cls = "vmem"
        if "lds" in p.mods or "_lds_" in op:
            p.s = sum((rg(k) for k in range(len(o))), []) + [("s", "m0")]
            p.dma = True
        else:
            p.d = rg(0)
            p.s = sum((rg(k) for k in range(1, len(o))), [])
    elif op.startswith("buffer_store") or op.startswith("global_store"):
        p.cls = "vmem"
        p.s = sum((rg(k) for k in range(len(o))), [])
        p.store = rg(0) if op.startswith("buffer") else rg(1)
        p.wide = "x3" in op or "x4" in op
    elif op.startswith("buffer_atomic") or op.startswith("global_atomic"):
        p.cls = "vmem"
        p.s = sum((rg(k) for k in range(len(o))), [])
        if "sc0" in p.mods:
            p.d = rg(0)
    elif op in ("buffer_wbl2", "buffer_inv"):
        p.cls = "vmem"
    elif op.startswith("s_load") or op in ("s_memtime", "s_memrealtime"):
        p.cls = "smem"
        p.d = rg(0)
        p.s = rg(1) + rg(2)
    elif op.startswith("v_"):
        p.cls = "valu"
        p.d = rg(0)
        p.s = sum((rg(k) for k in range(1, len(o))), [])
        if op.startswith("v_cmpx"):
            p.d = p.d + [("s", "exec")]
        if op.startswith(("v_fmac", "v_dot2c", "v_mac", "v_pk_fmac")):
            p.s += p.d
        if op.startswith("v_permlane") and "swap" in op:
            p.d = rg(0) + rg(1)
            p.s = rg(0) + rg(1)
        if op.startswith(("v_add_co", "v_sub_co", "v_addc_co", "v_subb_co", "v_div_scale")):
            p.d = rg(0) + rg(1)
            p.s = sum((rg(k) for k in range(2, len(o))), [])
        if op.startswith("v_writelane") or "dpp" in op or "sdwa" in op:
            p.s += [r for r in p.d if r[0] == "v"]
    elif op.startswith("s_"):
        p.cls = "salu"
        if op.startswith(("s_cmp", "s_cbranch", "s_branch", "s_waitcnt", "s_barrier", "s_nop", "s_setprio",
                          "s_endpgm", "s_sleep", "s_bitcmp")):
            p.s = sum((rg(k) for k in range(len(o))), [])
            if op in ("s_cbranch_vccz", "s_cbranch_vccnz"):
                p.s = [("s", "vcc")]
        else:
            p.d = rg(0)
            p.s = sum((rg(k) for k in range(1, len(o))), [])
            if "saveexec" in op:
                p.d += [("s", "exec")]
                p.s += [("s", "exec")]
            if op.startswith(("s_addk", "s_mulk", "s_cmov")):
                p.s += p.d
    return p


def check(trace, name="", verbose=True):
    errs = []
    ws = 0
    last = {}
    vmq, lgq = [], []
    smem_pending = []
    pend = {}
    slot_owner = {}
    slab_landed_bar = {}
    slab_parts_out = {}
    slab_issued, slab_nparts = {}, {}
    slab_reads_out = {}
    slab_read_since_bar = set()

    def err(i, msg):
        errs.append("%s[%d] %s :: %s" % (name, i, trace[i].t, msg))

    def need(i, key, n, msg):
        if key in last and ws - last[key] - 1 < n:
            err(i, "%s: %d wait states, need %d" % (msg, ws - last[key] - 1, n))

    for i, ins in enumerate(trace):
        t = ins.t
        if t.endswith(":") or t.startswith(";") or t.startswith("."):
            continue
        p = parse(t)
        if (ins.ann or {}).get("nodst"):
            p.d = []
        for r in p.s + p.d:
            if r in pend:
                err(i, "touches %s%s with load pending (%s)" % (r[0], r[1], pend[r]))
        isv = p.cls == "valu"
        if p.cls == "mfma":
            for r in p.s:
                need(i, ("valu_w", r), 2, "VALU write -> MFMA read %s%s" % r)
            for r in p.ab:
                if ("mfma_w", r) in last:
                    need(i, ("mfma_w", r), last[("mfma_p", r)] + 4, "MFMA D -> MFMA A/B %s%s" % r)
            if p.c:
                for r in p.c:
                    if ("mfma_w", r) in last and last.get(("mfma_dset", r)) != tuple(p.c):
                        need(i, ("mfma_w", r), last[("mfma_p", r)] + 2, "MFMA D -> overlapping C %s%s" % r)
            if tuple(p.d) != tuple(p.c):
                for r in p.d:
                    if ("mfma_w", r) in last and last.get(("mfma_dset", r)) != tuple(p.d):
                        need(i, ("mfma_w", r), last[("mfma_p", r)] + 2, "MFMA D -> MFMA D WAW %s%s" % r)
            need(i, ("valu_w", ("s", "exec")), 4, "VALU exec write -> MFMA")
        if isv or p.cls in ("vmem", "ds"):
            for r in p.s + p.d:
                if ("mfma_w", r) in last:
                    need(i, ("mfma_w", r), last[("mfma_p", r)] + 4, "MFMA D -> VALU/mem %s%s" % r)
        if isv:
            for r in p.d:
                if ("mfma_c", r) in last:
                    need(i, ("mfma_c", r), last[("mfma_cp", r)] - 1, "MFMA C read -> VALU write %s%s" % r)
                need(i, ("store_d", r), 2, "wide store data -> VALU overwrite %s%s" % r)
            if p.op not in _TRANS:
                for r in p.s:
                    need(i, ("trans_w", r), 1, "trans -> VALU %s%s" % r)
            for r in p.s:
                if r[0] == "s":
                    n = 4 if p.op.startswith(("v_readlane", "v_writelane")) else 2
                    if p.op == "v_div_fmas_f32":
                        n = 4
                    need(i, ("valu_w", r), n, "VALU sgpr write -> VALU read %s" % (r[1],))
            if p.op.startswith("v_cndmask") and len(p.ops) == 4:
                pass
            if p.op.startswith(("v_readlane", "v_readfirstlane")):
                for r in p.s:
                    if r[0] == "v":
                        need(i, ("valu_w", r), 1, "VALU write -> readlane")
                need(i, ("valu_w", ("s", "exec")), 4, "exec write -> readlane")
            if p.op.startswith("v_permlane") or "dpp" in p.op:
                for r in p.s:
                    need(i, ("valu_w", r), 2, "VALU write -> permlane/dpp %s%s" % r)
        if p.cls in ("ds", "vmem") and p.d:
            for r in p.d:
                if ("mfma_c", r) in last:
                    need(i, ("mfma_c", r), last[("mfma_cp", r)] - 1, "MFMA C read -> load write")
                need(i, ("store_d", r), 1, "wide store data -> overwrite")
        if p.cls == "vmem":
            for r in p.s:
                if r[0] == "s":
                    need(i, ("valu_w", r), 5, "VALU sgpr write -> VMEM read")
            if getattr(p, "dma", False):
                need(i, ("salu_w", ("s", "m0")), 1, "m0 write -> LDS DMA")
        if p.cls == "salu":
            for r in p.s:
                if r == ("s", "vcc") and p.op.startswith("s_cbranch"):
                    need(i, ("valu_w", r), 0, "")
        ann = ins.ann or {}
        if "w" in ann:
            slot, slab = ann["w"][:2]
            slab_issued[slab] = slab_issued.get(slab, 0) + 1
            slab_nparts[slab] = ann["w"][2]
            old = slot_owner.get(slot)
            if old is not None and old != slab:
                if slab_reads_out.get(old, 0) > 0 or old in slab_read_since_bar:
                    err(i, "overwrites slot %s (slab %s) whose reads are not fenced by a barrier" % (slot, old))
                if slab_parts_out.get(old, 0) > 0:
                    err(i, "slot %s still has DMA of %s in flight" % (slot, old))
            slot_owner[slot] = slab
            slab_parts_out[slab] = slab_parts_out.get(slab, 0) + 1
            slab_landed_bar[slab] = False
        for slot in ann.get("alias", ()):
            old = slot_owner.get(slot)
            if old is not None:
                if slab_reads_out.get(old, 0) > 0 or old in slab_read_since_bar or slab_parts_out.get(old, 0) > 0:
                    err(i, "overwrites aliased slot %s (slab %s) still in use" % (slot, old))
                slot_owner[slot] = ("dead", slot)
        if "r" in ann:
            slot, slab = ann["r"]
            if slab is not None:
                if slot_owner.get(slot) != slab:
                    err(i, "reads slot %s expecting %s but owner is %s" % (slot, slab, slot_owner.get(slot)))
                elif slab_issued.get(slab) != slab_nparts.get(slab):
                    err(i, "reads slab %s with %s/%s parts issued" % (slab, slab_issued.get(slab), slab_nparts.get(slab)))
                elif not slab_landed_bar.get(slab) and not ann.get("private"):
                    err(i, "reads slab %s not landed+barrier" % (slab,))
                elif ann.get("private") and slab_parts_out.get(slab, 0) > 0:
                    err(i, "reads private slab %s with DMA in flight" % (slab,))
                slab_reads_out[slab] = slab_reads_out.get(slab, 0) + 1
                if not ann.get("private"):
                    slab_read_since_bar.add(slab)
        if p.cls == "mfma":
            for r in p.d:
                last[("mfma_w", r)] = ws
                last[("mfma_p", r)] = p.passes
                last[("mfma_dset", r)] = tuple(p.d)
            for r in p.c:
                last[("mfma_c", r)] = ws
                last[("mfma_cp", r)] = p.passes
        elif isv:
            for r in p.d:
                last[("valu_w", r)] = ws
                last.pop(("mfma_w", r), None)
                if p.op in _TRANS:
                    last[("trans_w", r)] = ws
                else:
                    last.pop(("trans_w", r), None)
        elif p.cls == "salu":
            for r in p.d:
                last[("salu_w", r)] = ws
                last.pop(("valu_w", r), None)
        if p.cls == "vmem":
            vmq.append((p.d, ann))
            for r in p.d:
                pend[r] = "vm@%d" % i
                last.pop(("mfma_w", r), None)
            if getattr(p, "store", None) and p.wide:
                for r in p.store:
                    last[("store_d", r)] = ws
            if len(vmq) > 63:
                err(i, "more than 63 vmem ops outstanding")
        elif p.cls == "ds":
            lgq.append((p.d, ann))
            for r in p.d:
                pend[r] = "ds@%d" % i
                last.pop(("mfma_w", r), None)
        elif p.cls == "smem":
            smem_pending.append(p.d)
            for r in p.d:
                pend[r] = "sm@%d" % i
        if p.op == "s_waitcnt":
            txt = " ".join(p.mods)
            m = re.search(r"vmcnt\((\d+)\)", txt)
            if m:
                n = int(m.group(1))
                while len(vmq) > n:
                    d, an = vmq.pop(0)
                    for r in d:
                        pend.pop(r, None)
                    if "w" in an:
                        slab_parts_out[an["w"][1]] -= 1
            m = re.search(r"lgkmcnt\((\d+)\)", txt)
            if m:
                n = int(m.group(1))
                if n > 15:
                    err(i, "lgkmcnt > 15")
                if smem_pending and n > 0:
                    err(i, "counted lgkmcnt with SMEM outstanding")
                if n == 0:
                    for d in smem_pending:
                        for r in d:
                            pend.pop(r, None)
                    smem_pending = []
                while len(lgq) > n:
                    d, an = lgq.pop(0)
                    for r in d:
                        pend.pop(r, None)
                    if "r" in an and an["r"][1] is not None:
                        slab_reads_out[an["r"][1]] -= 1
                    if "w" in an:
                        slab_parts_out[an["w"][1]] -= 1
        if p.op == "s_barrier":
            for slab, n in slab_parts_out.items():
                if n == 0:
                    slab_landed_bar[slab] = True
            slab_read_since_bar = set(sl for sl in slab_read_since_bar if slab_reads_out.get(sl, 0) > 0)
        if p.op == "s_nop":
            ws += int(p.ops[0], 0) + 1
        else:
            ws += 1
    if verbose:
        for e in errs[:40]:
            print("CHECK:", e)
        print("check %s: %d instrs, %d errors" % (name, len(trace), len(errs)))
    return errs


STAMP_OFF = 200 << 20


class Stamps:
    def __init__(self, on, names=None):
        self.on, self.sb, self.st, self.n = on, 76, 72, 12
        self.names = names

    def init(self, c):
        if not self.on:
            return
        if getattr(self, "dbg", False):
            for k in range(2 * self.n):
                c.I("s_mov_b32 %s, 0" % s(self.sb + k))
            c.I("s_mov_b32 %s, vcc_hi" % s(self.sb + self.n))
            return
        for k in range(2 * self.n):
            c.I("s_mov_b32 %s, 0" % s(self.sb + k))

    def mark(self, c, k):
        if not self.on:
            return
        if self.names is not None:
            if k not in self.names:
                return
            k = self.names.index(k)
        c.I("s_waitcnt lgkmcnt(0)")
        c.I("s_memtime s[100:101]")
        c.I("s_waitcnt lgkmcnt(0)")
        c.I("s_mov_b32 %s, s100" % s(self.sb + k))
        c.I("s_memrealtime s[100:101]")
        c.I("s_waitcnt lgkmcnt(0)")
        c.I("s_mov_b32 %s, s100" % s(self.sb + self.n + k))

    def dump_dbg(self, c):
        c.I("s_load_dwordx2 s[72:73], s[0:1], 88")
        c.I("s_waitcnt lgkmcnt(0)")
        c.I("s_and_b32 s73, s73, 0xffff")
        c.I("s_mov_b32 s74, 256")
        c.I("s_mov_b32 s75, 0x20000")
        c.I("s_cmp_lg_u32 s3, 0")
        c.I("s_cbranch_scc1 L_end")
        c.I("s_mov_b64 exec, 1")
        c.I("v_mov_b32 v7, 0")
        c.I("s_not_b32 s70, %s" % s(self.sb + self.n))
        c.I("v_mov_b32 v8, s70")
        for k in range(6):
            c.I("v_mov_b32 %s, %s" % (v(9 + k), s(self.sb + self.n + k)))
        for k in range(7):
            c.I("buffer_atomic_umax %s, v7, s[72:75], 0 offen offset:%d sc1" % (v(8 + k), 36 + 4 * k))

    def dump(self, c, sW, vt, region=0, wg="s2"):
        if not self.on:
            return
        if getattr(self, "dbg", False):
            return self.dump_dbg(c)
        q = 72
        c.I("s_load_dwordx2 s[72:73], s[0:1], 96")
        c.I("s_waitcnt lgkmcnt(0)")
        c.I("s_add_u32 %s, s72, 0x%x" % (s(q), STAMP_OFF + region * (1 << 17)))
        c.I("s_addc_u32 %s, s73, 0" % s(q + 1))
        c.I("s_and_b32 %s, %s, 0xffff" % (s(q + 1), s(q + 1)))
        c.I("s_mov_b32 %s, 0x20000" % s(q + 2))
        c.I("s_mov_b32 %s, 0x20000" % s(q + 3))
        c.I("s_lshl_b32 s70, %s, 2" % wg)
        c.I("s_add_u32 s70, s70, %s" % s(sW))
        c.I("s_lshl_b32 s70, s70, 7")
        c.I("v_mov_b32 v7, 0")
        for k in range(2 * self.n):
            c.I("v_mov_b32 %s, %s" % (v(8 + k), s(self.sb + k)))
        for k in range(self.n // 2):
            c.I("buffer_store_dwordx4 %s, v7, %s, s70 offen offset:%d" % (v(8 + 4 * k, 4), s(q, 4), 16 * k))


def cost_of(t):
    op = t.split()[0]
    if op.endswith(":"):
        return 0
    if op in _TRANS:
        return 8
    if op.startswith("buffer_load") and " lds" in t:
        return COST_DMA
    return 4


COST_DMA = 8
ONE_DS = [1]


def schedule(n, budget, streams, fixed=None, reserve=None):
    gaps = {i: [] for i in range(n)}
    load = [0] * n
    for g, cst in (reserve or {}).items():
        load[g] += cst
    if fixed:
        for g, lst in fixed.items():
            for x in lst:
                gaps[g].append(x)
                load[g] += cost_of(x.t if isinstance(x, Ins) else x)
    items = []
    for si, st in enumerate(streams):
        run = -1
        for k, (ins, ideal, lo, hi) in enumerate(st):
            run = max(run, ideal)
            items.append((run, si, k, ins, lo, hi))
    items.sort(key=lambda z: (z[0], z[1], z[2]))
    lastg = [0] * len(streams)
    over = 0
    for ideal, si, k, ins, lo, hi in items:
        cst = cost_of(ins.t if isinstance(ins, Ins) else ins)
        lo2 = max(lo, lastg[si])
        hi2 = max(min(hi, n - 1), lo2)
        cand = sorted(range(lo2, hi2 + 1), key=lambda g: (abs(g - ideal), g))
        best = None
        txt = ins.t if isinstance(ins, Ins) else ins
        isds = txt.startswith("ds_") and ONE_DS[0]
        for g in cand:
            if load[g] + cst <= budget and not (isds and any((y.t if isinstance(y, Ins) else y).startswith("ds_") for y in gaps[g])):
                best = g
                break
        if best is None:
            for g in cand:
                if load[g] + cst <= budget:
                    best = g
                    break
        if best is None:
            best = min(cand, key=lambda g: (load[g], abs(g - ideal)))
            over += load[best] + cst - max(budget, load[best])
        gaps[best].append(ins)
        load[best] += cst
        lastg[si] = best
    return gaps, load


def autowait(code, vm0=0, age=20):
    out = Code()
    vmq, lgq = [], []
    n = 0
    for ins in code:
        t = ins.t
        if t.endswith(":") or t.startswith(";") or t.startswith("."):
            out.append(ins)
            continue
        if t == "@need":
            idx = -1
            for k, e in enumerate(vmq):
                if e[1] in ins.ann["need"]:
                    idx = k
            extra = " lgkmcnt(0)" if ins.ann.get("lgkm0") else ""
            if idx >= 0:
                N = len(vmq) - 1 - idx
                assert N <= 63
                out.I("s_waitcnt vmcnt(%d)%s" % (N, extra))
                vmq = vmq[idx + 1:]
            elif extra:
                out.I("s_waitcnt lgkmcnt(0)")
            if extra:
                lgq = []
            continue
        p = parse(t)
        touch = set(p.s + ([] if (ins.ann or {}).get("nodst") else p.d))
        parts = []
        for q, nm, cap in ((vmq, "vmcnt", 63), (lgq, "lgkmcnt", 15)):
            idx = -1
            for k, e in enumerate(q):
                if e[0] & touch:
                    idx = k
            if idx >= 0:
                if nm == "lgkmcnt":
                    while idx + 1 < len(q) and n - q[idx + 1][2] >= age:
                        idx += 1
                N = min(cap, len(q) - 1 - idx)
                parts.append("%s(%d)" % (nm, N))
                del q[:len(q) - N]
        if parts:
            out.I("s_waitcnt " + " ".join(parts))
        if p.op == "s_waitcnt":
            txt = " ".join(p.mods)
            m = re.search(r"vmcnt\((\d+)\)", txt)
            if m:
                k = int(m.group(1))
                del vmq[:max(0, len(vmq) - k)]
            m = re.search(r"lgkmcnt\((\d+)\)", txt)
            if m:
                k = int(m.group(1))
                del lgq[:max(0, len(lgq) - k)]
        if p.cls == "vmem" and len(vmq) >= 62:
            out.I("s_waitcnt vmcnt(61)")
            del vmq[:len(vmq) - 61]
        if p.cls == "vmem":
            an = ins.ann or {}
            vmq.append((set() if an.get("nodst") else set(p.d), an.get("tag") or an.get("w", (None, None))[1], n))
        elif p.cls == "ds":
            lgq.append((set(p.d), None, n))
        out.append(ins)
        n += 1
    return out


def fix_m0(code):
    out = Code()
    for x in code:
        if out and " lds" in x.t and x.t.startswith("buffer_load") and re.match(r"s_\w+ m0,", out[-1].t):
            out.I("s_nop 0")
        out.append(x)
    return out


def spread(lst, lo, hi, wv=6):
    isv = lambda x: (x.t if isinstance(x, Ins) else x).startswith("buffer_")
    tot = sum(wv if isv(x) else 1 for x in lst) or 1
    out, acc = [], 0.0
    for x in lst:
        out.append((x, lo + acc * (hi - lo) / tot, 0, hi + 1))
        acc += wv if isv(x) else 1
    return out


_SZ = {}


def sizes(code):
    import subprocess, tempfile, os
    isins = lambda x: not (x.t.endswith(":") or x.t.startswith(";") or x.t.startswith("."))
    key = lambda t: re.sub(r"\bL\w+", "0", t) if t.startswith(("s_cbranch", "s_branch", "s_call")) else t
    todo = sorted(set(key(x.t) for x in code if isins(x)) - set(_SZ))
    if todo:
        with tempfile.TemporaryDirectory() as d:
            open(d + "/a.s", "w").write('.amdgcn_target "amdgcn-amd-amdhsa--gfx950"\n.text\n' + "\n".join(todo) + "\n")
            subprocess.check_call(["clang", "-x", "assembler", "-target", "amdgcn-amd-amdhsa", "-mcpu=gfx950", "-c", d + "/a.s", "-o", d + "/a.o"])
            out = subprocess.check_output(["llvm-objdump", "-d", "--mcpu=gfx950", d + "/a.o"]).decode()
        ls = [l.split("//")[1].split(":")[1].split() for l in out.splitlines() if "//" in l]
        assert len(ls) == len(todo)
        for t, w in zip(todo, ls):
            _SZ[t] = 4 * len(w)
    return [(_SZ[key(x.t)] if isins(x) else 0) for x in code]


_E64 = ("v_add_u32", "v_exp_f32", "v_mov_b32", "v_add_f32", "v_mul_f32", "v_sub_f32", "v_lshlrev_b32", "v_cmp_nge_f32", "v_xor_b32", "v_and_b32",
        "v_subrev_u32", "v_max_f32", "v_rcp_f32", "v_min_u32", "v_cmp_ne_u32")


def align8(code, only_mfma=True):
    sz = sizes(code)
    out, osz = Code(), []
    off = 0
    for x, n in zip(code, sz):
        if x.t.startswith(".p2align"):
            off = 0
        want = x.t.startswith("v_mfma") if only_mfma else n == 8
        if want and off % 8 == 4:
            fixed = False
            k = len(out) - 1
            while k >= 0 and not out[k].t.startswith(("v_mfma", ".p2align")) and not out[k].t.endswith(":"):
                op = out[k].t.split()[0]
                if osz[k] == 4 and op in _E64:
                    out[k] = Ins(out[k].t.replace(op, op + "_e64", 1), out[k].ann)
                    osz[k] = 8
                    fixed = True
                    break
                k -= 1
            if not fixed:
                out.I("s_nop 0")
                osz.append(4)
            off += 4
        out.append(x)
        osz.append(n)
        off += n
    return out
```

```python
import sys
from asmlib import *
from common import *
import gen as G
import ph1, ph2, ph3, ph4, ph5

MARKS = {"front": "start kv0 kv1 q1 qc qok a1 a2 fin op e0 e1",
         "tail": "start r0 r1 r2 g0 g1 g2 d0 d1 d2 e0 e1",
         "all": "start kv0 kv1 q1 a1 fin op r0 r2 g2 d2 e1"}


ALIGN = [0]


def wrap(name, parts, ST, region, init):
    c = Code()
    c.L("L_begin")
    if getattr(ST, "dbg", False):
        c.I("s_memrealtime s[40:41]")
        c.I("s_waitcnt lgkmcnt(0)")
        c.I("s_mov_b32 vcc_hi, s40")
    pre = preamble(256, "L_end", None if init else ph1.first_loads())
    c += pre
    if init:
        ST.init(c)
        ST.mark(c, 'start')
    for p in parts:
        c += p
    ST.mark(c, 'e0')
    if ST.on:
        c.I("s_waitcnt vmcnt(0)")
    ST.mark(c, 'e1')
    ST.dump(c, sW, 0, region)
    c.L("L_end")
    c.I("s_endpgm")
    c += OOL
    c.L("L_last")
    c.I("s_endpgm")
    del OOL[:]
    c = Code(Ins(x.t.replace("L_end", "L_end_" + name[:5]), x.ann) for x in c)
    if ALIGN[0]:
        c = align8(c)
    return dict(name=name, code=c, vgpr=512, accum=256, sgpr=102, grid=256, block=256, lds=163840)


def build(opt):
    stamp = opt.get("stamp", False)
    fuse = opt.get("fuse", 0)
    ALIGN[0] = opt.get("align", 0)
    ONE_DS[0] = opt.get('oneds', 1)
    CT[0] = opt.get('ct', 1)
    POLL1[0] = opt.get('poll1', 1)
    SLEEP[0] = opt.get("sleep", 2)
    mk = lambda k: Stamps(stamp, opt.get("marks", MARKS[k]).split())
    if fuse == 2:
        SF = STl = mk("all")
        SF.dbg = opt.get("dbg", False)
    else:
        SF, STl = mk("front"), mk("tail")
    pre = preamble(256, "L_end", ph1.first_loads())
    g5 = ph5.gen(STl, opt, fuse >= 1)
    early5 = next(g5)
    g4 = ph4.gen(STl, opt, fuse >= 1, fuse >= 1, early5 if fuse >= 1 else None)
    early4 = next(g4)
    g2 = ph2.gen(SF, opt, fuse == 2, early4 if fuse == 2 else None)
    c1, tr1 = ph1.gen(SF, opt, next(g2))
    vm = [x for x in c1 if x.t.startswith("buffer_")]
    last = lambda slab: max(k for k, x in enumerate(vm) if (x.ann or {}).get("w", (0, 0))[1] == slab)
    opt["nk0"] = len(vm) - 1 - last(("K", 0))
    opt["nv0"] = len(vm) - 1 - max(last(("V", 0)), last(("K", 1)))
    c2, tr2 = next(g2)
    for i, t in enumerate(tr1):
        assert opt.get('nocheck') or not check(list(pre) + t + (tr2[i % 2] if i < 2 else []), "ph1.%d" % i)
    for i, t in enumerate(tr2):
        assert opt.get('nocheck') or not check(list(pre) + tr1[0] + t, "ph2.%d" % i)
    ks = []
    if fuse < 2:
        ks.append(wrap("front_kernel", [c1, c2], SF, 0, False))
    if fuse < 0:
        return ks
    c3, tr3 = ph3.gen(STl, opt, fuse == 2, fuse >= 1)
    if fuse == 0:
        ks.append(wrap("reduce_kernel", [c3], STl, 1, True))
    p4, c4 = next(g4)
    if fuse == 0:
        ks.append(wrap("gateup_kernel", [p4, c4], STl, 2, True))
    p5, c5 = next(g5)
    if fuse == 0:
        ks.append(wrap("down_kernel", [p5, c5], STl, 3, True))
        for t, n in ((tr3[0], "ph3"), (tr3[1], "ph3b"), (list(p4 + c4), "ph4"), (list(p5 + c5), "ph5")):
            assert not check(list(pre) + t, n)
    else:
        pass
    if fuse == 2:
        assert opt.get('nocheck') or not check(list(pre) + tr1[0] + tr2[0] + tr3[0] + list(c4) + list(c5), "all")
        ks.append(wrap("sequential_preLN__compressed_kv_cla__glu_gated_bilinear__prompt_kernel" if opt.get("final") else "fused_kernel", [c1, c2, c3, c4, c5], SF, 0, False))
    return ks


if __name__ == "__main__":
    opt = {m.split("=")[0]: eval(m.split("=", 1)[1]) for m in sys.argv[2:]}
    open(sys.argv[1], "w").write(G.build(build(opt)))
    print("wrote", sys.argv[1])
```

```python
import re


class Ins:
    __slots__ = ("t", "ann")

    def __init__(self, t, ann=None):
        self.t = t
        self.ann = ann

    def __repr__(self):
        return self.t


def R(kind, base, n=1):
    return "%s%d" % (kind, base) if n == 1 else "%s[%d:%d]" % (kind, base, base + n - 1)


def v(b, n=1):
    return R("v", b, n)


def a(b, n=1):
    return R("a", b, n)


def s(b, n=1):
    return R("s", b, n)


class Alloc:
    def __init__(self, start, limit):
        self.p = start
        self.limit = limit
        self.names = {}

    def __call__(self, n=1, align=1, name=None):
        self.p = (self.p + align - 1) // align * align
        b = self.p
        self.p += n
        assert self.p <= self.limit, "out of registers"
        if name:
            self.names[name] = (b, n)
        return b


class Code(list):
    def I(self, t, ann=None):
        self.append(Ins(t, ann))
        return self

    def L(self, name):
        self.append(Ins(name + ":"))

    def C(self, text):
        self.append(Ins("; " + text))

    def text(self):
        out = []
        for i in self:
            if i.t.endswith(":") or i.t.startswith(";") or i.t.startswith("."):
                out.append(i.t)
            else:
                out.append(" " + i.t)
        return "\n".join(out)


def weave(code, mains, gaps, pre=None):
    for i, m in enumerate(mains):
        if pre and i in pre:
            for g in pre[i]:
                code.append(g if isinstance(g, Ins) else Ins(g))
        code.append(m if isinstance(m, Ins) else Ins(m))
        for g in gaps.get(i, []):
            code.append(g if isinstance(g, Ins) else Ins(g))


def mfma(d, A, B, c):
    return "v_mfma_f32_32x32x16_bf16 %s, %s, %s, %s" % (d, A, B, c)


_REG = re.compile(r"^(-|abs\(|\|)?([vas])(\d+)\)?\|?$|^(-)?([vas])\[(\d+):(\d+)\]$")
_TRANS = ("v_exp_f32", "v_log_f32", "v_rcp_f32", "v_rsq_f32", "v_sqrt_f32", "v_sin_f32", "v_cos_f32",
          "v_rcp_iflag_f32")


def regs_of(tok):
    tok = tok.strip()
    if tok in ("vcc",):
        return [("s", "vcc")]
    if tok in ("vcc_lo", "vcc_hi"):
        return [("s", "vcc")]
    if tok == "exec":
        return [("s", "exec")]
    if tok == "m0":
        return [("s", "m0")]
    m = _REG.match(tok)
    if not m:
        return []
    if m.group(2):
        return [(m.group(2), int(m.group(3)))]
    return [(m.group(5), i) for i in range(int(m.group(6)), int(m.group(7)) + 1)]


def split_ops(rest):
    ops, depth, cur = [], 0, ""
    for ch in rest:
        if ch in "[(":
            depth += 1
        if ch in "])":
            depth -= 1
        if ch == "," and depth == 0:
            ops.append(cur.strip())
            cur = ""
        else:
            cur += ch
    if cur.strip():
        ops.append(cur.strip())
    mods = []
    if ops:
        parts = ops[-1].split()
        ops[-1] = parts[0]
        mods = parts[1:]
    return ops, mods


class P:
    pass


def parse(t):
    p = P()
    t = t.split(";")[0].strip()
    sp = t.split(None, 1)
    p.op = sp[0]
    for suf in ("_e32", "_e64"):
        if p.op.endswith(suf):
            p.op = p.op[: -len(suf)]
    rest = sp[1] if len(sp) > 1 else ""
    p.ops, p.mods = split_ops(rest) if p.op not in ("s_waitcnt",) else ([], rest.split())
    op = p.op
    o = p.ops
    rg = lambda k: regs_of(o[k]) if k < len(o) else []
    p.d, p.s = [], []
    p.cls = "other"
    p.ab, p.c = [], []
    if op.startswith("v_mfma"):
        p.cls = "mfma"
        p.d = rg(0)
        p.ab = rg(1) + rg(2)
        p.c = rg(3)
        p.s = p.ab + p.c
        p.passes = 8 if "32x32" in op else 4
    elif op.startswith("ds_read") or op.startswith("ds_bpermute") or op.startswith("ds_swizzle"):
        p.cls = "ds"
        p.d = rg(0)
        p.s = sum((rg(k) for k in range(1, len(o))), [])
    elif op.startswith("ds_write"):
        p.cls = "ds"
        p.s = sum((rg(k) for k in range(len(o))), [])
    elif op.startswith("buffer_load") or op.startswith("global_load"):
        p.cls = "vmem"
        if "lds" in p.mods or "_lds_" in op:
            p.s = sum((rg(k) for k in range(len(o))), []) + [("s", "m0")]
            p.dma = True
        else:
            p.d = rg(0)
            p.s = sum((rg(k) for k in range(1, len(o))), [])
    elif op.startswith("buffer_store") or op.startswith("global_store"):
        p.cls = "vmem"
        p.s = sum((rg(k) for k in range(len(o))), [])
        p.store = rg(0) if op.startswith("buffer") else rg(1)
        p.wide = "x3" in op or "x4" in op
    elif op.startswith("buffer_atomic") or op.startswith("global_atomic"):
        p.cls = "vmem"
        p.s = sum((rg(k) for k in range(len(o))), [])
        if "sc0" in p.mods:
            p.d = rg(0)
    elif op in ("buffer_wbl2", "buffer_inv"):
        p.cls = "vmem"
    elif op.startswith("s_load") or op in ("s_memtime", "s_memrealtime"):
        p.cls = "smem"
        p.d = rg(0)
        p.s = rg(1) + rg(2)
    elif op.startswith("v_"):
        p.cls = "valu"
        p.d = rg(0)
        p.s = sum((rg(k) for k in range(1, len(o))), [])
        if op.startswith("v_cmpx"):
            p.d = p.d + [("s", "exec")]
        if op.startswith(("v_fmac", "v_dot2c", "v_mac", "v_pk_fmac")):
            p.s += p.d
        if op.startswith("v_permlane") and "swap" in op:
            p.d = rg(0) + rg(1)
            p.s = rg(0) + rg(1)
        if op.startswith(("v_add_co", "v_sub_co", "v_addc_co", "v_subb_co", "v_div_scale")):
            p.d = rg(0) + rg(1)
            p.s = sum((rg(k) for k in range(2, len(o))), [])
        if op.startswith("v_writelane") or "dpp" in op or "sdwa" in op:
            p.s += [r for r in p.d if r[0] == "v"]
    elif op.startswith("s_"):
        p.cls = "salu"
        if op.startswith(("s_cmp", "s_cbranch", "s_branch", "s_waitcnt", "s_barrier", "s_nop", "s_setprio",
                          "s_endpgm", "s_sleep", "s_bitcmp")):
            p.s = sum((rg(k) for k in range(len(o))), [])
            if op in ("s_cbranch_vccz", "s_cbranch_vccnz"):
                p.s = [("s", "vcc")]
        else:
            p.d = rg(0)
            p.s = sum((rg(k) for k in range(1, len(o))), [])
            if "saveexec" in op:
                p.d += [("s", "exec")]
                p.s += [("s", "exec")]
            if op.startswith(("s_addk", "s_mulk", "s_cmov")):
                p.s += p.d
    return p


def check(trace, name="", verbose=True):
    errs = []
    ws = 0
    last = {}
    vmq, lgq = [], []
    smem_pending = []
    pend = {}
    slot_owner = {}
    slab_landed_bar = {}
    slab_parts_out = {}
    slab_issued, slab_nparts = {}, {}
    slab_reads_out = {}
    slab_read_since_bar = set()

    def err(i, msg):
        errs.append("%s[%d] %s :: %s" % (name, i, trace[i].t, msg))

    def need(i, key, n, msg):
        if key in last and ws - last[key] - 1 < n:
            err(i, "%s: %d wait states, need %d" % (msg, ws - last[key] - 1, n))

    for i, ins in enumerate(trace):
        t = ins.t
        if t.endswith(":") or t.startswith(";") or t.startswith("."):
            continue
        p = parse(t)
        if (ins.ann or {}).get("nodst"):
            p.d = []
        for r in p.s + p.d:
            if r in pend:
                err(i, "touches %s%s with load pending (%s)" % (r[0], r[1], pend[r]))
        isv = p.cls == "valu"
        if p.cls == "mfma":
            for r in p.s:
                need(i, ("valu_w", r), 2, "VALU write -> MFMA read %s%s" % r)
            for r in p.ab:
                if ("mfma_w", r) in last:
                    need(i, ("mfma_w", r), last[("mfma_p", r)] + 4, "MFMA D -> MFMA A/B %s%s" % r)
            if p.c:
                for r in p.c:
                    if ("mfma_w", r) in last and last.get(("mfma_dset", r)) != tuple(p.c):
                        need(i, ("mfma_w", r), last[("mfma_p", r)] + 2, "MFMA D -> overlapping C %s%s" % r)
            if tuple(p.d) != tuple(p.c):
                for r in p.d:
                    if ("mfma_w", r) in last and last.get(("mfma_dset", r)) != tuple(p.d):
                        need(i, ("mfma_w", r), last[("mfma_p", r)] + 2, "MFMA D -> MFMA D WAW %s%s" % r)
            need(i, ("valu_w", ("s", "exec")), 4, "VALU exec write -> MFMA")
        if isv or p.cls in ("vmem", "ds"):
            for r in p.s + p.d:
                if ("mfma_w", r) in last:
                    need(i, ("mfma_w", r), last[("mfma_p", r)] + 4, "MFMA D -> VALU/mem %s%s" % r)
        if isv:
            for r in p.d:
                if ("mfma_c", r) in last:
                    need(i, ("mfma_c", r), last[("mfma_cp", r)] - 1, "MFMA C read -> VALU write %s%s" % r)
                need(i, ("store_d", r), 2, "wide store data -> VALU overwrite %s%s" % r)
            if p.op not in _TRANS:
                for r in p.s:
                    need(i, ("trans_w", r), 1, "trans -> VALU %s%s" % r)
            for r in p.s:
                if r[0] == "s":
                    n = 4 if p.op.startswith(("v_readlane", "v_writelane")) else 2
                    if p.op == "v_div_fmas_f32":
                        n = 4
                    need(i, ("valu_w", r), n, "VALU sgpr write -> VALU read %s" % (r[1],))
            if p.op.startswith("v_cndmask") and len(p.ops) == 4:
                pass
            if p.op.startswith(("v_readlane", "v_readfirstlane")):
                for r in p.s:
                    if r[0] == "v":
                        need(i, ("valu_w", r), 1, "VALU write -> readlane")
                need(i, ("valu_w", ("s", "exec")), 4, "exec write -> readlane")
            if p.op.startswith("v_permlane") or "dpp" in p.op:
                for r in p.s:
                    need(i, ("valu_w", r), 2, "VALU write -> permlane/dpp %s%s" % r)
        if p.cls in ("ds", "vmem") and p.d:
            for r in p.d:
                if ("mfma_c", r) in last:
                    need(i, ("mfma_c", r), last[("mfma_cp", r)] - 1, "MFMA C read -> load write")
                need(i, ("store_d", r), 1, "wide store data -> overwrite")
        if p.cls == "vmem":
            for r in p.s:
                if r[0] == "s":
                    need(i, ("valu_w", r), 5, "VALU sgpr write -> VMEM read")
            if getattr(p, "dma", False):
                need(i, ("salu_w", ("s", "m0")), 1, "m0 write -> LDS DMA")
        if p.cls == "salu":
            for r in p.s:
                if r == ("s", "vcc") and p.op.startswith("s_cbranch"):
                    need(i, ("valu_w", r), 0, "")
        ann = ins.ann or {}
        if "w" in ann:
            slot, slab = ann["w"][:2]
            slab_issued[slab] = slab_issued.get(slab, 0) + 1
            slab_nparts[slab] = ann["w"][2]
            old = slot_owner.get(slot)
            if old is not None and old != slab:
                if slab_reads_out.get(old, 0) > 0 or old in slab_read_since_bar:
                    err(i, "overwrites slot %s (slab %s) whose reads are not fenced by a barrier" % (slot, old))
                if slab_parts_out.get(old, 0) > 0:
                    err(i, "slot %s still has DMA of %s in flight" % (slot, old))
            slot_owner[slot] = slab
            slab_parts_out[slab] = slab_parts_out.get(slab, 0) + 1
            slab_landed_bar[slab] = False
        for slot in ann.get("alias", ()):
            old = slot_owner.get(slot)
            if old is not None:
                if slab_reads_out.get(old, 0) > 0 or old in slab_read_since_bar or slab_parts_out.get(old, 0) > 0:
                    err(i, "overwrites aliased slot %s (slab %s) still in use" % (slot, old))
                slot_owner[slot] = ("dead", slot)
        if "r" in ann:
            slot, slab = ann["r"]
            if slab is not None:
                if slot_owner.get(slot) != slab:
                    err(i, "reads slot %s expecting %s but owner is %s" % (slot, slab, slot_owner.get(slot)))
                elif slab_issued.get(slab) != slab_nparts.get(slab):
                    err(i, "reads slab %s with %s/%s parts issued" % (slab, slab_issued.get(slab), slab_nparts.get(slab)))
                elif not slab_landed_bar.get(slab) and not ann.get("private"):
                    err(i, "reads slab %s not landed+barrier" % (slab,))
                elif ann.get("private") and slab_parts_out.get(slab, 0) > 0:
                    err(i, "reads private slab %s with DMA in flight" % (slab,))
                slab_reads_out[slab] = slab_reads_out.get(slab, 0) + 1
                if not ann.get("private"):
                    slab_read_since_bar.add(slab)
        if p.cls == "mfma":
            for r in p.d:
                last[("mfma_w", r)] = ws
                last[("mfma_p", r)] = p.passes
                last[("mfma_dset", r)] = tuple(p.d)
            for r in p.c:
                last[("mfma_c", r)] = ws
                last[("mfma_cp", r)] = p.passes
        elif isv:
            for r in p.d:
                last[("valu_w", r)] = ws
                last.pop(("mfma_w", r), None)
                if p.op in _TRANS:
                    last[("trans_w", r)] = ws
                else:
                    last.pop(("trans_w", r), None)
        elif p.cls == "salu":
            for r in p.d:
                last[("salu_w", r)] = ws
                last.pop(("valu_w", r), None)
        if p.cls == "vmem":
            vmq.append((p.d, ann))
            for r in p.d:
                pend[r] = "vm@%d" % i
                last.pop(("mfma_w", r), None)
            if getattr(p, "store", None) and p.wide:
                for r in p.store:
                    last[("store_d", r)] = ws
            if len(vmq) > 63:
                err(i, "more than 63 vmem ops outstanding")
        elif p.cls == "ds":
            lgq.append((p.d, ann))
            for r in p.d:
                pend[r] = "ds@%d" % i
                last.pop(("mfma_w", r), None)
        elif p.cls == "smem":
            smem_pending.append(p.d)
            for r in p.d:
                pend[r] = "sm@%d" % i
        if p.op == "s_waitcnt":
            txt = " ".join(p.mods)
            m = re.search(r"vmcnt\((\d+)\)", txt)
            if m:
                n = int(m.group(1))
                while len(vmq) > n:
                    d, an = vmq.pop(0)
                    for r in d:
                        pend.pop(r, None)
                    if "w" in an:
                        slab_parts_out[an["w"][1]] -= 1
            m = re.search(r"lgkmcnt\((\d+)\)", txt)
            if m:
                n = int(m.group(1))
                if n > 15:
                    err(i, "lgkmcnt > 15")
                if smem_pending and n > 0:
                    err(i, "counted lgkmcnt with SMEM outstanding")
                if n == 0:
                    for d in smem_pending:
                        for r in d:
                            pend.pop(r, None)
                    smem_pending = []
                while len(lgq) > n:
                    d, an = lgq.pop(0)
                    for r in d:
                        pend.pop(r, None)
                    if "r" in an and an["r"][1] is not None:
                        slab_reads_out[an["r"][1]] -= 1
                    if "w" in an:
                        slab_parts_out[an["w"][1]] -= 1
        if p.op == "s_barrier":
            for slab, n in slab_parts_out.items():
                if n == 0:
                    slab_landed_bar[slab] = True
            slab_read_since_bar = set(sl for sl in slab_read_since_bar if slab_reads_out.get(sl, 0) > 0)
        if p.op == "s_nop":
            ws += int(p.ops[0], 0) + 1
        else:
            ws += 1
    if verbose:
        for e in errs[:40]:
            print("CHECK:", e)
        print("check %s: %d instrs, %d errors" % (name, len(trace), len(errs)))
    return errs


STAMP_OFF = 200 << 20


class Stamps:
    def __init__(self, on, names=None):
        self.on, self.sb, self.st, self.n = on, 76, 72, 12
        self.names = names

    def init(self, c):
        if not self.on:
            return
        if getattr(self, "dbg", False):
            for k in range(2 * self.n):
                c.I("s_mov_b32 %s, 0" % s(self.sb + k))
            c.I("s_mov_b32 %s, vcc_hi" % s(self.sb + self.n))
            return
        for k in range(2 * self.n):
            c.I("s_mov_b32 %s, 0" % s(self.sb + k))

    def mark(self, c, k):
        if not self.on:
            return
        if self.names is not None:
            if k not in self.names:
                return
            k = self.names.index(k)
        c.I("s_waitcnt lgkmcnt(0)")
        c.I("s_memtime s[100:101]")
        c.I("s_waitcnt lgkmcnt(0)")
        c.I("s_mov_b32 %s, s100" % s(self.sb + k))
        c.I("s_memrealtime s[100:101]")
        c.I("s_waitcnt lgkmcnt(0)")
        c.I("s_mov_b32 %s, s100" % s(self.sb + self.n + k))

    def dump_dbg(self, c):
        c.I("s_load_dwordx2 s[72:73], s[0:1], 88")
        c.I("s_waitcnt lgkmcnt(0)")
        c.I("s_and_b32 s73, s73, 0xffff")
        c.I("s_mov_b32 s74, 256")
        c.I("s_mov_b32 s75, 0x20000")
        c.I("s_cmp_lg_u32 s3, 0")
        c.I("s_cbranch_scc1 L_end")
        c.I("s_lshr_b32 s70, s2, 3")
        c.I("s_cmp_lg_u32 s70, 18")
        c.I("s_cbranch_scc1 L_end")
        c.I("s_mov_b64 exec, 1")
        c.I("v_mov_b32 v7, 0")
        c.I("s_not_b32 s70, %s" % s(self.sb + self.n))
        c.I("v_mov_b32 v8, s70")
        for k in range(6):
            c.I("v_mov_b32 %s, %s" % (v(9 + k), s(self.sb + self.n + k)))
        for k in range(7):
            c.I("buffer_atomic_umax %s, v7, s[72:75], 0 offen offset:%d sc1" % (v(8 + k), 36 + 4 * k))

    def dump(self, c, sW, vt, region=0, wg="s2"):
        if not self.on:
            return
        if getattr(self, "dbg", False):
            return self.dump_dbg(c)
        q = 72
        c.I("s_load_dwordx2 s[72:73], s[0:1], 96")
        c.I("s_waitcnt lgkmcnt(0)")
        c.I("s_add_u32 %s, s72, 0x%x" % (s(q), STAMP_OFF + region * (1 << 17)))
        c.I("s_addc_u32 %s, s73, 0" % s(q + 1))
        c.I("s_and_b32 %s, %s, 0xffff" % (s(q + 1), s(q + 1)))
        c.I("s_mov_b32 %s, 0x20000" % s(q + 2))
        c.I("s_mov_b32 %s, 0x20000" % s(q + 3))
        c.I("s_lshl_b32 s70, %s, 2" % wg)
        c.I("s_add_u32 s70, s70, %s" % s(sW))
        c.I("s_lshl_b32 s70, s70, 7")
        c.I("v_mov_b32 v7, 0")
        for k in range(2 * self.n):
            c.I("v_mov_b32 %s, %s" % (v(8 + k), s(self.sb + k)))
        for k in range(self.n // 2):
            c.I("buffer_store_dwordx4 %s, v7, %s, s70 offen offset:%d" % (v(8 + 4 * k, 4), s(q, 4), 16 * k))


def cost_of(t):
    op = t.split()[0]
    if op.endswith(":"):
        return 0
    if op in _TRANS:
        return 8
    if op.startswith("buffer_load") and " lds" in t:
        return COST_DMA
    return 4


COST_DMA = 8
ONE_DS = [1]


def schedule(n, budget, streams, fixed=None, reserve=None):
    gaps = {i: [] for i in range(n)}
    load = [0] * n
    for g, cst in (reserve or {}).items():
        load[g] += cst
    if fixed:
        for g, lst in fixed.items():
            for x in lst:
                gaps[g].append(x)
                load[g] += cost_of(x.t if isinstance(x, Ins) else x)
    items = []
    for si, st in enumerate(streams):
        run = -1
        for k, (ins, ideal, lo, hi) in enumerate(st):
            run = max(run, ideal)
            items.append((run, si, k, ins, lo, hi))
    items.sort(key=lambda z: (z[0], z[1], z[2]))
    lastg = [0] * len(streams)
    over = 0
    for ideal, si, k, ins, lo, hi in items:
        cst = cost_of(ins.t if isinstance(ins, Ins) else ins)
        lo2 = max(lo, lastg[si])
        hi2 = max(min(hi, n - 1), lo2)
        cand = sorted(range(lo2, hi2 + 1), key=lambda g: (abs(g - ideal), g))
        best = None
        txt = ins.t if isinstance(ins, Ins) else ins
        isds = txt.startswith("ds_") and ONE_DS[0]
        for g in cand:
            if load[g] + cst <= budget and not (isds and any((y.t if isinstance(y, Ins) else y).startswith("ds_") for y in gaps[g])):
                best = g
                break
        if best is None:
            for g in cand:
                if load[g] + cst <= budget:
                    best = g
                    break
        if best is None:
            best = min(cand, key=lambda g: (load[g], abs(g - ideal)))
            over += load[best] + cst - max(budget, load[best])
        gaps[best].append(ins)
        load[best] += cst
        lastg[si] = best
    return gaps, load


def autowait(code, vm0=0, age=20):
    out = Code()
    vmq, lgq = [], []
    n = 0
    for ins in code:
        t = ins.t
        if t.endswith(":") or t.startswith(";") or t.startswith("."):
            out.append(ins)
            continue
        if t == "@need":
            idx = -1
            for k, e in enumerate(vmq):
                if e[1] in ins.ann["need"]:
                    idx = k
            extra = " lgkmcnt(0)" if ins.ann.get("lgkm0") else ""
            if idx >= 0:
                N = len(vmq) - 1 - idx
                assert N <= 63
                out.I("s_waitcnt vmcnt(%d)%s" % (N, extra))
                vmq = vmq[idx + 1:]
            elif extra:
                out.I("s_waitcnt lgkmcnt(0)")
            if extra:
                lgq = []
            continue
        p = parse(t)
        touch = set(p.s + ([] if (ins.ann or {}).get("nodst") else p.d))
        parts = []
        for q, nm, cap in ((vmq, "vmcnt", 63), (lgq, "lgkmcnt", 15)):
            idx = -1
            for k, e in enumerate(q):
                if e[0] & touch:
                    idx = k
            if idx >= 0:
                if nm == "lgkmcnt":
                    while idx + 1 < len(q) and n - q[idx + 1][2] >= age:
                        idx += 1
                N = min(cap, len(q) - 1 - idx)
                parts.append("%s(%d)" % (nm, N))
                del q[:len(q) - N]
        if parts:
            out.I("s_waitcnt " + " ".join(parts))
        if p.op == "s_waitcnt":
            txt = " ".join(p.mods)
            m = re.search(r"vmcnt\((\d+)\)", txt)
            if m:
                k = int(m.group(1))
                del vmq[:max(0, len(vmq) - k)]
            m = re.search(r"lgkmcnt\((\d+)\)", txt)
            if m:
                k = int(m.group(1))
                del lgq[:max(0, len(lgq) - k)]
        if p.cls == "vmem" and len(vmq) >= 62:
            out.I("s_waitcnt vmcnt(61)")
            del vmq[:len(vmq) - 61]
        if p.cls == "vmem":
            an = ins.ann or {}
            vmq.append((set() if an.get("nodst") else set(p.d), an.get("tag") or an.get("w", (None, None))[1], n))
        elif p.cls == "ds":
            lgq.append((set(p.d), None, n))
        out.append(ins)
        n += 1
    return out


def fix_m0(code):
    out = Code()
    for x in code:
        if out and " lds" in x.t and x.t.startswith("buffer_load") and re.match(r"s_\w+ m0,", out[-1].t):
            out.I("s_nop 0")
        out.append(x)
    return out


def spread(lst, lo, hi, wv=6):
    isv = lambda x: (x.t if isinstance(x, Ins) else x).startswith("buffer_")
    idx = [k for k, x in enumerate(lst) if isv(x)]
    if not idx:
        return [(x, lo + k * (hi - lo) / max(len(lst), 1), 0, hi + 1) for k, x in enumerate(lst)]
    lead = min(idx[0] * 0.5, 4)
    tailn = min((len(lst) - 1 - idx[-1]) * 0.5, 4)
    a, b = lo + lead, hi - tailn
    pos = {k: a + (n * (b - a)) / max(len(idx) - 0.3, 1) for n, k in enumerate(idx)}
    out, prev, pk = [], lo - 1.0, -1
    for k, x in enumerate(lst):
        if k in pos:
            p_ = pos[k]
            prev, pk = p_, k
        else:
            nxt = min([q for q in idx if q > k], default=None)
            end, ne = (pos[nxt], nxt) if nxt is not None else (hi + 1.0, len(lst))
            p_ = prev + (end - prev) * (k - pk) / (ne - pk)
        out.append((x, p_, 0, hi + 1))
    return out


_SZ = {}


def sizes(code):
    import subprocess, tempfile, os
    isins = lambda x: not (x.t.endswith(":") or x.t.startswith(";") or x.t.startswith("."))
    key = lambda t: re.sub(r"\bL\w+", "0", t) if t.startswith(("s_cbranch", "s_branch", "s_call")) else t
    todo = sorted(set(key(x.t) for x in code if isins(x)) - set(_SZ))
    if todo:
        with tempfile.TemporaryDirectory() as d:
            open(d + "/a.s", "w").write('.amdgcn_target "amdgcn-amd-amdhsa--gfx950"\n.text\n' + "\n".join(todo) + "\n")
            subprocess.check_call(["clang", "-x", "assembler", "-target", "amdgcn-amd-amdhsa", "-mcpu=gfx950", "-c", d + "/a.s", "-o", d + "/a.o"])
            out = subprocess.check_output(["llvm-objdump", "-d", "--mcpu=gfx950", d + "/a.o"]).decode()
        ls = [l.split("//")[1].split(":")[1].split() for l in out.splitlines() if "//" in l]
        assert len(ls) == len(todo)
        for t, w in zip(todo, ls):
            _SZ[t] = 4 * len(w)
    return [(_SZ[key(x.t)] if isins(x) else 0) for x in code]


_E64 = ("v_add_u32", "v_exp_f32", "v_mov_b32", "v_add_f32", "v_mul_f32", "v_sub_f32", "v_lshlrev_b32", "v_cmp_nge_f32", "v_xor_b32", "v_and_b32",
        "v_subrev_u32", "v_max_f32", "v_rcp_f32", "v_min_u32", "v_cmp_ne_u32")


def align8(code, only_mfma=True):
    sz = sizes(code)
    out, osz = Code(), []
    off = 0
    for x, n in zip(code, sz):
        if x.t.startswith(".p2align"):
            off = 0
        want = x.t.startswith("v_mfma") if only_mfma else n == 8
        if want and off % 8 == 4:
            fixed = False
            k = len(out) - 1
            while k >= 0 and not out[k].t.startswith(("v_mfma", ".p2align")) and not out[k].t.endswith(":"):
                op = out[k].t.split()[0]
                if osz[k] == 4 and op in _E64:
                    out[k] = Ins(out[k].t.replace(op, op + "_e64", 1), out[k].ann)
                    osz[k] = 8
                    fixed = True
                    break
                k -= 1
            if not fixed:
                out.I("s_nop 0")
                osz.append(4)
            off += 4
        out.append(x)
        osz.append(n)
        off += n
    return out
```

```python
from asmlib import *
from layout import *
from common import *
import proj
from proj import put, M16


def first_loads():
    c = Code()
    for d, off in ((12, 8), (72, 24), (74, 32), (24, 0), (28, 88), (48, 16), (52, 40)):
        c.I("s_load_dwordx2 %s, s[0:1], %d" % (s(d, 2), off))
    return c


class R1:
    V = Alloc(1, 256)
    vL = V(1)
    vST = V(1)
    vPoll = V(1)
    vX = V(64, 4)
    vY = V(64, 4)
    vOA = V(8, 4)
    vOB = V(4)
    vRA = V(2)
    vRB = V(2)
    vT = V(8, 4)
    vDum = V(4, 4)
    vC2 = V(8, 4)
    vXr = V(48, 4)
    vE = V(8, 4)
    vP = V(8, 4)
    vQ2 = 192


def gen(ST, opt, att):
    r = R1
    vL, vST, vX, vY, vOA, vOB, vRA, vRB, vT, vDum, vQ2, vPoll = r.vL, r.vST, r.vX, r.vY, r.vOA, r.vOB, r.vRA, r.vRB, r.vT, r.vDum, r.vQ2, r.vPoll
    vE, vXr, vP, vQA = r.vE, r.vXr, r.vP, r.vDum
    sA, sB, sWq, sX, sDbg = 12, 16, 20, 24, 28
    sOffB, sCnt, sFlag, sSt, sInc0, sInc1, sQo, sXo = range(32, 40)
    sOffA, sAw, sBw, sRd, sHead, sTyp, sMt = range(41, 48)
    sWid, sDelta, sOob = 68, 69, 70
    sPf = 48

    pro = Code()
    c = pro
    c.I("v_and_b32 %s, 63, v0" % v(vL))
    c.I("s_and_b32 %s, s2, 7" % s(sT))
    c.I("s_lshr_b32 %s, s2, 3" % s(sT2))
    c.I("s_lshl_b32 %s, %s, 1" % (s(sHead), s(sT)))
    c.I("s_and_b32 %s, %s, 1" % (s(sT), s(sT2)))
    if opt.get("hswap"):
        c.I("s_xor_b32 %s, %s, 1" % (s(sT), s(sT)))
    c.I("s_add_u32 %s, %s, %s" % (s(sHead), s(sHead), s(sT)))
    c.I("s_bfe_u32 %s, %s, 0x10001" % (s(sTyp), s(sT2)))
    c.I("s_lshr_b32 %s, %s, 2" % (s(sMt), s(sT2)))
    t0, t1, t2, t3 = vT, vT + 1, vT + 2, vT + 3
    L = v(vL)
    c.I("v_lshrrev_b32 %s, 3, %s" % (v(t0), L))
    c.I("v_and_b32 %s, 7, %s" % (v(t1), L))
    c.I("v_mul_u32_u24 %s, 896, %s" % (v(vT + 4), v(t1)))
    c.I("v_lshl_add_u32 %s, %s, 4, %s" % (v(vT + 4), v(t0), v(vT + 4)))
    c.I("v_lshlrev_b32 %s, 4, %s" % (v(vT + 5), v(t1)))
    c.I("v_bfe_u32 %s, %s, 3, 2" % (v(t3), L))
    c.I("v_lshl_add_u32 %s, %s, 8, %s" % (v(vT + 5), v(t3), v(vT + 5)))
    c.I("v_lshrrev_b32 %s, 5, %s" % (v(t3), L))
    c.I("v_lshl_add_u32 %s, %s, 10, %s" % (v(vT + 5), v(t3), v(vT + 5)))
    c.I("s_lshl_b32 %s, %s, 6" % (s(sT), s(sW)))
    c.I("v_add_u32 %s, %s, %s" % (v(t0), s(sT), v(t0)))
    c.I("v_lshlrev_b32 %s, 11, %s" % (v(t0), v(t0)))
    c.I("v_lshrrev_b32 %s, 4, %s" % (v(t2), L))
    c.I("v_xor_b32 %s, %s, %s" % (v(t1), v(t1), v(t2)))
    c.I("v_lshl_add_u32 %s, %s, 4, %s" % (v(t0), v(t1), v(t0)))
    c.I("v_xor_b32 %s, 64, %s" % (v(t1), v(t0)))
    for i in range(8):
        c.I("v_add_u32 %s, 0x%x, %s" % (v(vOA + i), i * 16384 - (i & 3) * 1024, v(t1 if i & 1 else t0)))
    c.I("v_bfe_u32 %s, %s, 2, 2" % (v(t0), L))
    c.I("s_lshl_b32 %s, %s, 3" % (s(sT), s(sW)))
    c.I("v_add_u32 %s, %s, %s" % (v(t0), s(sT), v(t0)))
    c.I("v_lshlrev_b32 %s, 13, %s" % (v(t0), v(t0)))
    c.I("v_lshl_add_u32 %s, %s, 6, %s" % (v(t0), v(t2), v(t0)))
    c.I("v_and_b32 %s, 3, %s" % (v(t1), L))
    c.I("s_and_b32 %s, %s, 1" % (s(sT), s(sW)))
    c.I("s_lshl_b32 %s, %s, 1" % (s(sT), s(sT)))
    c.I("v_xor_b32 %s, %s, %s" % (v(t1), s(sT), v(t1)))
    c.I("v_lshl_add_u32 %s, %s, 4, %s" % (v(t0), v(t1), v(t0)))
    for j in range(4):
        g, q = j >> 1, j & 1
        c.I("v_add_u32 %s, 0x%x, %s" % (v(vOB + j), 4 * g * 8192 + 4 * q * 64 + 4096 - j * 1024, v(t0)))
    c.I("v_and_b32 %s, 15, %s" % (v(t0), L))
    c.I("v_lshlrev_b32 %s, 7, %s" % (v(t0), v(t0)))
    c.I("v_bfe_u32 %s, %s, 1, 3" % (v(t3), L))
    c.I("v_xor_b32 %s, %s, %s" % (v(t3), v(t3), v(t2)))
    c.I("v_lshl_add_u32 %s, %s, 4, %s" % (v(t0), v(t3), v(t0)))
    c.I("s_lshr_b32 %s, %s, 1" % (s(sT), s(sW)))
    c.I("s_lshl_b32 %s, %s, 14" % (s(sT), s(sT)))
    c.I("s_add_u32 %s, %s, 0x10000" % (s(sT), s(sT)))
    c.I("v_add_u32 %s, %s, %s" % (v(vRA), s(sT), v(t0)))
    c.I("v_xor_b32 %s, 64, %s" % (v(vRA + 1), v(vRA)))
    c.I("v_lshlrev_b32 %s, 12, %s" % (v(t0), v(t2)))
    c.I("v_bfe_u32 %s, %s, 2, 2" % (v(t3), L))
    c.I("v_lshl_add_u32 %s, %s, 6, %s" % (v(t0), v(t3), v(t0)))
    c.I("v_bfe_u32 %s, %s, 4, 1" % (v(t3), L))
    c.I("v_lshl_add_u32 %s, %s, 5, %s" % (v(t0), v(t3), v(t0)))
    c.I("v_and_b32 %s, 3, %s" % (v(t3), L))
    c.I("v_lshl_add_u32 %s, %s, 3, %s" % (v(t0), v(t3), v(t0)))
    c.I("s_and_b32 %s, %s, 1" % (s(sT), s(sW)))
    c.I("s_lshl_b32 %s, %s, 10" % (s(sT), s(sT)))
    c.I("v_add_u32 %s, %s, %s" % (v(vRB), s(sT), v(t0)))
    c.I("v_xor_b32 %s, 32, %s" % (v(vRB + 1), v(vRB)))
    c.I("v_lshlrev_b32 %s, 4, %s" % (v(vST), L))
    c.I("s_waitcnt lgkmcnt(0)")
    srd_fin(c, sWS, WS_END)
    ST.init(c)
    ST.mark(c, 'start')
    srd_fin(c, sA, 2048 * 1024 * 2)
    c.I("s_cmp_eq_u32 %s, 0" % s(sTyp))
    c.I("s_cselect_b32 %s, s72, s74" % s(sB))
    c.I("s_cselect_b32 %s, s73, s75" % s(sB + 1))
    c.I("s_cselect_b32 %s, 0x2000, 0x1000" % s(sInc0) if False else "s_cselect_b32 %s, 2, 1" % s(sInc0))
    c.I("s_cselect_b32 %s, 2, 3" % s(sInc1))
    c.I("s_lshl_b32 %s, %s, 12" % (s(sInc0), s(sInc0)))
    c.I("s_lshl_b32 %s, %s, 12" % (s(sInc1), s(sInc1)))
    c.I("s_add_u32 %s, %s, %d" % (s(sInc1), s(sInc1), US - 16384))
    c.I("s_sub_u32 %s, %s, 4096" % (s(sB), s(sB)))
    c.I("s_subb_u32 %s, %s, 0" % (s(sB + 1), s(sB + 1)))
    srd_fin(c, sB, 1024 * 4096 * 2 + 4096)
    srd_fin(c, sX, 2048 * 896)
    c.I("s_sub_u32 %s, %s, 4096" % (s(sWq), s(sPf)))
    c.I("s_subb_u32 %s, %s, 0" % (s(sWq + 1), s(sPf + 1)))
    srd_fin(c, sWq, 448 * 8192 + 4096)
    srd_fin(c, sDbg, 256)
    c.I("s_lshl_b32 %s, %s, 19" % (s(sOffA), s(sMt)))
    c.I("s_lshl_b32 %s, %s, 9" % (s(sOffB), s(sHead)))
    c.I("s_mov_b32 %s, %s" % (s(sQo), s(sOffB)))
    c.I("s_lshl_b32 %s, %s, 13" % (s(sAw), s(sW)))
    c.I("s_add_u32 %s, %s, 0x10000" % (s(sAw), s(sAw)))
    c.I("s_mov_b32 %s, %s" % (s(sBw), s(sW4k)))

    def dmaA(n, half):
        return [Ins("buffer_load_dwordx4 %s, %s, %s offen offset:%d%s lds" % (v(vOA + 4 * half + i), s(sA, 4), s(sOffA), 1024 * i, opt.get("afl", "")),
                    {"w": (("A", n % 3), ("A", n), 8)}) for i in range(4)]

    def dmaB(n):
        return [Ins("buffer_load_dwordx4 %s, %s, %s offen offset:%d%s lds" % (v(vOB + j), s(sB, 4), s(sOffB), 1024 * j, opt.get("bfl", " nt")),
                    {"w": (("B", n % 4), ("B", n), 4)}) for j in range(4)]

    advB = ["s_add_u32 %s, %s, 0x4000" % (s(sBw), s(sBw)),
            "s_and_b32 %s, %s, 0xffff" % (s(sBw), s(sBw)),
            "s_add_u32 %s, %s, 0x40000" % (s(sOffB), s(sOffB))]
    advA = ["s_add_u32 %s, %s, 0x8000" % (s(sAw), s(sAw)),
            "s_cmp_ge_u32 %s, 0x28000" % s(sAw),
            "s_cselect_b32 %s, 0x18000, 0" % s(sT),
            "s_sub_u32 %s, %s, %s" % (s(sAw), s(sAw), s(sT)),
            "s_add_u32 %s, %s, 128" % (s(sOffA), s(sOffA))]
    gA = lambda n, half: [("s_add_u32 m0, %s, 0x1000" % s(sAw)) if half else ("s_mov_b32 m0, %s" % s(sAw))] + dmaA(n, half) + (advA if half else [])
    gB = lambda n: ["s_mov_b32 m0, %s" % s(sBw)] + dmaB(n) + advB

    slot_of = [0, 1, 2, 3, 6, 7, 8, 9, 4, 5, 2, 3, 6, 7]
    worder = []

    def gW(t):
        sl = slot_of[t]
        al = [("A", (sl - 4) // 2)] if sl >= 4 else [("B", sl)]
        return ["s_add_u32 m0, %s, 0x%x" % (s(sW4k), sl * 16384), "s_add_u32 %s, %s, 0x%x" % (s(sT3), s(sQo), t * 0x40000)] + \
            [Ins("buffer_load_dwordx4 %s, %s, %s offen offset:%d lds" % (v(vOB + j), s(sWq, 4), s(sT3), 1024 * j),
                 {"w": (("S", sl), ("W", t), 4), "alias": al}) for j in range(4)]

    sTA, sTB, sToA, sToB = 48, 64, 56, 57
    sTW, sToW = 72, 58

    WT = opt.get("wt", 0)

    def touch_l(t):
        if t % 2 == 0:
            return [Ins("buffer_load_dwordx4 %s, %s, %s, %s offen" % (v(vDum, 4), v(vST), s(sTA, 4), s(sToA)), {"nodst": True}),
                    "s_add_u32 %s, %s, 1024" % (s(sToA), s(sToA))]
        if WT:
            return [Ins("buffer_load_dwordx4 %s, %s, %s, %s offen" % (v(vDum, 4), v(vST), s(sTW, 4), s(sToW)), {"nodst": True}),
                    "s_add_u32 %s, %s, 0x80000" % (s(sToW), s(sToW))]
        return []

    vLN = vXr
    c.I("s_mul_i32 %s, s2, %d" % (s(sXo), 8 * 896))
    c.I("s_cmp_eq_u32 %s, 0" % s(sW))
    c.I("s_cselect_b32 %s, 0, 0x40000000" % s(sOob))
    c.I("s_cbranch_scc0 L1_noln1")
    ln1 = Code()
    for i in range(7):
        ln1.I("buffer_load_dwordx4 %s, %s, %s, %s offen offset:%d" % (v(vLN + 4 * i, 4), v(vT + 4), s(sX, 4), s(sXo), 128 * i))
    pro2 = Code()
    c = pro2
    c.L("L1_noln1")
    put(c, gA(0, 0) + gB(0) + gA(0, 1) + gB(1))
    NPRE = 16
    if opt.get("bigpro", True):
        put(c, gA(1, 0) + gA(1, 1) + gB(2) + gB(3))
        NPRE = 32
    c.I("s_cmp_lt_u32 %s, 2" % s(sW))
    c.I("s_cselect_b32 %s, %s, %s" % (s(sTA), s(sPf), s(sPf + 4)))
    c.I("s_cselect_b32 %s, %s, %s" % (s(sTA + 1), s(sPf + 1), s(sPf + 5)))
    srd_fin(c, sTA, 448 * 8192)
    c.I("s_and_b32 %s, %s, 1" % (s(sT), s(sW)))
    c.I("s_lshl_b32 %s, s2, 1" % s(sToA))
    c.I("s_add_u32 %s, %s, %s" % (s(sToA), s(sToA), s(sT)))
    c.I("s_mul_i32 %s, %s, 7168" % (s(sToA), s(sToA)))
    c.I("s_add_u32 %s, %s, 7168" % (s(sTA + 2), s(sToA)))
    put(c, code_srd(sTB, sToB, 4))
    c.I("s_cmp_lt_u32 s2, 128")
    c.I("s_cselect_b32 s72, s72, s74")
    c.I("s_cselect_b32 s73, s73, s75")
    srd_fin(c, sTW, 1024 * 8192)
    c.I("s_and_b32 %s, s2, 127" % s(sToW))
    c.I("s_lshl_b32 %s, %s, 2" % (s(sToW), s(sToW)))
    c.I("s_add_u32 %s, %s, %s" % (s(sToW), s(sToW), s(sW)))
    c.I("s_lshl_b32 %s, %s, 10" % (s(sToW), s(sToW)))
    c.I("s_add_u32 %s, %s, 0x%x" % (s(sToW), s(sToW), WT * 0x80000))
    if opt.get("ctouch"):
        c.I("s_lshl_b32 %s, s2, 2" % s(sToW))
        c.I("s_add_u32 %s, %s, %s" % (s(sToW), s(sToW), s(sW)))
        c.I("s_lshl_b32 %s, %s, 12" % (s(sToW), s(sToW)))
    c.I("s_mov_b32 %s, 0" % s(sRd))
    c.I("s_lshr_b32 %s, s2, 1" % s(sT))
    c.I("s_mul_i32 %s, %s, %d" % (s(sXo), s(sT), 14 * 1024))
    c.I("s_and_b32 %s, s2, 1" % s(sT))
    c.I("s_lshl_b32 %s, %s, 7" % (s(sT), s(sT)))
    c.I("s_add_u32 %s, %s, %s" % (s(sXo), s(sXo), s(sT)))
    c.I("s_add_u32 %s, %s, 0x%x" % (s(sXo), s(sXo), WS_XN))
    c.I("s_add_u32 %s, %s, %s" % (s(sXo), s(sXo), s(sOob)))
    c.I("s_min_u32 %s, s2, %d" % (s(sFlag), FG_N // 2 - 1))
    c.I("s_lshl_b32 %s, %s, 8" % (s(sFlag), s(sFlag)))
    c.I("s_add_u32 %s, %s, 0x%x" % (s(sFlag), s(sFlag), WS_FLAG))
    c.I("s_add_u32 %s, %s, %s" % (s(sFlag), s(sFlag), s(sOob)))
    c.I("s_getreg_b32 %s, hwreg(HW_REG_XCC_ID, 0, 4)" % s(sT))
    c.I("s_mul_i32 %s, %s, %s" % (s(sT2), s(sT), s(sT)))
    c.I("s_lshl_b32 %s, %s, 18" % (s(sT2), s(sT2)))
    c.I("s_lshl_b32 %s, %s, 8" % (s(sT), s(sT)))
    c.I("s_add_u32 %s, %s, %s" % (s(sT), s(sT), s(sT2)))
    c.I("s_add_u32 %s, %s, 1" % (s(sT), s(sT)))
    c.I("v_mov_b32 %s, %s" % (v(vT + 7), s(sT)))
    c.I("s_and_b32 %s, s2, 7" % s(sSt))
    c.I("s_lshl_b32 %s, %s, 5" % (s(sSt), s(sSt)))
    c.I("s_add_u32 %s, %s, %s" % (s(sSt), s(sSt), s(sOob)))
    c.I("v_min_u32 %s, 1, %s" % (v(vT + 3), L))
    c.I("v_lshlrev_b32 %s, 12, %s" % (v(vT + 6), v(vT + 3)))
    c.I("v_and_b32 %s, 7, %s" % (v(vT + 3), L))
    c.I("v_lshlrev_b32 %s, 5, %s" % (v(vT + 3), v(vT + 3)))
    c.I("v_lshlrev_b32 %s, 2, %s" % (v(vT + 2), L))
    c.I("v_mov_b32 %s, 0" % v(vT + 1))
    c.I("v_mov_b32 %s, 1" % v(vT))
    c.I("s_cmp_eq_u32 %s, 0" % s(sW))
    c.I("s_cbranch_scc0 L1_noln2")
    pro2 = fix_m0(pro2)
    ln2 = Code()
    c = ln2
    sm, sq, one, t4 = vLN + 32, vLN + 34, vLN + 36, vLN + 40
    c.I("v_mov_b32 %s, 0x3f803f80" % v(one))
    for k in range(4):
        c.I("v_mov_b32 %s, 0" % v(sm + k))
    c.I("s_waitcnt vmcnt(%d)" % NPRE)
    for k in range(28):
        c.I("v_dot2c_f32_bf16 %s, %s, %s" % (v(sm + (k & 1)), v(vLN + k), v(one)))
        c.I("v_dot2c_f32_bf16 %s, %s, %s" % (v(sq + (k & 1)), v(vLN + k), v(vLN + k)))
    c.I("s_nop 2")
    c.I("v_add_f32 %s, %s, %s" % (v(sm), v(sm), v(sm + 1)))
    c.I("v_add_f32 %s, %s, %s" % (v(sq), v(sq), v(sq + 1)))
    c.I("s_nop 0")
    for x in (sm, sq):
        c.I("v_add_f32_dpp %s, %s, %s row_ror:8 row_mask:0xf bank_mask:0xf" % (v(x), v(x), v(x)))
    for sw in ("v_permlane16_swap_b32", "v_permlane32_swap_b32"):
        for x in (sm, sq):
            c.I("v_mov_b32 %s, %s" % (v(x + 1), v(x)))
        c.I("s_nop 1")
        for x in (sm, sq):
            c.I("%s %s, %s" % (sw, v(x), v(x + 1)))
        for x in (sm, sq):
            c.I("v_add_f32 %s, %s, %s" % (v(x), v(x), v(x + 1)))
    proj.ln_scalars(c, sm, sq, sT, scale=0x3db8aa3b)
    proj.ln_apply(c, [vLN + k for k in range(28)], sm, sq, t4)
    pro3 = Code()
    c = pro3
    c.L("L1_noln2")

    def reads(dst, n):
        An, ks = n >> 1, n & 1
        boff = 16384 * (n & 1)
        ra = [Ins("ds_read_b128 %s, %s offset:%d" % (v(dst + 4 * mt, 4), v(vRA + ks), mt * 2048),
                  {"r": (("A", An % 3), ("A", An))}) for mt in range(8)]
        rb = []
        for nt in range(8):
            for rr in range(2):
                rb.append(Ins("ds_read_b64_tr_b16 %s, %s offset:%d" % (v(dst + 32 + 4 * nt + 2 * rr, 2), v(vRB + (nt & 1)),
                                                                       boff + rr * 2048 + (nt >> 1) * 256),
                              {"r": (("B", n % 4), ("B", n))}))
        return [ra[0]] + rb + ra[1:]

    c.I("s_waitcnt vmcnt(%d)" % (NPRE - 12))
    c.I("s_barrier")
    ST.mark(c, 'kv0')
    put(c, reads(vX, 0))
    c.I("s_cmp_eq_u32 %s, 0" % s(sTyp))
    c.I("s_cbranch_scc0 L1_V_start")

    def mf(src, typ, czero, byacc=False):
        out = []
        order = [(mt, nt) for mt in range(8) for nt in range(8)]
        if typ == "K":
            order = [(mt, nt) for nt in range(8) for mt in range(8)]
        if byacc:
            idx = (lambda mt, nt: mt * 8 + nt) if typ == "K" else (lambda mt, nt: ((mt >> 1) * 8 + nt) * 2 + (mt & 1))
            order.sort(key=lambda z: (idx(*z) + 16) % 64)
        for mt, nt in order:
            cf, wf = v(src + 4 * mt, 4), v(src + 32 + 4 * nt, 4)
            if typ == "K":
                acc = a((mt * 8 + nt) * 4, 4)
                out.append(M16 % (acc, wf, cf, "0" if czero else acc))
            else:
                acc = a(((mt >> 1) * 8 + nt) * 8 + (mt & 1) * 4, 4)
                out.append(M16 % (acc, cf, wf, "0" if czero else acc))
        return out

    rot = ["s_add_u32 %s, %s, 0x8000" % (s(sT2), s(sRd)),
           "s_cmp_eq_u32 %s, 0x18000" % s(sT2),
           "s_cselect_b32 %s, 0, %s" % (s(sT2), s(sT2)),
           "s_sub_u32 %s, %s, %s" % (s(sDelta), s(sT2), s(sRd)),
           "s_mov_b32 %s, %s" % (s(sRd), s(sT2))]
    rotv = ["v_add_u32 %s, %s, %s" % (v(vRA), s(sDelta), v(vRA)),
            "v_add_u32 %s, %s, %s" % (v(vRA + 1), s(sDelta), v(vRA + 1)),
            "v_xor_b32 %s, 0x8000, %s" % (v(vRB), v(vRB)),
            "v_xor_b32 %s, 0x8000, %s" % (v(vRB + 1), v(vRB + 1))]

    def step(code, t, typ, main, auto, after=(), tailres=4, extra=None):
        if auto:
            code.append(Ins("@need", {"need": [("B", t + 1), ("A", (t + 1) >> 1)] + list(auto), "lgkm0": True}))
        else:
            code.I("s_waitcnt vmcnt(%d) lgkmcnt(0)" % (19 if WT else 17 + t % 2))
        code.I("s_barrier")
        put(code, after)
        src, dst = (vX, vY) if t % 2 == 0 else (vY, vX)
        rds = reads(dst, t + 1) if t < 31 else []
        main = list(main)
        if t % 2 == 0:
            main = rot + main
        n = len(main)
        ms = spread(main, 1, 61, opt.get("wv", 8))
        streams = [[(x, 2 * i, 0, 48) for i, x in enumerate(rds)] + ([(x, 50 + k, 49, 63) for k, x in enumerate(rotv)] if t % 2 == 0 else []), ms]
        if extra:
            streams.append(extra)
        gaps, load = schedule(64, 8, streams, reserve={63: tailres})
        weave(code, mf(src, typ, t == 0, bool(extra)), gaps)

    stdA = lambda t: gA(t // 2 + 2, 1) if t % 2 == 0 else gA((t + 5) // 2, 0)
    std = lambda t: (gB(t + 4) + stdA(t)) if opt.get("bfirst", True) else (stdA(t) + gB(t + 4))

    lnst = []
    for i in range(7):
        lnst.append(Ins("buffer_store_dwordx4 %s, %s, %s, %s offen offset:%d sc1" % (v(vLN + 4 * i, 4), v(vT + 5), s(sWS, 4), s(sXo), (i & 1) * 2048), {"tag": "LN"}))
        if i & 1:
            lnst.append("s_add_u32 %s, %s, 0x1000" % (s(sXo), s(sXo)))
    lnst.append(Ins("buffer_store_dword %s, %s, %s, %s offen sc1" % (v(vT + 1), v(vT + 2), s(sWS, 4), s(sFlag)), {"tag": "LN"}))
    arrive = ["buffer_atomic_add %s, %s, %s, %s offen sc1" % (v(vT + 7), v(vT + 6), s(sDbg, 4), s(sSt))]
    NH = opt.get("nh", 3)

    def headpart(typ):
        code = Code()
        if opt.get("bigpro", True):
            m = {0: gA(2, 0) + std(0), 1: std(1)}
        else:
            m = {0: gA(1, 0) + gA(1, 1) + gB(2) + gB(3), 1: gA(2, 0) + std(0) + std(1)}
        for t in range(2 * NH):
            main = m.get(t, std(t))
            if True:
                main = main + touch_l(t)
            if opt.get("ctouch"):
                k0 = {0: (0, 1), 1: (2, 3)} if opt["ctouch"] == 2 else {k: (k,) for k in range(4)}
                for k in k0.get(t, ()):
                    main = main + [Ins("buffer_load_dwordx4 %s, %s, %s, %s offen offset:%d" % (v(vDum, 4), v(vST), s(sA, 4), s(sToW), 1024 * k), {"nodst": True})]
            if t == 2 * NH - 1:
                main = code_load(vST, v(vDum, 4), sTB, sToB) + main
            if t == opt.get("lnat", 0):
                main = lnst + main
            last = t == 2 * NH - 1
            ST.mark(code, 's%d' % t)
            step(code, t, typ, main, ["x"] + (["LN"] if last else []), after=arrive if last else ())
        ST.mark(code, 'h1')
        code.I("s_mov_b32 %s, %d" % (s(sCnt), opt.get("nloop", 13 - NH)))
        pre = Code(pro2)
        w = autowait(Code(list(pro2) + [Ins("s_waitcnt vmcnt(%d)" % (NPRE - 12))] + list(fix_m0(code))))
        return Code(w[len(pro2) + 1:])

    def body(it, typ):
        code = Code()
        mid = lambda t: std(t) + touch_l(t)
        step(code, 2 * it, typ, mid(2 * it), None)
        step(code, 2 * it + 1, typ, mid(2 * it + 1) + ["s_sub_u32 %s, %s, 1" % (s(sCnt), s(sCnt)), "s_cmp_lg_u32 %s, 0" % s(sCnt)], None, tailres=8)
        code.I("s_cbranch_scc1 L1_%s_top" % typ)
        return fix_m0(code)

    XR = 10
    xreg = lambda qt, t: v(vXr + 8 * t + 4 * qt, 4) if t < 6 else (v(232 + 8 * (t - 6) + 4 * qt, 4) if t < 9 else a(128 + 8 * (t - 6) + 4 * qt, 4))

    def xload(t):
        out = ["buffer_load_dwordx4 %s, %s, %s, %s offen offset:%d%s" % (xreg(qt, t), v(vST), s(sWS, 4), s(sXo + qt), (t & 3) * 1024, opt.get("xfl", ""))
               for qt in range(2)]
        if t & 3 == 3:
            out += ["s_add_u32 %s, %s, 0x1000" % (s(sXo + qt), s(sXo + qt)) for qt in range(2)]
        return out

    sGo = 60

    def drain(n):
        pk = vP + 4 * (n & 1)
        out = ["v_accvgpr_read_b32 %s, %s" % (v(vE + k), a(8 * n + k)) for k in range(8)]
        out += ["v_cvt_pk_bf16_f32 %s, %s, %s" % (v(pk + k), v(vE + 2 * k), v(vE + 2 * k + 1)) for k in range(4)]
        o = n >> 2
        if n & 3 == 0 or n in RESTART:
            out.append("s_add_u32 %s, %s, %d" % (s(sCnt), s(sInc0 if o & 1 else sSt), (o >> 1) * US))
        out.append(Ins("buffer_store_dwordx4 %s, %s, %s, %s offen offset:%d sc1" % (v(pk, 4), v(vST), s(sWS, 4), s(sCnt), (n & 3) * 1024), {"tag": "KV"}))
        return out
    RESTART = (19,)

    def endpart(typ):
        code = Code()
        lab = "L1_%s_" % typ
        if not any(x.t == lab + "poll:" for x in OOL):
            OOL.L(lab + "cw")
            OOL.I("s_mov_b32 %s, 0x%x" % (s(sT3), SPIN))
            OOL.L(lab + "poll")
            OOL.I("buffer_load_dword %s, %s, %s, 0 offen sc1" % (v(vPoll), v(vT + 3), s(sDbg, 4)))
            OOL.I("s_waitcnt vmcnt(0)")
            OOL.I("v_and_b32 %s, 0xff, %s" % (v(vT + 4), v(vPoll)))
            OOL.I("v_cmp_ne_u32 vcc, 32, %s" % v(vT + 4))
            OOL.I("s_cbranch_vccz %sgot" % lab)
            OOL.I("s_sub_u32 %s, %s, 1" % (s(sT3), s(sT3)))
            OOL.I("s_cbranch_scc0 %spoll" % lab)
            OOL.I("s_branch %sgot" % lab)
        chk = ["v_and_b32 %s, 0xff, %s" % (v(vT + 4), v(vPoll)), "v_cmp_ne_u32 vcc, 32, %s" % v(vT + 4), "s_cbranch_vccnz %scw" % lab, lab + "got:"]
        setup = ["s_and_b32 %s, s2, 7" % s(sT2),
                 "v_readfirstlane_b32 %s, %s" % (s(sFast), v(vT + 7)),
                 "v_readlane_b32 %s, %s, %s" % (s(sT2), v(vPoll), s(sT2)),
                 "s_bfe_u32 %s, s2, 0x30004" % s(sT),
                 "s_sub_u32 %s, 15, %s" % (s(sT3), s(sT)),
                 "s_bitcmp1_b32 s2, 7",
                 "s_cselect_b32 %s, %s, %s" % (s(sT), s(sT3), s(sT)),
                 "s_lshl_b32 %s, %s, 2" % (s(sT), s(sT)),
                 "s_add_u32 %s, %s, %s" % (s(sT), s(sT), s(sW)),
                 "s_mul_i32 %s, %s, %d" % (s(sXo), s(sT), 28 * 1024),
                 "s_add_u32 %s, %s, 0x%x" % (s(sXo), s(sXo), WS_XN),
                 "s_add_u32 %s, %s, %d" % (s(sXo + 1), s(sXo), 14 * 1024),
                 "s_lshl_b32 %s, %s, %d" % (s(sFast), s(sFast), 4 if opt.get("slow") else 5),
                 "s_cmp_eq_u32 %s, %s" % (s(sT2), s(sFast)),
                 "s_cselect_b32 %s, 1, 0" % s(sFast)]
        kvb = ["s_lshl_b32 %s, %s, 6" % (s(sT), s(sHead)),
               "s_lshl_b32 %s, %s, 3" % (s(sT2), s(sMt)),
               "s_add_u32 %s, %s, %s" % (s(sT), s(sT), s(sT2)),
               "s_lshr_b32 %s, %s, 1" % (s(sT2), s(sW)),
               "s_lshl_b32 %s, %s, 2" % (s(sT2), s(sT2)),
               "s_add_u32 %s, %s, %s" % (s(sT), s(sT), s(sT2)),
               "s_mul_i32 %s, %s, %d" % (s(sSt), s(sT), US),
               "s_and_b32 %s, %s, 1" % (s(sT2), s(sW)),
               "s_lshl_b32 %s, %s, 10" % (s(sWid), s(sT2)),
               "s_add_u32 %s, %s, 12" % (s(sT), s(sTyp)),
               "s_lshl_b32 %s, %s, %s" % (s(sT2), s(sT2), s(sT)),
               "s_add_u32 %s, %s, %s" % (s(sSt), s(sSt), s(sT2)),
               "s_mul_i32 %s, %s, 0x%x" % (s(sT2), s(sTyp), WS_VF),
               "s_add_u32 %s, %s, %s" % (s(sSt), s(sSt), s(sT2)),
               "s_lshl_b32 %s, %s, 7" % (s(sOffB), s(sHead)),
               "s_lshl_b32 %s, %s, 3" % (s(sT), s(sTyp)),
               "s_add_u32 %s, %s, %s" % (s(sT), s(sT), s(sMt)),
               "s_lshl_b32 %s, %s, 2" % (s(sT), s(sT)),
               "s_add_u32 %s, %s, 0x%x" % (s(sOffB), s(sOffB), WS_FLAG + FG_KV * 128),
               "s_add_u32 %s, %s, %s" % (s(sFlag), s(sOffB), s(sT)),
               "v_subrev_u32 %s, %s, %s" % (v(vRB), s(sWid), v(vRB)),
               "v_subrev_u32 %s, %s, %s" % (v(vRB + 1), s(sWid), v(vRB + 1)),
               "v_min_u32 %s, 15, %s" % (v(vT + 2), L),
               "v_lshlrev_b32 %s, 2, %s" % (v(vT + 2), v(vT + 2))]
        cl = [Ins("buffer_load_dword %s, %s, %s, 0 offen sc1" % (v(vPoll), v(vT + 3), s(sDbg, 4)), {"tag": "C"})]
        xs = [xload(t_) for t_ in range(XR - 1)]
        def xt(k0, k1):
            if not opt.get("xl2", False):
                return []
            return ["s_add_u32 %s, %s, %d" % (s(sT3), s(sOob), k0 * 1024)] + \
                [Ins("buffer_load_dwordx4 %s, %s, %s, %s offen offset:%d sc1" % (v(vDum, 4), v(vST), s(sWS, 4), s(sT3), i * 1024), {"nodst": True}) for i in range(k1 - k0)]
        setup += ["s_bitcmp1_b32 s2, 3", "s_cselect_b32 %s, %s, %s" % (s(sOob), s(sXo + 1), s(sXo))]
        NE = 8
        kvb.insert(-4, "s_add_u32 %s, %s, %s" % (s(sInc0), s(sInc0), s(sSt)))
        m = {26: cl + std(26) + code_load(vST, v(vDum, 4), sTB, sToB), 27: gW(4) + gB(31),
             28: setup + gW(0) + xs[0] + xs[1] + gW(5) + xs[2], 29: gW(1) + xs[3] + xs[4] + gW(6) + xs[5] + kvb[:-4],
             30: gW(2) + xs[6] + xs[7] + gW(7) + xs[8], 31: kvb[-4:] + gW(3) + gW(8) + list(att['decode'])}
        ex = []
        for n in range(24, 32):
            g = drain(n)
            lo = 2 * (n - 24) + 6
            ex += [(x, max(lo, 6 + (13.5 * (n - 24) + k) * 57.0 / (13.5 * NE)), lo, 63) for k, x in enumerate(g)]
        m["ex"] = [x[0] for x in ex]
        ST.mark(code, 'l1')
        for t in range(26, 32):
            if t % 2 == 0:
                ST.mark(code, 's%d' % t)
            step(code, t, typ, m[t], ["x"] + (["C"] if t == 28 else []), after=chk if t == 28 else (), extra=ex if t == 31 else None)
        if typ == "K":
            code.I("s_branch L1_tail")
        pre = Code()
        for t in (23, 24, 25):
            put(pre, std(t) + touch_l(t))
        w = autowait(Code(pre + fix_m0(code)))
        m["code"] = w[len(pre):]
        return Code(w[len(pre):]), m

    def tail(m):
        c = Code()
        c.L("L1_tail")
        c.append(Ins("@need", {"need": [("W", k) for k in range(3)], "lgkm0": True}))
        c.I("s_barrier")
        ST.mark(c, 'kv1')
        put(c, gW(9))
        sb = opt.get("sb", 4)
        pl = ["buffer_load_dword %s, %s, %s, %s offen sc1" % (v(vPoll), v(vT + 2), s(sWS, 4), s(sOffB))]
        OOL.L("L1_kvw")
        poll_loop(OOL, "L1_kv", vPoll, vT + 2, sOffB, sInc1)
        OOL.I("s_branch L1_kvok")
        chk = ["v_cmp_ne_u32 vcc, 1, %s" % v(vPoll), "s_cbranch_vccnz L1_kvw", "L1_kvok:"] + acquire("L1_kva")
        ab = {sb: signal("L1_kvs", vT, vT + 1, sFlag)}
        sx = {8: att["dmaO"], 2 * sb + 1: pl}
        after = []
        if sb == 4:
            sx.update({10: att["dma0"], 11: att["dma1"], 12: att["dma2"]})
            ab[5] = chk
        elif sb == 5:
            sx.update({12: att["dma0"], 13: att["dma1"] + att["dma2"]})
            ab[6] = chk
        else:
            after = chk + att["dma0"] + att["dma1"] + att["dma2"]
        nb = opt.get("nb", 8)
        zq = ["v_accvgpr_write_b32 %s, 0" % a(128 + k) for k in range(4)]
        seq = [drain(n) for n in (19, 20, 21, 22, 23)] + [drain(16) + zq, drain(17), drain(18)] + \
            [drain(n) + ([mfma(a(8 * n - 8, 16), a(128, 4), a(128, 4), "0")] if n & 1 else []) for n in range(16)]
        for t_ in range(9, 14):
            sx[t_ - 6] = sx.get(t_ - 6, []) + xload(t_)
        q = Code()
        first = proj.proj_main(q, xreg, vRB, vQA, lambda nt, qt: v(vX + 8 * nt + 4 * qt, 4), lambda k, n: a(192 + k, n), 16, slot_of,
                               {2: [gW(10), gW(11)], 3: [gW(12), gW(13)]}, need_extra={sb: ["KV"]}, after_bar=ab, step_extra=sx,
                               first_need=False, first_reads=False, fill=[x for g in seq[nb:] for x in g], fill_steps=opt.get("fs", 7),
                               marks=lambda c, b: ST.mark(c, 'p%d' % b), late=att["qcvt"])
        put(q, after)
        put(c, list(att["consts"]) + first)
        put(c, [x for g in seq[:nb] for x in g])
        ST.mark(c, 'bu')
        c += q
        ST.mark(c, 'q1')
        pre = Code([x for x in m["code"] if x.t.startswith("buffer_")][-40:])
        w = autowait(Code(pre + fix_m0(c)))
        return Code(w[len(pre):])

    code = Code()
    code += pro + ln1 + pro2 + ln2 + pro3
    parts = {}
    for typ in "KV":
        hp = headpart(typ)
        ep, m = endpart(typ)
        parts[typ] = (hp, ep)
        code.L("L1_%s_start" % typ)
        code += hp
        code.I(".p2align 6")
        code.L("L1_%s_top" % typ)
        code += body(NH, typ)
        code += ep
    tc = tail(m)
    code += tc

    traces = []
    for typ in "KV":
        for ln in (False, True):
            tr = list(pro) + (list(ln1) if ln else []) + list(pro2) + (list(ln2) if ln else []) + list(pro3) + list(parts[typ][0])
            for it in range(NH, 13):
                pa = body(it, typ)
                assert [x.t for x in pa] == [x.t for x in body(NH, typ)]
                tr += pa
            tr += parts[typ][1] + tc
            traces.append(tr)
    return code, traces
```

```python
from asmlib import *
from layout import *
from common import *
import proj
from proj import put


def rbdecode(c, sRb, sMem):
    c.I("s_and_b32 %s, s2, 7" % s(sRb))
    c.I("s_lshr_b32 %s, s2, 7" % s(sMem))
    c.I("s_lshl_b32 %s, %s, 3" % (s(sMem), s(sMem)))
    c.I("s_add_u32 %s, %s, %s" % (s(sRb), s(sRb), s(sMem)))
    c.I("s_bfe_u32 %s, s2, 0x40003" % s(sMem))


vFo, vPre = 146, 147


def early(sA, sB):
    c = Code()
    rbdecode(c, sA, sB)
    c.I("s_lshl_b32 %s, %s, 7" % (s(sA), s(sA)))
    c.I("s_add_u32 %s, %s, 0x%x" % (s(sA), s(sA), WS_FLAG + FG_PO * 128))
    c.I("s_add_u32 %s, s2, 1" % s(sB))
    c.I("s_lshl_b32 %s, %s, 1" % (s(sB), s(sB)))
    c.I("v_add_u32 %s, %s, v1" % (v(vFo), s(sB)))
    c.I("v_and_b32 %s, 15, %s" % (v(vFo), v(vFo)))
    c.I("v_lshlrev_b32 %s, 2, %s" % (v(vFo), v(vFo)))
    c.I("buffer_load_dword %s, %s, %s, %s offen sc1" % (v(vPre), v(vFo), s(sWS, 4), s(sA)))
    return c


def gen(ST, opt, fused_prev, fused_next):
    LB = 163840 - 256
    vD = 4
    V = Alloc(148, 256)
    vA = V(32, 4)
    V.p = 192
    vPo, vHo, vXo, vSt = V(), V(), V(), V()
    vXr = V(8, 4)
    vH = V(8, 4)
    vT = V(16, 4)
    vL = 1
    sX = 12
    sRb, sMem, sP0, sX0, sH0, sFl, sCnt, sP1 = range(32, 40)
    c = Code()
    c.I("s_load_dwordx2 %s, s[0:1], 0" % s(sX, 2))
    rbdecode(c, sRb, sMem)
    L = v(vL)
    if not fused_prev:
        c.I("v_and_b32 %s, 63, v0" % L)
    c.I("v_and_b32 %s, 7, %s" % (v(vT), L))
    c.I("v_bfe_u32 %s, %s, 3, 2" % (v(vT + 1), L))
    c.I("v_lshrrev_b32 %s, 5, %s" % (v(vT + 2), L))
    c.I("v_lshlrev_b32 %s, 4, %s" % (v(vPo), v(vT)))
    c.I("v_lshl_add_u32 %s, %s, 8, %s" % (v(vPo), v(vT + 1), v(vPo)))
    c.I("v_lshl_add_u32 %s, %s, 10, %s" % (v(vHo), v(vT + 2), v(vPo)))
    c.I("v_mul_u32_u24 %s, %d, %s" % (v(vT + 3), 14 * 1024, v(vT + 2)))
    c.I("v_add_u32 %s, %s, %s" % (v(vPo), v(vPo), v(vT + 3)))
    c.I("v_mul_u32_u24 %s, 896, %s" % (v(vXo), v(vT)))
    c.I("v_lshl_add_u32 %s, %s, 3, %s" % (v(vXo), v(vT + 1), v(vXo)))
    c.I("v_lshl_add_u32 %s, %s, 6, %s" % (v(vXo), v(vT + 2), v(vXo)))
    c.I("v_lshlrev_b32 %s, 3, %s" % (v(vSt), v(vT)))
    c.I("v_add_u32 %s, %d, %s" % (v(vSt), LB, v(vSt)))
    c.I("s_lshl_b32 %s, %s, 3" % (s(sT), s(sRb)))
    c.I("s_lshr_b32 %s, %s, 1" % (s(sT2), s(sMem)))
    c.I("s_add_u32 %s, %s, %s" % (s(sT), s(sT), s(sT2)))
    c.I("s_and_b32 %s, %s, 1" % (s(sT2), s(sMem)))
    c.I("s_lshl_b32 %s, %s, 7" % (s(sT2), s(sT2)))
    c.I("s_lshl_b32 %s, %s, 11" % (s(sT3), s(sW)))
    c.I("s_add_u32 %s, %s, %s" % (s(sT2), s(sT2), s(sT3)))
    c.I("s_mul_i32 %s, %s, %d" % (s(sH0), s(sT), 14 * 1024))
    c.I("s_add_u32 %s, %s, %s" % (s(sH0), s(sH0), s(sT2)))
    c.I("s_add_u32 %s, %s, 0x%x" % (s(sH0), s(sH0), WS_HN))
    c.I("s_mul_i32 %s, %s, %d" % (s(sP0), s(sT), 16 * 14 * 1024))
    c.I("s_add_u32 %s, %s, %s" % (s(sP0), s(sP0), s(sT2)))
    c.I("s_add_u32 %s, %s, 0x%x" % (s(sP0), s(sP0), WS_PO))
    c.I("s_cmp_eq_u32 %s, 3" % s(sW))
    c.I("s_cselect_b32 %s, 0x40000000, 0" % s(sT3))
    c.I("s_add_u32 %s, %s, %s" % (s(sP1), s(sP0), s(sT3)))
    c.I("s_add_u32 %s, %s, 0x2000" % (s(sP1), s(sP1)))
    c.I("s_lshl_b32 %s, %s, 4" % (s(sT), s(sRb)))
    c.I("s_add_u32 %s, %s, %s" % (s(sT), s(sT), s(sMem)))
    c.I("s_mul_i32 %s, %s, %d" % (s(sX0), s(sT), 8 * 896))
    c.I("s_lshl_b32 %s, %s, 7" % (s(sT), s(sW)))
    c.I("s_add_u32 %s, %s, %s" % (s(sX0), s(sX0), s(sT)))
    c.I("s_add_u32 %s, %s, %s" % (s(sT), s(sX0), s(sT3)))
    c.I("s_waitcnt lgkmcnt(0)")
    srd_fin(c, sX, 2048 * 896)
    for r in range(2):
        for k in range(2):
            c.I("buffer_load_dwordx2 %s, %s, %s, %s offen offset:%d" % (v(vXr + 4 * r + 2 * k, 2), v(vXo), s(sX, 4), s(sT if r else sX0), r * 512 + k * 32))
    c.I("s_add_u32 %s, %s, 0x%x" % (s(sX0), s(sX0), WS_H))
    ST.mark(c, 'rp')
    dreg = lambda j, r, pq: vD + 4 * (4 * j + 2 * r + pq)
    sm, sq, one = vT, vT + 2, vT + 8
    c.I("v_mov_b32 %s, 0x3f803f80" % v(one))
    c.I("v_mov_b32 %s, 0" % v(sm))
    c.I("v_mov_b32 %s, 0" % v(sq))
    for k in range(32):
        c.I("v_mov_b32 %s, 0" % v(vA + k))

    def ld(j):
        if fused_prev:
            out = ["s_add_u32 %s, s2, %d" % (s(sT2), j + 1), "s_and_b32 %s, %s, 7" % (s(sT2), s(sT2)), "s_mul_i32 %s, %s, %d" % (s(sT2), s(sT2), 28 * 1024),
                   "s_add_u32 %s, %s, %s" % (s(sT), s(sP0), s(sT2)), "s_add_u32 %s, %s, %s" % (s(sT2), s(sP1), s(sT2))]
        else:
            out = ["s_add_u32 %s, %s, %d" % (s(sT), s(sP0), j * 28 * 1024), "s_add_u32 %s, %s, %d" % (s(sT2), s(sP1), j * 28 * 1024)]
        return out + ["buffer_load_dwordx4 %s, %s, %s, %s offen offset:%d sc1" % (v(dreg(j, r, pq), 4), v(vPo), s(sWS, 4), s(sT2 if r else sT), pq * 1024)
                      for r in range(2) for pq in range(2)]

    def ac(j):
        out = []
        for i in range(4):
            for k in range(4):
                x = dreg(j, i >> 1, i & 1) + k
                d = vA + 8 * i + 2 * k
                t = vT + 4 + 2 * (k & 1)
                out += ["v_lshlrev_b32 %s, 16, %s" % (v(t), v(x)), "v_and_b32 %s, 0xffff0000, %s" % (v(t + 1), v(x)),
                        "v_pk_add_f32 %s, %s, %s" % (v(d, 2), v(d, 2), v(t, 2))]
        return out

    if not fused_prev:
        for j in range(8):
            put(c, ld(j))
        for j in range(8):
            put(c, ac(j))
        trace = None
    else:
        sPend, sGot, sRdy = 20, 21, 22
        c.I("s_lshl_b32 %s, %s, 7" % (s(sFl), s(sRb)))
        c.I("s_add_u32 %s, %s, 0x%x" % (s(sFl), s(sFl), WS_FLAG + FG_PO * 128))
        c.I("s_mov_b32 %s, 0x5555" % s(sPend))
        c.I("s_mov_b32 %s, 0" % s(sGot))
        c.I("s_mov_b32 %s, 0x%x" % (s(sCnt), SPIN))
        ST.mark(c, 'r0')
        lp = Code()
        lp.I("v_cmp_eq_u32 vcc, 1, %s" % v(vPre))
        lp.I("s_and_b32 %s, vcc_lo, 0x3fff" % s(sRdy))
        lp.I("s_cmp_eq_u32 %s, 0x3fff" % s(sRdy))
        lp.I("s_cbranch_scc0 L3_loop")
        fast = Code()
        for j in range(7):
            put(fast, ld(j))
        for j in range(7):
            fast.I("s_waitcnt vmcnt(%d)" % (4 * (6 - j)))
            put(fast, ac(j)[:24])
            put(fast, ac(j)[24:])
        fast.I("s_mov_b32 %s, 0x4000" % s(sPend))
        lp0 = Code(lp + fast)
        lp = Code()
        lp.L("L3_loop")
        lp.I("buffer_load_dword %s, %s, %s, %s offen sc1" % (v(vT + 15), v(vFo), s(sWS, 4), s(sFl)))
        lp.I("s_waitcnt vmcnt(1)")
        for j in range(8):
            lp.I("s_bitcmp1_b32 %s, %d" % (s(sGot), 2 * j))
            lp.I("s_cbranch_scc0 L3_a%d" % j)
            put(lp, ac(j))
            lp.L("L3_a%d" % j)
        lp.I("s_cmp_eq_u32 %s, 0" % s(sPend))
        lp.I("s_cbranch_scc1 L3_sum")
        lp.I("s_waitcnt vmcnt(0)")
        lp.I("v_cmp_eq_u32 vcc, 1, %s" % v(vT + 15))
        lp.I("s_sub_u32 %s, %s, 1" % (s(sCnt), s(sCnt)))
        lp.I("s_cselect_b32 %s, -1, 0" % s(sRdy))
        lp.I("s_lshr_b32 %s, vcc_lo, 1" % s(sGot))
        lp.I("s_and_b32 %s, %s, vcc_lo" % (s(sGot), s(sGot)))
        lp.I("s_or_b32 %s, %s, %s" % (s(sGot), s(sGot), s(sRdy)))
        lp.I("s_and_b32 %s, %s, %s" % (s(sGot), s(sGot), s(sPend)))
        lp.I("s_andn2_b32 %s, %s, %s" % (s(sPend), s(sPend), s(sGot)))
        for j in range(8):
            lp.I("s_bitcmp1_b32 %s, %d" % (s(sGot), 2 * j))
            lp.I("s_cbranch_scc0 L3_l%d" % j)
            put(lp, ld(j))
            lp.L("L3_l%d" % j)
        if SLEEP[0]:
            lp.I("s_cmp_lg_u32 %s, 0" % s(sGot))
            lp.I("s_cbranch_scc1 L3_loop")
            lp.I("s_sleep %d" % SLEEP[0])
        lp.I("s_branch L3_loop")
        lp.L("L3_sum")
        head = autowait(c)
        k = [x.t for x in lp].index("s_cbranch_scc1 L3_sum")
        trace = list(head) + list(lp0) + list(lp) + list(lp[:k + 1])
        lp = Code(lp0 + lp)
        c = Code()
    ST.mark(c, 'r1')
    c.I("s_nop 0")
    for r in range(2):
        for k in range(8):
            c.I("v_permlane32_swap_b32 %s, %s" % (v(vA + 16 * r + k), v(vA + 16 * r + 8 + k)))
        for k in range(4):
            c.I("v_pk_add_f32 %s, %s, %s" % (v(vA + 16 * r + 2 * k, 2), v(vA + 16 * r + 2 * k, 2), v(vA + 16 * r + 8 + 2 * k, 2)))
    for r in range(2):
        for k in range(4):
            t = vT + 10
            s0 = vA + 16 * r + 2 * k
            c.I("v_cvt_pk_bf16_f32 %s, %s, %s" % (v(t), v(s0), v(s0 + 1)))
            c.I("v_lshlrev_b32 %s, 16, %s" % (v(t + 2), v(t)))
            c.I("v_and_b32 %s, 0xffff0000, %s" % (v(t + 3), v(t)))
            c.I("v_lshlrev_b32 %s, 16, %s" % (v(t + 4), v(vXr + 4 * r + k)))
            c.I("v_and_b32 %s, 0xffff0000, %s" % (v(t + 5), v(vXr + 4 * r + k)))
            c.I("v_pk_add_f32 %s, %s, %s" % (v(t + 2, 2), v(t + 2, 2), v(t + 4, 2)))
            c.I("v_cvt_pk_bf16_f32 %s, %s, %s" % (v(vH + 4 * r + k), v(t + 2), v(t + 3)))
    c.I("s_add_u32 %s, %s, %s" % (s(sT2), s(sX0), s(sT3)))
    for r in range(2):
        for k in range(2):
            c.I("buffer_store_dwordx2 %s, %s, %s, %s offen offset:%d sc1" % (v(vH + 4 * r + 2 * k, 2), v(vXo), s(sWS, 4), s(sT2 if r else sX0), r * 512 + k * 32))
    for k in range(8):
        c.I("v_dot2c_f32_bf16 %s, %s, %s" % (v(sm), v(vH + k), v(one)))
        c.I("v_dot2c_f32_bf16 %s, %s, %s" % (v(sq), v(vH + k), v(vH + k)))
    c.I("s_nop 2")
    for x in (sm, sq):
        c.I("v_add_f32_dpp %s, %s, %s row_ror:8 row_mask:0xf bank_mask:0xf" % (v(x), v(x), v(x)))
    for sw in ("v_permlane16_swap_b32", "v_permlane32_swap_b32"):
        for x in (sm, sq):
            c.I("v_mov_b32 %s, %s" % (v(x + 1), v(x)))
        c.I("s_nop 1")
        for x in (sm, sq):
            c.I("%s %s, %s" % (sw, v(x), v(x + 1)))
        for x in (sm, sq):
            c.I("v_add_f32 %s, %s, %s" % (v(x), v(x), v(x + 1)))
    c.I("v_mov_b32 %s, %s" % (v(sm + 1), v(sq)))
    c.I("s_lshl_b32 %s, %s, 6" % (s(sT), s(sW)))
    c.I("v_add_u32 %s, %s, %s" % (v(vT + 4), s(sT), v(vSt)))
    c.I("ds_write_b64 %s, %s" % (v(vT + 4), v(sm, 2)))
    c.I("s_add_u32 %s, %s, %s" % (s(sT3), s(sH0), s(sT3)))
    c.I("s_add_u32 %s, %s, 0x2000" % (s(sT3), s(sT3)))
    c.I("s_waitcnt lgkmcnt(0)")
    c.I("s_barrier")
    for w in range(4):
        c.I("ds_read_b64 %s, %s offset:%d" % (v(vD + 2 * w, 2), v(vSt), 64 * w))
    c.I("s_waitcnt lgkmcnt(0)")
    c.I("v_pk_add_f32 %s, %s, %s" % (v(vD, 2), v(vD, 2), v(vD + 2, 2)))
    c.I("v_pk_add_f32 %s, %s, %s" % (v(vD + 4, 2), v(vD + 4, 2), v(vD + 6, 2)))
    c.I("v_add_f32 %s, %s, %s" % (v(sm), v(vD), v(vD + 4)))
    c.I("v_add_f32 %s, %s, %s" % (v(sq), v(vD + 1), v(vD + 5)))
    proj.ln_scalars(c, sm, sq, sT)
    proj.ln_apply(c, [vH + k for k in range(8)], sm, sq, vT + 4)
    c.I("buffer_store_dwordx4 %s, %s, %s, %s offen sc1" % (v(vH, 4), v(vHo), s(sWS, 4), s(sH0)))
    c.I("buffer_store_dwordx4 %s, %s, %s, %s offen sc1" % (v(vH + 4, 4), v(vHo), s(sWS, 4), s(sT3)))
    if fused_next:
        c.I("s_lshl_b32 %s, %s, 7" % (s(sFl), s(sRb)))
        c.I("s_lshl_b32 %s, %s, 2" % (s(sT), s(sMem)))
        c.I("s_add_u32 %s, %s, %s" % (s(sFl), s(sFl), s(sT)))
        c.I("s_add_u32 %s, %s, 0x%x" % (s(sFl), s(sFl), WS_FLAG + FG_HN * 128))
        c.I("v_mov_b32 %s, 1" % v(vT + 8))
        c.I("v_mov_b32 %s, 0" % v(vT + 9))
        c.I("s_waitcnt vmcnt(0)")
        c.I("s_barrier")
        put(c, signal("L3_s", vT + 8, vT + 9, sFl))
    ST.mark(c, 'r2')
    c = autowait(c)
    if trace is None:
        return c, [list(c), list(c)]
    c.insert(0, Ins("s_waitcnt vmcnt(0)"))
    return Code(head + lp + c), [trace + list(c)] * 2
```
